```python
import torch

def _softmax(x, axis=-1):
    return torch.softmax(x, dim=axis)

def _gelu(x):
    return torch.nn.functional.gelu(x, approximate='tanh')

def _silu(x):
    return torch.nn.functional.silu(x)

def _sigmoid(x):
    return torch.sigmoid(x)

def _layernorm(x, axis=-1, eps=1e-05):
    m = x.mean(dim=axis, keepdim=True)
    v = x.var(dim=axis, keepdim=True, unbiased=False)
    return (x - m) / torch.sqrt(v + eps)

def _scatter_add(tgt, idx, src, axis=0):
    return tgt.clone().index_add_(axis, idx, src)

def _segment_sum(src, seg, n):
    out = torch.zeros((n,) + src.shape[1:], dtype=src.dtype)
    return out.index_add_(0, seg, src)

def _pad(x, pw):
    flat = tuple((v for pair in reversed(pw) for v in pair))
    return torch.nn.functional.pad(x, flat)
kernel_name = 'sequential_preLN__memory_aug_recurrent_mem_tr__mixer_token_mlp__prompt'

def setup_inputs():

    _w = lambda a: (lambda t: t.to(torch.bfloat16) if t.is_floating_point() else t)(torch.as_tensor(a))

    def _A_setup():
        B, S, Dm = (1, 2048, 576)
        H, Dh = (32, 128)
        M, seg = (8, 32)
        seg = min(seg, S)
        S = S // seg * seg
        return {'x': _w((lambda *s: torch.randn(*s, dtype=torch.bfloat16) * 0.05)(B, S, Dm)), 'mem0': _w((lambda *s: torch.randn(*s, dtype=torch.bfloat16) * 0.2)(B, M, Dm)), 'Wq': _w((lambda *s: torch.randn(*s, dtype=torch.bfloat16) * 1.6)(Dm, H, Dh) * Dm ** (-0.5)), 'Wk': _w((lambda *s: torch.randn(*s, dtype=torch.bfloat16) * 1.6)(Dm, H, Dh) * Dm ** (-0.5)), 'Wv': _w((lambda *s: torch.randn(*s, dtype=torch.bfloat16) * 0.2)(Dm, H, Dh) * Dm ** (-0.5)), 'Wo': _w((lambda *s: torch.randn(*s, dtype=torch.bfloat16) * 0.2)(H, Dh, Dm) * (H * Dh) ** (-0.5)), 'seg_len': seg}
    _A_in = _A_setup()

    def _B_setup():
        B, S, D, F = (1, 2048, 576, 4608)
        return {'x': _w((lambda *s: torch.randn(*s, dtype=torch.bfloat16) * 0.05)(B, S, D)), 'w1': _w((lambda *s: torch.randn(*s, dtype=torch.bfloat16) * 0.4)(S, F) * S ** (-0.5)), 'b1': _w((lambda *s: torch.randn(*s, dtype=torch.bfloat16) * 3.2)(F) * 0.02), 'w2': _w((lambda *s: torch.randn(*s, dtype=torch.bfloat16) * 0.8)(F, S) * F ** (-0.5)), 'b2': _w((lambda *s: torch.randn(*s, dtype=torch.bfloat16) * 3.2)(S) * 0.02)}
    _B_in = _B_setup()
    return {'A_x': _A_in['x'], 'A_mem0': _A_in['mem0'], 'A_Wq': _A_in['Wq'], 'A_Wk': _A_in['Wk'], 'A_Wv': _A_in['Wv'], 'A_Wo': _A_in['Wo'], 'A_seg_len': _A_in['seg_len'], 'B_x': _B_in['x'], 'B_w1': _B_in['w1'], 'B_b1': _B_in['b1'], 'B_w2': _B_in['w2'], 'B_b2': _B_in['b2']}

def reference(A_x, A_mem0, A_Wq, A_Wk, A_Wv, A_Wo, A_seg_len, B_x, B_w1, B_b1, B_w2, B_b2):

    def _A_ref(x, mem0, Wq, Wk, Wv, Wo, seg_len):
        B, S, Dm = x.shape
        H, Dh = (Wq.shape[1], Wq.shape[2])
        M = mem0.shape[1]
        scale = Dh ** (-0.5)
        n_seg = S // seg_len
        L = M + seg_len
        idx = torch.arange(L)
        mask = (idx[:, None] < M) | (idx[:, None] >= idx[None, :])
        mem = mem0
        outs = []
        for s in range(n_seg):
            xs = x[:, s * seg_len:(s + 1) * seg_len, :].clone()
            h = torch.concatenate([mem, xs], axis=1)
            q = torch.einsum('btd,dhe->bhte', h, Wq)
            k = torch.einsum('btd,dhe->bhte', h, Wk)
            v = torch.einsum('btd,dhe->bhte', h, Wv)
            scores = torch.einsum('bhqe,bhke->bhqk', q, k) * scale
            scores = torch.where(mask[None, None], scores, -1000000000.0)
            p = _softmax(scores, axis=-1)
            o = torch.einsum('bhqk,bhke->bhqe', p, v)
            o = torch.einsum('bhte,hed->btd', o, Wo)
            mem = o[:, :M, :].clone()
            outs.append(o[:, M:, :])
        return torch.concatenate(outs, axis=1)

    def _B_ref(x, w1, b1, w2, b2):
        B, S, D = x.shape
        h = _layernorm(x, axis=-1)
        u = torch.einsum('bsd,sf->bdf', h, w1) + b1
        u = _gelu(u)
        y = torch.einsum('bdf,fs->bds', u, w2) + b2
        return (lambda x, *d: x.permute(*d))(y, 0, 2, 1)
    x = A_x
    h = x + _A_ref(_layernorm(x, axis=-1), A_mem0, A_Wq, A_Wk, A_Wv, A_Wo, A_seg_len)
    h2 = h + _B_ref(_layernorm(h, axis=-1), B_w1, B_b1, B_w2, B_b2)
    return h2
```

```python
from common import *
from simple import *
MI, SREG, WB = 0, 9216, 15360
WV_IMG, WO_IMG = WB, WB + 73728
LDS_A = WB + 147456
def wop(i):
    return 256 + 8 * i if i < 32 else 80 + 8 * (i - 32)
WQ = lambda j, t: wop(2 * j + t)
WK = lambda j, t: wop(18 + 2 * j + t)
WVA = lambda j: wop(36 + j)
WO0 = lambda i: wop(45 + i)
class DS:
    def __init__(s): s.n = 0; s.tag = {}; s.w = 0
    def op(s, ins, tag=None):
        e(ins); s.n += 1
        if tag is not None: s.tag[tag] = s.n
    def need(s, tag):
        r = s.tag[tag]
        if r > s.w:
            c = min(s.n - r, 15); e(f"s_waitcnt lgkmcnt({c})"); s.w = s.n - c
    def drain(s): e("s_waitcnt lgkmcnt(0)"); s.w = s.n
def smf(d, a, b): e(f"v_smfmac_f32_16x16x64_bf16 {vr(d,4)}, {vr(a,4)}, {R(b,8)}, v1")
def cvt(d, a, n):
    for i in range(n): e(f"v_cvt_pk_bf16_f32 v{d+i}, v{a+2*i}, v{a+2*i+1}")
SW, SWL, SH = 6, 7, 3
S_WQ, S_WK, S_WV, S_WO = 8, 12, 16, 20
S_XN, S_QF, S_KF, S_VF, S_FLG = 24, 28, 32, 36, 48
S_P1, S_MH, S_KVM = 52, 56, 60
TMO = 64; STEP = 65

def roles():
    e("s_getreg_b32 s70, hwreg(HW_REG_XCC_ID, 0, 4)"); e("s_and_b32 s70, s70, 7")
    e(f"s_cmp_lg_u32 s{SW}, 0"); e("s_cbranch_scc1 role_wait")
    e("s_lshl_b32 s71, s70, 2"); e("v_mov_b32 v2, s71"); e("v_mov_b32 v3, 1"); e("s_mov_b64 exec, 1")
    e("buffer_atomic_add v3, v2, s[72:75], 0 offen sc0"); e("s_waitcnt vmcnt(0)"); e("s_mov_b64 exec, -1")
    e("v_readfirstlane_b32 s71, v3"); e("v_lshlrev_b32 v2, 2, v0"); e("s_mov_b32 s76, 200000")
    lab("role_poll")
    e("buffer_load_dword v3, v2, s[72:75], 0 offen sc1"); e("s_waitcnt vmcnt(0)")
    for i in range(8): e(f"v_readlane_b32 s{80+i}, v3, {i}")
    e("s_mov_b32 s77, 0")
    for i in range(8): e(f"s_add_u32 s77, s77, s{80+i}")
    e("s_cmp_eq_u32 s77, 256"); e("s_cbranch_scc1 role_calc")
    e("s_sub_u32 s76, s76, 1"); e("s_cmp_lg_u32 s76, 0"); e("s_cbranch_scc1 role_poll")
    e("s_mov_b32 s77, -1"); e("s_branch role_pub")
    lab("role_calc")
    e("s_mov_b32 s78, 7"); e("s_mov_b32 s77, s71")
    for i in range(7, -1, -1):
        e(f"s_cmp_ge_u32 s{80+i}, 32"); e(f"s_cselect_b32 s78, {i}, s78")
        e(f"s_cmp_gt_u32 s70, {i}"); e(f"s_cselect_b32 s79, s{80+i}, 0"); e("s_add_u32 s77, s77, s79")
    e("s_cmp_ge_u32 s70, s78"); e("s_cselect_b32 s79, 32, 0"); e("s_sub_u32 s77, s77, s79")
    e("s_cmp_lg_u32 s70, s78"); e("s_cbranch_scc1 role_pub")
    e("s_cmp_ge_u32 s71, 32"); e("s_cbranch_scc1 role_pub")
    e("s_add_u32 s77, s71, 0x1000")
    lab("role_pub")
    e("v_mov_b32 v2, 0"); e("v_mov_b32 v3, s77"); e("ds_write_b32 v2, v3"); e("s_waitcnt lgkmcnt(0)")
    lab("role_wait")
    e("s_barrier"); e("v_mov_b32 v2, 0"); e("ds_read_b32 v3, v2"); e("s_waitcnt lgkmcnt(0)")
    e(f"v_readfirstlane_b32 s{SH}, v3"); e("s_barrier")
    e(f"s_cmp_eq_u32 s{SH}, -1"); e("s_cbranch_scc0 role_ok"); e("s_endpgm"); lab("role_ok")

def worker():
    e(f"s_lshl_b32 s66, s{SW}, 1")
    X = Op('k', 128, 1152, S_XN, 67, "s66", 2)
    Yq = Op('t', 128, 8192, S_WQ, 68, 0, 8); Yk = Op('t', 128, 8192, S_WK, 69, 0, 8, share=Yq); Yv = Op('t', 128, 8192, S_WV, 70, 0, 8, share=Yq)
    ops = [X, Yq, Yk, Yv]
    vb, stage = gemm_setup(ops, 8, SW, 2); assert vb <= 30 and stage == 65536
    e("v_and_b32 v30, 63, v0"); e("v_lshlrev_b32 v30, 4, v30")
    sdivmod(71, 72, SH, 7, 256)
    lab("wk_task")
    e(f"s_mul_i32 s67, s72, {128*1152}"); e("s_lshl_b32 s68, s71, 8"); e("s_mov_b32 s69, s68"); e("s_mov_b32 s70, s68")
    zero(256, 192)
    acc = lambda m, et, tt: 256 + 4 * ((m * 8 + et) * 2 + tt)
    mf = []
    for m, Y in enumerate((Yq, Yk, Yv)):
        for et in range(8):
            for tt in range(2): mf.append((acc(m, et, tt), Y, et, X, tt) if m < 2 else (acc(m, et, tt), X, tt, Y, et))
    gemm_loop(ops, mf, 9, 2, stage, 32, 12, SWL, 73, 74)
    e(f"s_lshl_b32 s75, s72, 2"); e(f"s_add_u32 s75, s75, s{SW}"); e("s_lshl_b32 s75, s75, 5"); e("s_add_u32 s75, s75, s71")
    e("s_lshl_b32 s75, s75, 13"); e("s_add_u32 s76, s75, 4096"); e("s_nop 7")
    n = 0
    for m, srd in ((1, S_KF), (2, S_VF), (0, S_QF)):
        for f in range(8):
            a0, a1 = (acc(m, f // 2 * 2, f % 2), acc(m, f // 2 * 2 + 1, f % 2)) if m < 2 else (acc(m, f, 0), acc(m, f, 1))
            t = 32 + 8 * (n % 16); n += 1
            for i in range(4): e(f"v_accvgpr_read_b32 v{t+i}, a{a0-256+i}"); e(f"v_accvgpr_read_b32 v{t+4+i}, a{a1-256+i}")
            cvt(t, t, 4)
            e(f"buffer_store_dwordx4 {vr(t,4)}, v30, {sr(srd,4)}, s{75+f//4} offen offset:{(f%4)*1024} sc1")
    e("s_waitcnt vmcnt(0)"); e("s_barrier")
    e("s_lshl_b32 s75, s72, 5"); e("s_add_u32 s75, s75, s71"); e("s_lshl_b32 s75, s75, 2")
    e(f"s_cmp_lg_u32 s{SW}, 0"); e("s_cbranch_scc1 wk_nof")
    e("v_mov_b32 v2, 0"); e("v_mov_b32 v3, 1"); e("s_mov_b64 exec, 1")
    e(f"buffer_store_dword v3, v2, {sr(S_FLG,4)}, s75 offen sc1"); e("s_mov_b64 exec, -1")
    lab("wk_nof")
    e("s_add_u32 s72, s72, 7"); e("s_cmp_lt_u32 s72, 16"); e("s_cbranch_scc1 wk_task")
    e("s_endpgm")

def poll_tmo(again, out):
    e(f"s_cmp_eq_u32 s{TMO}, 0"); e(f"s_cbranch_scc1 {out}"); e(f"s_sub_u32 s{TMO}, s{TMO}, 1"); e(f"s_branch {again}")

def chain_prologue():
    e("v_and_b32 v12, 63, v0"); e("v_lshrrev_b32 v13, 4, v12"); e("v_and_b32 v14, 15, v12")
    e(f"s_and_b32 s66, s{SW}, 1"); e(f"s_lshr_b32 s67, s{SW}, 1")
    e("s_lshl_b32 s68, s67, 5"); e("s_lshl_b32 s69, s66, 1"); e("s_add_u32 s68, s68, s69")
    e("v_lshrrev_b32 v15, 1, v13"); e("v_and_b32 v16, 1, v13"); e("v_lshl_add_u32 v15, v15, 3, v16"); e("v_add_u32 v15, s68, v15")
    e(f"s_lshl_b32 s69, s{SH}, 8")
    for p in range(2):
        e(f"v_add_u32 v16, {4*p}, v13"); e("v_lshlrev_b32 v16, 1, v16"); e("v_xor_b32 v16, v16, v14")
        e(f"v_add_u32 v17, {4*p}, v15"); e("v_lshlrev_b32 v17, 13, v17"); e(f"v_lshl_add_u32 v{20+p}, v16, 4, v17"); e(f"v_add_u32 v{20+p}, s69, v{20+p}")
    e("v_bfe_u32 v15, v12, 4, 1"); e("v_bfe_u32 v16, v12, 3, 1"); e("v_lshl_add_u32 v15, v15, 3, v16"); e("v_lshrrev_b32 v16, 5, v12")
    e("v_lshl_add_u32 v15, v16, 2, v15"); e("v_add_u32 v15, s68, v15"); e("v_lshlrev_b32 v15, 13, v15")
    e("v_and_b32 v16, 7, v12"); e("v_lshlrev_b32 v17, 1, v13"); e("v_xor_b32 v16, v16, v17")
    e("v_lshl_add_u32 v22, v16, 4, v15"); e("v_add_u32 v22, s69, v22")
    e("s_lshl_b32 s68, s67, 3"); e("s_lshl_b32 s70, s66, 1"); e("s_add_u32 s68, s68, s70")
    e(f"s_mul_i32 s70, s{SH}, 147456")
    for i in range(18):
        e(f"v_add_u32 v15, {64*i}, v12"); vdivmod(16, 17, 15, 72, 1152)
        e("v_bfe_u32 v18, v16, 1, 2"); e("v_lshlrev_b32 v18, 1, v18"); e("v_xor_b32 v17, v17, v18")
        e("v_bfe_u32 v18, v16, 2, 1"); e("v_lshlrev_b32 v15, 6, v18"); e("v_bfe_u32 v18, v16, 1, 1"); e("v_lshl_add_u32 v15, v18, 4, v15")
        e("v_bfe_u32 v18, v16, 3, 1"); e("v_lshl_add_u32 v15, v18, 2, v15"); e("v_and_b32 v18, 1, v16"); e("v_add3_u32 v15, v15, v18, s68")
        e("v_mul_u32_u24 v15, 1152, v15"); e(f"v_lshl_add_u32 v{24+i}, v17, 4, v15"); e(f"v_add_u32 v{24+i}, s70, v{24+i}")
    e("v_lshrrev_b32 v15, 2, v12"); e("v_and_b32 v16, 3, v12"); e("v_lshlrev_b32 v16, 3, v16")
    e("v_and_b32 v17, 7, v15"); e(f"s_lshl_b32 s68, s{SW}, 1")
    for t in range(2):
        e(f"s_add_u32 s71, s68, {t}"); e("v_xor_b32 v18, s71, v17"); e("v_lshl_add_u32 v18, v18, 5, v16")
        e(f"v_lshl_add_u32 v{42+t}, v15, 8, v18"); e(f"v_add_u32 v{42+t}, {WB}, v{42+t}")
    e("v_bfe_u32 v17, v15, 1, 2"); e(f"v_xor_b32 v17, s{SW}, v17"); e("v_lshl_add_u32 v17, v17, 5, v16")
    e("v_lshl_add_u32 v4, v15, 7, v17"); e(f"v_add_u32 v4, {WV_IMG}, v4")
    e("v_mul_u32_u24 v5, 1152, v15"); e("v_add_u32 v5, v5, v17"); e(f"v_add_u32 v5, {WO_IMG}, v5")
    def dma(v, srd, so, lds):
        e(f"s_mov_b32 s71, {so}"); e(f"s_add_u32 m0, s72, {lds}"); e("s_nop 0"); e(f"buffer_load_dwordx4 v{v}, {sr(srd,4)}, s71 offen lds")
    def qk_dma(srd):
        e(f"s_lshl_b32 s72, s{SW}, 12")
        for j in range(9):
            for g in range(4): dma(20 + (g & 1), srd, (64 * j + 16 * (g >> 1)) * 8192, WB + j * 16384 + g * 1024)
    def vo_dma(half):
        e(f"s_lshl_b32 s72, s{SW}, 11")
        for j in range(9):
            for gp in range(2): dma(22, S_WV, (64 * j + 16 * gp) * 8192 + 128 * half, WV_IMG + j * 8192 + gp * 1024)
        e(f"s_mul_i32 s72, s{SW}, 18432")
        for i in range(18): dma(24 + i, S_WO, 32 * half * 1152, WO_IMG + i * 1024)
    def sync(): e("s_waitcnt vmcnt(0) lgkmcnt(0)"); e("s_barrier")
    for srd, W in ((S_WQ, WQ), (S_WK, WK)):
        qk_dma(srd); sync()
        for t in range(2):
            for j in range(9):
                if j % 4 == 0: e(f"v_add_u32 v11, {j*16384}, v{42+t}")
                for m in range(4): e(f"ds_read_b64_tr_b16 {R(W(j,t)+2*m,2)}, v11 offset:{(j%4)*16384+m*4096}")
        sync()
    vo_dma(0); sync()
    e("v_add_u32 v11, 65536, v4")
    for j in range(9):
        for m in range(4):
            e(f"ds_read_b64_tr_b16 {R(WVA(j)+2*m,2)}, v{4 if j<8 else 11} offset:{(j%8)*8192+m*2048}")
            e(f"ds_read_b64_tr_b16 {R(WO0(j)+2*m,2)}, v5 offset:{m*18432+j*128}")
    sync(); vo_dma(1)
    e("v_lshlrev_b32 v0, 4, v12")
    e("v_mov_b32 v1, 0x44444444"); e("v_mov_b32 v15, 0xeeeeeeee"); e("v_cmp_le_u32 vcc, 8, v14"); e("s_nop 1"); e("v_cndmask_b32 v1, v1, v15, vcc")
    e("v_and_b32 v15, 1, v13"); e("v_lshlrev_b32 v15, 2, v15"); e("v_and_b32 v16, 7, v14"); e("v_sub_u32 v15, v16, v15")
    for r in range(2):
        e(f"v_mov_b32 v{2+r}, 0")
        for hh, val in ((0, 0x3f80), (1, 0x3f800000)):
            e(f"v_mov_b32 v17, {val:#x}"); e(f"v_cmp_eq_u32 vcc, {2*r+hh}, v15"); e("s_nop 1"); e(f"v_cndmask_b32 v{2+r}, v{2+r}, v17, vcc")
    e("v_lshlrev_b32 v17, 4, v16"); e("v_lshl_add_u32 v17, v13, 7, v17")
    e(f"s_lshl_b32 s68, s{SW}, 9"); e("v_add_u32 v7, s68, v17")
    e("v_lshrrev_b32 v18, 3, v14"); e("v_lshl_add_u32 v8, v18, 9, v17")
    e("v_lshrrev_b32 v19, 1, v13"); e("v_lshl_add_u32 v19, v19, 3, v18"); e(f"s_lshl_b32 s68, s{SW}, 1"); e("v_add_u32 v19, s68, v19")
    e("v_lshlrev_b32 v9, 13, v19"); e("v_and_b32 v19, 1, v13"); e("v_lshl_add_u32 v19, v19, 3, v16"); e("v_lshl_add_u32 v9, v19, 4, v9")
    e("v_add_u32 v9, s69, v9")
    e("v_lshl_add_u32 v19, v18, 2, v13"); e("v_lshlrev_b32 v10, 4, v19"); e("v_lshrrev_b32 v19, 1, v16"); e("v_lshl_add_u32 v10, v19, 2, v10")
    e(f"s_lshl_b32 s73, s{SW}, 5"); e(f"s_add_u32 s73, s73, s{SH}")
    e("s_lshl_b32 s74, s73, 7"); e("v_add_u32 v10, s74, v10"); e("s_lshl_b32 s74, s73, 13")
    e("v_lshlrev_b32 v6, 7, v12")

def wait_flag(stb):
    a, o = uid("fl"), uid("flo")
    e(f"s_lshl_b32 s71, s{stb}, 5"); e(f"s_add_u32 s71, s71, s{SH}"); e("s_lshl_b32 s71, s71, 2"); e("v_mov_b32 v28, 0")
    lab(a); e(f"buffer_load_dword v29, v28, {sr(S_FLG,4)}, s71 offen sc1"); e("s_waitcnt vmcnt(0)")
    e("v_cmp_ne_u32 vcc, 0, v29"); e(f"s_cbranch_vccnz {o}"); poll_tmo(a, o); lab(o)

def chain():
    chain_prologue()
    e(f"s_mov_b32 s{TMO}, 400000"); e(f"s_mov_b32 s{STEP}, 0")
    e("s_mov_b32 s75, 0"); e("s_mov_b32 s76, 9216"); e("s_mov_b32 s77, 18432")
    e("s_mov_b32 s78, 0")
    e(f"s_lshl_b32 s79, s{SH}, 13")
    e(f"s_mov_b32 s80, {f2u(128**-0.5*LOG2E)}"); e("s_mov_b32 s82, 0x00ff00ff"); e("s_mov_b32 s83, 0x00ff00ff")
    e("s_mov_b32 s84, 0x55555555"); e("s_mov_b32 s85, 0x55555555")
    e("s_mov_b32 s86, 0"); wait_flag(86)
    KX, VX, AL, ACC, WL = 12, 20, 28, 40, 64
    lab("step")
    e(f"s_add_u32 s87, s75, s{SWL}"); e("s_add_u32 s88, s87, 4096"); e("s_add_u32 s89, s75, 8192")
    zero(ACC, 24)
    lab("mp")
    for i in range(3): e(f"buffer_load_dwordx4 {vr(64+4*i,4)}, v0, {sr(S_MH,4)}, s{87+i} offen sc1")
    e("s_waitcnt vmcnt(0)")
    e("v_max3_u32 v11, v64, v65, v66")
    for i in range(67, 75, 2): e(f"v_max3_u32 v11, v11, v{i}, v{i+1}")
    e("v_max_u32 v11, v11, v75"); e("v_cmp_eq_u32 vcc, -1, v11"); e("s_cbranch_vccz mpo"); poll_tmo("mp", "mpo"); lab("mpo")
    e(f"v_add_u32 v11, s{SWL}, v0")
    e("ds_write_b128 v11, v[64:67]"); e("ds_write_b128 v11, v[68:71] offset:4096"); e("ds_write_b128 v0, v[72:75] offset:8192")
    e(f"s_lshl_b32 s87, s{SWL}, 1"); e("s_add_u32 s87, s87, s79"); e(f"s_add_u32 s88, s79, s{SWL}"); e("s_add_u32 s89, s88, 4096")
    e("s_waitcnt lgkmcnt(0)"); e("s_barrier")
    d = DS()
    def rdA(j, q, tag): d.op(f"ds_read_b128 {vr(AL+4*q,4)}, v0 offset:{MI+j*1024}", tag)
    def rdV(j):
        for m in range(4): d.op(f"ds_read_b64_tr_b16 {vr(WL+8*(j%2)+2*m,2)}, v{4 if j<8 else 11} offset:{(j%8)*8192+m*2048}", ('wv', j))
    for j in range(3): rdA(j, j, ('a', j))
    for i in range(2): e(f"buffer_load_dwordx4 {vr(KX+4*i,4)}, v0, {sr(S_KF,4)}, s87 offen offset:{1024*i} sc1")
    for i in range(2): e(f"buffer_load_dwordx4 {vr(VX+4*i,4)}, v0, {sr(S_VF,4)}, s{88+i} offen sc1")
    for j in range(9):
        d.need(('a', j))
        for t in range(2): smf(ACC + 4 * t, AL + 4 * (j % 3), WQ(j, t))
        for t in range(2): smf(ACC + 8 + 4 * t, AL + 4 * (j % 3), WK(j, t))
        if j + 3 < 9: rdA(j + 3, j % 3, ('a', j + 3))
        if j in (2, 4): rdV(j // 2 - 1)
        if j in (6, 7): rdA(j - 6, j - 6, ('b', j - 6))
    e("v_add_u32 v11, 65536, v4")
    vj = [0]
    def vstep():
        j = vj[0]; vj[0] += 1
        d.need(('b', j)); smf(56, AL + 4 * (j % 2), WVA(j)); d.need(('wv', j)); smf(60, AL + 4 * (j % 2), WL + 8 * (j % 2))
        if j + 2 < 9: rdA(j + 2, j % 2, ('b', j + 2)); rdV(j + 2)
    tr = lambda dd, a: e(f"v_mfma_f32_16x16x16_bf16 {vr(dd,4)}, {vr(a,2)}, v[2:3], 0")
    vstep(); e("s_nop 3")
    cvt(36, 40, 4); e("s_nop 1"); tr(40, 36); tr(44, 38)
    cvt(36, 48, 4); e("s_nop 1"); tr(48, 36); tr(52, 38)
    vstep()
    cvt(36, 40, 4); e("s_nop 0"); cvt(40, 48, 4); e("s_waitcnt vmcnt(2)"); e("s_nop 0")
    for n, a in enumerate((40, KX, KX + 4)): e(f"v_mfma_f32_16x16x32_bf16 {vr(44+4*n,4)}, {vr(a,4)}, v[36:39], 0")
    e(f"s_lshl_b32 s87, s{SWL}, 1"); e("s_add_u32 s87, s87, s79")
    e(f"buffer_store_dwordx4 v[40:43], v0, {sr(S_KVM,4)}, s87 offen")
    vstep(); e("s_nop 1")
    e("s_mov_b64 exec, s[82:83]")
    for n in range(3): d.op(f"ds_write_b128 v7, {vr(44+4*n,4)} offset:{SREG+2048*n}", 'sw')
    e("s_mov_b64 exec, -1")
    for _ in range(4): vstep()
    d.drain(); e("s_barrier")
    S2 = (12, 16, 36)
    for n in range(3):
        d.op(f"ds_read_b128 {vr(44+4*n,4)}, v8 offset:{SREG+2048*n}"); d.op(f"ds_read_b128 {vr(S2[n],4)}, v8 offset:{SREG+2048*n+1024}", ('s', n))
    vstep(); vstep()
    WLS = (64, 72, 20)
    def rdO(i):
        for m in range(4): d.op(f"ds_read_b64_tr_b16 {vr(WLS[i%3]+2*m,2)}, v5 offset:{m*18432+i*128}", ('wo', i))
    for n in range(3):
        d.need(('s', n))
        for i in range(4): e(f"v_add_f32 v{44+4*n+i}, v{44+4*n+i}, v{S2[n]+i}")
    rdO(0); rdO(1)
    for r in range(44, 56): e(f"v_add_f32_dpp v{r}, v{r}, v{r} row_ror:8 row_mask:0xf bank_mask:0xf")
    rs = list(range(44, 56)); m_, t_, l_ = 36, 37, 38
    e(f"v_max3_f32 v{m_}, v44, v45, v46"); e(f"v_max3_f32 v{t_}, v47, v48, v49"); e(f"v_max3_f32 v{l_}, v50, v51, v52")
    e(f"v_max3_f32 v{m_}, v{m_}, v53, v54"); e(f"v_max3_f32 v{t_}, v{t_}, v{l_}, v55"); e(f"v_max_f32 v{m_}, v{m_}, v{t_}")
    xswap(32, "v_max_f32", m_, t_); xswap(16, "v_max_f32", m_, t_)
    e(f"v_mul_f32 v{m_}, s80, v{m_}")
    for r in rs: e(f"v_fma_f32 v{r}, v{r}, s80, -v{m_}")
    for r in rs: e(f"v_exp_f32 v{r}, v{r}")
    cvt(40, 56, 4)
    e(f"v_add_f32 v{l_}, v44, v45"); e(f"v_add_f32 v{t_}, v46, v47"); e(f"v_add_f32 v{l_}, v{l_}, v{t_}"); e(f"v_add_f32 v{t_}, v48, v49")
    e(f"v_fmac_f32 v{t_}, 0.5, v{l_}"); e(f"v_add_f32 v{l_}, v50, v51"); e(f"v_add_f32 v{m_}, v52, v53"); e(f"v_add_f32 v{t_}, v{t_}, v{l_}")
    e(f"v_add_f32 v{l_}, v54, v55"); e(f"v_add_f32 v{t_}, v{t_}, v{m_}"); e(f"v_add_f32 v{l_}, v{l_}, v{t_}")
    e(f"buffer_store_dwordx4 v[40:43], v0, {sr(S_KVM,4)}, s87 offen offset:1024")
    e(f"s_cmp_eq_u32 s{STEP}, 63"); e("s_cbranch_scc1 chain_end")
    xswap(32, "v_add_f32", l_, t_); xswap(16, "v_add_f32", l_, t_)
    e(f"v_rcp_f32 v{l_}, v{l_}"); e("s_nop 0")
    for r in rs: e(f"v_mul_f32 v{r}, v{r}, v{l_}")
    cvt(16, 44, 2); cvt(12, 48, 4); e("s_waitcnt vmcnt(2)"); e("s_nop 0")
    for t in range(2): e(f"v_mfma_f32_16x16x32_bf16 {vr(44+4*t,4)}, {vr(VX+4*t,4)}, v[12:15], 0")
    for t in range(2): e(f"v_mfma_f32_16x16x16_bf16 {vr(44+4*t,4)}, {vr(40+2*t,2)}, v[16:17], {vr(44+4*t,4)}")
    rdO(2)
    OA = [36, 40, 56, 60, 12, 16, 44, 48, 52]
    zero(36, 8); zero(56, 2)
    cvt(52, 44, 4)
    e("s_mov_b64 exec, s[82:83]"); d.op("ds_write_b128 v7, v[52:55]"); e("s_mov_b64 exec, -1")
    zero(58, 6); zero(12, 2)
    d.drain(); e("s_barrier")
    for k in range(2): d.op(f"ds_read_b128 {vr(AL+4*k,4)}, v8 offset:{1024*k}", ('o', k))
    zero(14, 6); zero(44, 12)
    def fold(i):
        a, b = OA[i], OA[i + 1] if i < 8 else 28
        if i == 8:
            for q in range(4): e(f"v_mov_b32 v{b+q}, v{a+q}")
            e("s_nop 0")
        for q in range(4): e(f"v_permlane32_swap_b32 v{a+q}, v{b+q}")
        for q in range(4): e(f"v_add_f32 v{a+q}, v{a+q}, v{b+q}")
        e(f"s_add_u32 s87, s78, {i*65536}")
        if i == 8: e("s_mov_b32 exec_hi, 0")
        e(f"buffer_store_dwordx4 {vr(a,4)}, v9, {sr(S_P1,4)}, s87 offen")
        if i == 8: e("s_mov_b64 exec, -1")
    d.need(('o', 1))
    for i in range(9):
        smf(OA[i], AL, WO0(i)); d.need(('wo', i)); smf(OA[i], AL + 4, WLS[i % 3])
        if i + 3 < 9: rdO(i + 3)
        if i in (4, 6, 8): fold(i - 4)
    fold(6); e("s_nop 3"); fold(8)
    e("s_cmp_ge_u32 s73, 72"); e("s_cbranch_scc1 red_done")
    e("v_mov_b32 v60, -1"); e("v_mov_b32 v61, -1"); e("v_mov_b32 v62, -1"); e("v_mov_b32 v63, -1")
    e(f"buffer_store_dword v60, v10, {sr(S_MH,4)}, s77 offen")
    e("s_add_u32 s87, s78, s74"); e("s_add_u32 s88, s87, 4096")
    lab("rp")
    for i in range(8): e(f"buffer_load_dwordx4 {vr(28+4*i,4)}, v0, {sr(S_P1,4)}, s{87+i//4} offen offset:{1024*(i%4)} sc1")
    for i in range(0, 8, 2):
        e(f"s_waitcnt vmcnt({6-i})")
        for q in range(0, 4, 2): e(f"v_pk_add_f32 {vr(28+4*i+q,2)}, {vr(28+4*i+q,2)}, {vr(32+4*i+q,2)}")
    for a, b in ((28, 36), (44, 52), (28, 44)):
        for q in range(0, 4, 2): e(f"v_pk_add_f32 {vr(a+q,2)}, {vr(a+q,2)}, {vr(b+q,2)}")
    e("s_nop 1"); e("v_permlane32_swap_b32 v28, v30"); e("v_permlane32_swap_b32 v29, v31"); e("s_nop 0")
    e("v_add_f32 v28, v28, v30"); e("v_add_f32 v29, v29, v31"); e("s_nop 1"); e("v_permlane16_swap_b32 v28, v29"); e("s_nop 0")
    e("v_add_f32 v28, v28, v29"); e("v_cmp_u_f32 vcc, v28, v28"); e("s_cbranch_vccz rpo"); poll_tmo("rp", "rpo"); lab("rpo")
    e("v_mov_b32_dpp v29, v28 quad_perm:[1,1,3,3] row_mask:0xf bank_mask:0xf"); e("v_cvt_pk_bf16_f32 v29, v28, v29")
    e("s_mov_b64 exec, s[84:85]"); e(f"buffer_store_dword v29, v10, {sr(S_MH,4)}, s76 offen"); e("s_mov_b64 exec, -1")
    for i in range(8): e(f"buffer_store_dwordx4 v[60:63], v0, {sr(S_P1,4)}, s{87+i//4} offen offset:{1024*(i%4)}")
    lab("red_done")
    e(f"s_add_u32 s{STEP}, s{STEP}, 1"); e(f"s_xor_b32 s78, s78, {72*8192}"); e(f"s_add_u32 s79, s79, {32*8192}")
    e("s_mov_b32 s87, s75"); e("s_mov_b32 s75, s76"); e("s_mov_b32 s76, s77"); e("s_mov_b32 s77, s87")
    e(f"s_and_b32 s87, s{STEP}, 3"); e("s_cmp_lg_u32 s87, 0"); e("s_cbranch_scc1 step")
    e(f"s_lshr_b32 s86, s{STEP}, 2"); wait_flag(86); e("s_branch step")
    lab("chain_end"); e("s_endpgm")

def k_main():
    kstart("main_kernel"); guard(256)
    e(f"s_load_dwordx2 s[4:5], s[0:1], {ARG['ws']}")
    for s, n in ((S_WQ, 'wq'), (S_WK, 'wk'), (S_WV, 'wv'), (S_WO, 'wo'), (72, 'dbg')): srd_arg(s, n)
    wave_id(SW, SWL); e("s_waitcnt lgkmcnt(0)")
    for s, n in ((S_XN, 'xn'), (S_QF, 'qf'), (S_KF, 'kf'), (S_VF, 'vf'), (S_FLG, 'flg'), (S_P1, 'p1'), (S_MH, 'mh'), (S_KVM, 'kvm')): srd_ws(s, n, 4)
    roles()
    e(f"s_cmp_ge_u32 s{SH}, 0x1000"); e("s_cbranch_scc1 is_chain")
    worker()
    lab("is_chain"); e(f"s_and_b32 s{SH}, s{SH}, 31")
    chain()
    return kdesc("main_kernel", 512, 256)
```

```python
L = []
def e(s): L.append("    " + s)
def lab(s): L.append(s + ":")
_uid = [0]
def uid(p):
    _uid[0] += 1
    return f"{p}_{_uid[0]}"
def vr(b, n=1): return f"v{b}" if n == 1 else f"v[{b}:{b+n-1}]"
def ar(b, n=1): return f"a{b}" if n == 1 else f"a[{b}:{b+n-1}]"
def R(b, n=1):
    return vr(b, n) if b < 256 else ar(b - 256, n)
def sr(b, n=1): return f"s{b}" if n == 1 else f"s[{b}:{b+n-1}]"

ARG = dict(x=0, mem0=8, wq=16, wk=24, wv=32, wo=40, w1=64, b1=72, w2=80, b2=88, out=96, dbg=104, ws=112)
SZ = dict(x=2359296, mem0=9216, wq=4718592, wk=4718592, wv=4718592, wo=4718592, w1=18874368, b1=9216,
          w2=18874368, b2=4096, out=2359296, dbg=256)
WS = {}
_o = 0
def wsreg(n, sz):
    global _o
    WS[n] = (_o, sz); _o += (sz + 4095) // 4096 * 4096
wsreg('xn', 2359296)
wsreg('p1', 2 * 72 * 8192)
wsreg('mh', 3 * 9216)
wsreg('flg', 4096)
wsreg('qf', 16777216); wsreg('kf', 16777216); wsreg('vf', 16777216)
wsreg('kvm', 64 * 32 * 8192)
wsreg('o', 16777216)
wsreg('h', 2359296); wsreg('hn', 2359296)
wsreg('u', 576 * 4608 * 2)

def srd_arg(d, name):
    e(f"s_load_dwordx2 {sr(d,2)}, s[0:1], {ARG[name]}")
    e(f"s_mov_b32 s{d+2}, {SZ[name]}"); e(f"s_mov_b32 s{d+3}, 0x00020000")
def srd_ws(d, name, wsb):
    o, sz = WS[name]
    e(f"s_add_u32 s{d}, s{wsb}, {o}"); e(f"s_addc_u32 s{d+1}, s{wsb+1}, 0")
    e(f"s_mov_b32 s{d+2}, {sz}"); e(f"s_mov_b32 s{d+3}, 0x00020000")

def kstart(name):
    L.append(f".globl {name}\n.p2align 8\n.type {name},@function\n{name}:")
def kdesc(name, nv, acc, ns=102):
    return (f".p2align 6\n.amdhsa_kernel {name}\n  .amdhsa_next_free_vgpr {nv}\n  .amdhsa_next_free_sgpr {ns}\n"
            f"  .amdhsa_accum_offset {acc}\n  .amdhsa_group_segment_fixed_size 0\n  .amdhsa_kernarg_size 120\n"
            f"  .amdhsa_user_sgpr_count 2\n  .amdhsa_user_sgpr_kernarg_segment_ptr 1\n"
            f"  .amdhsa_system_sgpr_workgroup_id_x 1\n.end_amdhsa_kernel")

def vdivmod(q, r, x, c, maxx):
    if c & (c - 1) == 0:
        e(f"v_lshrrev_b32 v{q}, {c.bit_length()-1}, v{x}"); e(f"v_and_b32 v{r}, {c-1}, v{x}"); return
    m = (1 << 16) // c + 1
    assert all((i * m) >> 16 == i // c for i in range(maxx)), (c, maxx)
    e(f"v_mul_u32_u24 v{q}, {m}, v{x}"); e(f"v_lshrrev_b32 v{q}, 16, v{q}")
    e(f"v_mul_u32_u24 v{r}, {c}, v{q}"); e(f"v_sub_u32 v{r}, v{x}, v{r}")
def sdivmod(q, r, x, c, maxx):
    if c & (c - 1) == 0:
        e(f"s_lshr_b32 s{q}, s{x}, {c.bit_length()-1}"); e(f"s_and_b32 s{r}, s{x}, {c-1}"); return
    m = (1 << 16) // c + 1
    assert all((i * m) >> 16 == i // c for i in range(maxx)), (c, maxx)
    e(f"s_mul_i32 s{q}, s{x}, {m}"); e(f"s_lshr_b32 s{q}, s{q}, 16")
    e(f"s_mul_i32 s{r}, s{q}, {c}"); e(f"s_sub_u32 s{r}, s{x}, s{r}")

def swz(RB):
    m = RB % 256
    if m == 0: return 7, lambda k: (k & 3) | ((k >> 3) & 1) << 2
    if m == 128: return 3, lambda k: ((k >> 1) & 1) | ((k >> 3) & 1) << 1
    assert m in (64, 192)
    return 1, lambda k: (k >> 3) & 1
def emit_f(dst, k, RB, tmp, perm=False):
    m = RB % 256
    e(f"v_bfe_u32 v{dst}, v{k}, {2 if perm else 3}, 1")
    if m == 0:
        e(f"v_and_b32 v{tmp}, 3, v{k}"); e(f"v_lshl_or_b32 v{dst}, v{dst}, 2, v{tmp}")
    elif m == 128:
        e(f"v_bfe_u32 v{tmp}, v{k}, 1, 1"); e(f"v_lshl_or_b32 v{dst}, v{dst}, 1, v{tmp}")

class Op:
    def __init__(s, kind, n, stride, srd, soff, t0, nt, share=None, perm=False):
        s.perm = perm
        s.kind, s.n, s.stride, s.srd, s.soff, s.t0, s.nt, s.share = kind, n, stride, srd, soff, t0, nt, share
        s.bytes = n * 128
        s.ni = s.bytes // 1024 // 4
        assert s.bytes % 4096 == 0

def gemm_setup(ops, vb, swave, T):
    lane, t1, t2, t3, t4, t5 = T, T+1, T+2, T+3, T+4, T+5
    e(f"v_and_b32 v{lane}, 63, v0")
    off = 0
    for o in ops:
        o.lds = off; off += o.bytes
        if o.share:
            o.dv, o.rv, o.nrv = o.share.dv, o.share.rv, o.share.nrv; continue
        if o.kind == 'k':
            o.dv = vb; vb += 1
            e(f"v_lshrrev_b32 v{t1}, 3, v0")
            e(f"v_bfe_u32 v{t2}, v{t1}, 1, 3"); e(f"v_and_b32 v{t3}, 7, v0"); e(f"v_xor_b32 v{t2}, v{t2}, v{t3}")
            e(f"v_mul_u32_u24 v{t1}, {o.stride}, v{t1}"); e(f"v_lshl_add_u32 v{o.dv}, v{t2}, 4, v{t1}")
            o.rv = vb; o.nrv = 2; vb += 2
            e(f"v_and_b32 v{t1}, 15, v0"); e(f"v_bfe_u32 v{t2}, v0, 4, 2"); e(f"v_bfe_u32 v{t3}, v0, 1, 3")
            e(f"v_xor_b32 v{t2}, v{t2}, v{t3}"); e(f"v_lshlrev_b32 v{t1}, 7, v{t1}")
            e(f"v_lshl_add_u32 v{o.rv}, v{t2}, 4, v{t1}")
            if not isinstance(o.t0, int):
                e(f"v_mov_b32 v{t1}, {o.t0}"); e(f"v_lshl_add_u32 v{o.rv}, v{t1}, 11, v{o.rv}")
            e(f"v_xor_b32 v{o.rv+1}, 64, v{o.rv}")
        else:
            RB = 2 * o.n; cpr = RB // 16
            o.dv = vb; vb += o.ni
            for i in range(o.ni):
                e(f"v_add_u32 v{t1}, {256*i}, v0")
                vdivmod(t2, t3, t1, cpr, 256 * o.ni)
                emit_f(t4, t2, RB, t5, o.perm)
                e(f"v_lshlrev_b32 v{t4}, 1, v{t4}"); e(f"v_xor_b32 v{t3}, v{t3}, v{t4}")
                e(f"v_mul_u32_u24 v{t2}, {o.stride}, v{t2}"); e(f"v_lshl_add_u32 v{o.dv+i}, v{t3}, 4, v{t2}")
            mask, _ = swz(RB)
            o.nrv = min(mask + 1, o.nt); o.rv = vb; vb += o.nrv
            e(f"v_bfe_u32 v{t1}, v0, 4, 2"); e(f"v_bfe_u32 v{t2}, v0, 2, 2")
            e(f"v_lshl_add_u32 v{t1}, v{t1}, {2 if o.perm else 3}, v{t2}")
            emit_f(t4, t1, RB, t5, o.perm)
            e(f"v_mul_u32_u24 v{t1}, {RB}, v{t1}"); e(f"v_and_b32 v{t2}, 3, v0")
            e(f"v_lshl_add_u32 v{t1}, v{t2}, 3, v{t1}")
            for j in range(o.nrv):
                if isinstance(o.t0, int): e(f"v_mov_b32 v{t2}, {o.t0 + j}")
                else: e(f"v_mov_b32 v{t2}, {o.t0}"); e(f"v_add_u32 v{t2}, {j}, v{t2}")
                e(f"v_xor_b32 v{t2}, v{t2}, v{t4}"); e(f"v_lshl_add_u32 v{o.rv+j}, v{t2}, 5, v{t1}")
    return vb, off

def gemm_dma(ops, stage_off, swl, stmp, aux=""):
    for o in ops:
        for i in range(o.ni):
            c = o.lds + i * 4096
            if isinstance(stage_off, int): e(f"s_add_u32 m0, s{swl}, {stage_off + c}")
            else: e(f"s_add_u32 s{stmp}, {stage_off}, {c}"); e(f"s_add_u32 m0, s{swl}, s{stmp}")
            if o.kind == 'k':
                e(f"s_add_u32 s{stmp}, s{o.soff}, {i*32*o.stride}")
                e(f"buffer_load_dwordx4 v{o.dv}, {sr(o.srd,4)}, s{stmp} offen lds {aux}")
            else:
                e("s_nop 0")
                e(f"buffer_load_dwordx4 v{o.dv+i}, {sr(o.srd,4)}, s{o.soff} offen lds {aux}")
        e(f"s_add_u32 s{o.soff}, s{o.soff}, {128 if o.kind=='k' else 64*o.stride}")

def frag_reads(o, T, kk, dst, base):
    t0 = o.t0 if isinstance(o.t0, int) else 0
    if o.kind == 'k':
        return [f"ds_read_b128 {vr(dst,4)}, v{o.rv+kk} offset:{base + o.lds + (t0+T)*2048}"]
    RB = 2 * o.n
    j = T % o.nrv; hi = (T - j) * 32
    return [f"ds_read_b64_tr_b16 {vr(dst+2*hh,2)}, v{o.rv+j} offset:{base + o.lds + (32*kk+(16 if o.perm else 4)*hh)*RB + hi}" for hh in range(2)]

def gemm_compute(mf, base, fb, nbuf, extra=None):
    seq = [(kk,) + m for kk in range(2) for m in mf]
    need = []; last = {}
    for i, (kk, acc, a, ta, b, tb) in enumerate(seq):
        for key in ((a, ta, kk), (b, tb, kk)):
            if key not in last: need.append(key)
            last[key] = i
    free = list(range(nbuf)); slot = {}; done_at = {}; issued = 0; ni = 0
    def issue_some(maxn):
        nonlocal ni, issued
        n = 0
        while ni < len(need) and free and n < maxn:
            key = need[ni]; ni += 1; s = free.pop(0); slot[key] = s
            for ins in frag_reads(key[0], key[1], key[2], fb + 4 * s, base): e(ins); issued += 1
            done_at[key] = issued; n += 1
    waited = 0
    extra = list(extra or [])
    for i, (kk, acc, a, ta, b, tb) in enumerate(seq):
        ka, kb = (a, ta, kk), (b, tb, kk)
        while ka not in slot or kb not in slot: issue_some(1)
        if i == 0: issue_some(4)
        req = max(done_at[ka], done_at[kb])
        if req > waited:
            c = min(issued - req, 15); e(f"s_waitcnt lgkmcnt({c})"); waited = issued - c
        e(f"v_mfma_f32_16x16x32_bf16 {R(acc,4)}, {vr(fb+4*slot[ka],4)}, {vr(fb+4*slot[kb],4)}, {R(acc,4)}")
        for key in {ka, kb}:
            if last[key] == i: free.append(slot[key])
        issue_some(1)
        if extra:
            for x in extra.pop(0): e(x)
    for xs in extra:
        for x in xs: e(x)

def capture(fn):
    n = len(L); fn(); out = [x.strip() for x in L[n:]]; del L[n:]; return out

def gemm_loop(ops, mf, nk, ns, stage, fb, nbuf, swl, stmp, scnt, aux=""):
    npd = sum(o.ni for o in ops)
    rvs = sorted({o.rv + j for o in ops for j in range(o.nrv)})
    big = ns * stage > 65536
    for p in range(ns - 1): gemm_dma(ops, p * stage, swl, stmp, aux)
    def step(s, issue, pend):
        e(f"s_waitcnt vmcnt({pend*npd})"); e("s_barrier")
        ex = []
        if issue:
            ins = capture(lambda: gemm_dma(ops, ((s + ns - 1) % ns) * stage, swl, stmp, aux))
            cur = []
            for x in ins:
                cur.append(x)
                if x.startswith("buffer_load"): ex.append(cur); cur = []
            ex[-1] += cur
        gemm_compute(mf, 0 if big else s * stage, fb, nbuf, ex)
        if big:
            d = stage if s < ns - 1 else -(ns - 1) * stage
            for r in rvs: e(f"v_add_u32 v{r}, {d & 0xffffffff:#x}, v{r}")
    nmain = nk - (ns - 1)
    nloop = nmain // ns if scnt is not None else 0
    k = 0
    if nloop > 1:
        lp = uid("kl"); e(f"s_mov_b32 s{scnt}, {nloop}"); lab(lp)
        for s in range(ns): step(s, True, ns - 2)
        e(f"s_sub_u32 s{scnt}, s{scnt}, 1"); e(f"s_cmp_lg_u32 s{scnt}, 0"); e(f"s_cbranch_scc1 {lp}")
        k = nloop * ns
    while k < nk:
        step(k % ns, k < nmain, min(ns - 2, nk - 1 - k)); k += 1
    if big and nk % ns:
        for r in rvs: e(f"v_add_u32 v{r}, {(-(nk % ns) * stage) & 0xffffffff:#x}, v{r}")
def zero(b, n):
    for i in range(n):
        e(f"v_mov_b32 v{b+i}, 0" if b + i < 256 else f"v_accvgpr_write_b32 a{b+i-256}, 0")
```

```python
from common import *
LOG2E = 1.4426950408889634
import struct
def f2u(x): return "%#x" % struct.unpack("<I", struct.pack("<f", x))[0]
def guard(n):
    ex = uid("go"); e(f"s_cmp_lt_u32 s2, {n}"); e(f"s_cbranch_scc1 {ex}"); e("s_endpgm"); lab(ex)
def wave_id(sw, swl):
    e("v_lshrrev_b32 v1, 6, v0"); e("s_nop 0"); e(f"v_readfirstlane_b32 s{sw}, v1"); e(f"s_lshl_b32 s{swl}, s{sw}, 10")
def red16(op, v, t):
    for n in (8, 4, 2, 1):
        e("s_nop 1"); e(f"{op}_dpp v{v}, v{v}, v{v} row_ror:{n} row_mask:0xf bank_mask:0xf")
def xswap(kind, op, v, t):
    e(f"v_mov_b32 v{t}, v{v}"); e("s_nop 1"); e(f"v_permlane{kind}_swap_b32 v{v}, v{t}"); e("s_nop 0"); e(f"{op} v{v}, v{v}, v{t}")

def ln_body(ssrc, sdst, double):
    e("v_lshrrev_b32 v1, 5, v0"); e("s_lshl_b32 s3, s2, 3"); e("v_add_u32 v1, s3, v1")
    e("v_mul_u32_u24 v1, 1152, v1"); e("v_and_b32 v2, 31, v0"); e("v_lshl_add_u32 v1, v2, 2, v1")
    for i in range(9): e(f"buffer_load_dword v{10+i}, v1, {sr(ssrc,4)}, 0 offen offset:{128*i}")
    e("s_waitcnt vmcnt(0)")
    for i in range(9):
        e(f"v_lshlrev_b32 v{20+2*i}, 16, v{10+i}"); e(f"v_and_b32 v{21+2*i}, 0xffff0000, v{10+i}")
    e("v_add_f32 v3, v20, v21")
    for i in range(2, 18): e(f"v_add_f32 v3, v3, v{20+i}")
    red16("v_add_f32", 3, 4); xswap(16, "v_add_f32", 3, 4)
    e(f"v_mul_f32 v3, {f2u(1/576)}, v3")
    for i in range(18): e(f"v_sub_f32 v{20+i}, v{20+i}, v3")
    e("v_mul_f32 v3, v20, v20")
    for i in range(1, 18): e(f"v_fmac_f32 v3, v{20+i}, v{20+i}")
    red16("v_add_f32", 3, 4); xswap(16, "v_add_f32", 3, 4)
    e(f"v_mul_f32 v3, {f2u(1/576)}, v3"); e(f"v_add_f32 v4, {f2u(1e-5)}, v3"); e("v_rsq_f32 v4, v4"); e("s_nop 0")
    if double:
        e("v_mul_f32 v3, v3, v4"); e("v_mul_f32 v3, v3, v4"); e(f"v_add_f32 v3, {f2u(1e-5)}, v3")
        e("v_rsq_f32 v3, v3"); e("s_nop 0"); e("v_mul_f32 v4, v4, v3")
    for i in range(18): e(f"v_mul_f32 v{20+i}, v{20+i}, v4")
    for i in range(9):
        e(f"v_cvt_pk_bf16_f32 v{10+i}, v{20+2*i}, v{21+2*i}")
        e(f"buffer_store_dword v{10+i}, v1, {sr(sdst,4)}, 0 offen offset:{128*i}")

def k_init():
    kstart("init_kernel"); guard(256)
    e(f"s_load_dwordx2 s[4:5], s[0:1], {ARG['ws']}"); srd_arg(8, 'x'); srd_arg(12, 'mem0'); e("s_waitcnt lgkmcnt(0)")
    srd_ws(16, 'xn', 4); srd_ws(20, 'p1', 4); srd_ws(24, 'mh', 4); srd_ws(28, 'flg', 4); srd_ws(32, 'mh', 4)
    e("s_mov_b32 s34, 9216")
    e("s_lshl_b32 s3, s2, 8"); e("v_add_u32 v40, s3, v0"); e("v_lshlrev_b32 v41, 4, v40")
    e("v_and_b32 v42, 7, v40"); e("v_mul_u32_u24 v42, 1152, v42"); e("v_lshrrev_b32 v43, 3, v40"); e("v_lshl_add_u32 v42, v43, 4, v42")
    e("buffer_load_dwordx4 v[44:47], v42, s[12:15], 0 offen")
    for i in range(4): e(f"v_mov_b32 v{48+i}, -1"); e(f"v_mov_b32 v{52+i}, 0")
    e("s_mov_b32 s6, 1048576"); e("s_mov_b32 s7, 9216")
    e("buffer_store_dwordx4 v[48:51], v41, s[20:23], 0 offen"); e("buffer_store_dwordx4 v[48:51], v41, s[20:23], s6 offen")
    e("buffer_store_dwordx4 v[48:51], v41, s[24:27], s7 offen"); e("buffer_store_dwordx4 v[52:55], v41, s[28:31], 0 offen")
    ln_body(8, 16, False)
    e("buffer_store_dwordx4 v[44:47], v41, s[32:35], 0 offen")
    e("s_endpgm")
    return kdesc("init_kernel", 56, 56)

def k_ln2():
    kstart("ln2_kernel"); guard(256)
    e(f"s_load_dwordx2 s[4:5], s[0:1], {ARG['ws']}"); e("s_waitcnt lgkmcnt(0)")
    srd_ws(8, 'h', 4); srd_ws(16, 'hn', 4)
    ln_body(8, 16, True); e("s_endpgm")
    return kdesc("ln2_kernel", 40, 40)

def attn_body(sq, sk, sv, skm, so, stask, aux=""):
    Q, K, V, KM, VM, S, O = 8, 40, 72, 104, 120, 136, 8
    e("v_and_b32 v1, 63, v0"); e("v_lshlrev_b32 v2, 4, v1"); e(f"s_lshl_b32 s40, s{stask}, 13"); e("s_add_u32 s41, s40, 4096")
    for i in range(4):
        e(f"buffer_load_dwordx4 {vr(KM+4*i,4)}, v2, {sr(skm,4)}, s{40+i//2} offen offset:{(i%2)*2048} {aux}")
    for b, s in ((K, sk), (Q, sq)):
        for i in range(8): e(f"buffer_load_dwordx4 {vr(b+4*i,4)}, v2, {sr(s,4)}, s{40+i//4} offen offset:{(i%4)*1024} {aux}")
    for i in range(4):
        e(f"buffer_load_dwordx4 {vr(VM+4*i,4)}, v2, {sr(skm,4)}, s{40+i//2} offen offset:{(i%2)*2048+1024} {aux}")
    for i in range(8): e(f"buffer_load_dwordx4 {vr(V+4*i,4)}, v2, {sr(sv,4)}, s{40+i//4} offen offset:{(i%4)*1024} {aux}")
    e("v_and_b32 v3, 15, v1"); e("v_lshrrev_b32 v4, 4, v1"); e("v_lshlrev_b32 v5, 2, v4"); e("v_sub_u32 v5, v3, v5")
    e(f"s_lshr_b32 s42, s{stask}, 5"); e(f"s_and_b32 s43, s{stask}, 31"); e("s_lshl_b32 s42, s42, 18"); e("s_lshl_b32 s43, s43, 8"); e("s_add_u32 s42, s42, s43")
    e("v_lshlrev_b32 v6, 13, v3"); e("v_lshl_add_u32 v6, v4, 4, v6"); e("s_add_u32 s43, s42, 131072")
    e("s_waitcnt vmcnt(12)")
    tiles = [(0, 'm'), (0, 0), (1, 'm'), (1, 0), (1, 1)]
    for ec in range(4):
        for n, (tt, kt) in enumerate(tiles):
            a = KM + 4 * ec if kt == 'm' else K + 4 * (2 * ec + kt)
            e(f"v_mfma_f32_16x16x32_bf16 {vr(S+4*n,4)}, {vr(a,4)}, {vr(Q+4*(2*ec+tt),4)}, {vr(S+4*n,4) if ec else 0}")
    e("s_nop 7"); e(f"v_mov_b32 v7, {f2u(-1e30)}")
    for i in range(4):
        e(f"v_cmp_le_i32 vcc, {i}, v5"); e("s_nop 1")
        for n in (1, 4): e(f"v_cndmask_b32 v{S+4*n+i}, v7, v{S+4*n+i}, vcc")
    e(f"s_mov_b32 s44, {f2u(128**-0.5*LOG2E)}")
    P = 160
    for tt, rs in ((0, list(range(S, S+8))), (1, list(range(S+8, S+20)))):
        m, t, l = 156, 157, 158
        e(f"v_max_f32 v{m}, v{rs[0]}, v{rs[1]}")
        for i in range(2, len(rs), 2): e(f"v_max3_f32 v{m}, v{m}, v{rs[i]}, v{rs[i+1]}")
        xswap(32, "v_max_f32", m, t); xswap(16, "v_max_f32", m, t)
        e(f"v_mul_f32 v{m}, s44, v{m}")
        for r in rs: e(f"v_fma_f32 v{r}, v{r}, s44, -v{m}")
        for r in rs: e(f"v_exp_f32 v{r}, v{r}")
        e(f"v_add_f32 v{l}, v{rs[0]}, v{rs[1]}"); e(f"v_add_f32 v{l}, v{l}, v{rs[2]}"); e(f"v_add_f32 v{l}, v{l}, v{rs[3]}")
        e(f"v_mul_f32 v{l}, 0.5, v{l}")
        for r in rs[4:]: e(f"v_add_f32 v{l}, v{l}, v{r}")
        xswap(32, "v_add_f32", l, t); xswap(16, "v_add_f32", l, t)
        e(f"v_rcp_f32 v{l}, v{l}"); e("s_nop 0")
        for r in rs: e(f"v_mul_f32 v{r}, v{r}, v{l}")
        p = P + 8 * tt
        e(f"v_cvt_pk_bf16_f32 v{p+4}, v{rs[0]}, v{rs[1]}"); e(f"v_cvt_pk_bf16_f32 v{p+5}, v{rs[2]}, v{rs[3]}")
        for i in range(4):
            if 4 + 2 * i < len(rs): e(f"v_cvt_pk_bf16_f32 v{p+i}, v{rs[4+2*i]}, v{rs[5+2*i]}")
            else: e(f"v_mov_b32 v{p+i}, 0")
    e("s_waitcnt vmcnt(0)"); e("s_nop 1")
    for tt in range(2):
        for et in range(8):
            o = O + 4 * (8 * tt + et)
            e(f"v_mfma_f32_16x16x32_bf16 {vr(o,4)}, {vr(V+4*et,4)}, {vr(P+8*tt,4)}, 0")
        for et in range(8):
            o = O + 4 * (8 * tt + et)
            e(f"v_mfma_f32_16x16x16_bf16 {vr(o,4)}, {vr(VM+4*(et%4)+2*(et//4),2)}, {vr(P+8*tt+4,2)}, {vr(o,4)}")
    e("s_nop 7")
    for tt in range(2):
        for m in range(4):
            o = O + 4 * (8 * tt + 2 * m); d = 72 + 16 * tt + 4 * m
            for i in range(4): e(f"v_cvt_pk_bf16_f32 v{d+i}, v{o+2*i}, v{o+2*i+1}")
            e(f"buffer_store_dwordx4 {vr(d,4)}, v6, {sr(so,4)}, s{42+tt} offen offset:{64*m} {aux}")

def k_attn():
    kstart("attn_kernel"); guard(512)
    e(f"s_load_dwordx2 s[4:5], s[0:1], {ARG['ws']}"); wave_id(6, 7); e("s_waitcnt lgkmcnt(0)")
    for i, n in enumerate(('qf', 'kf', 'vf', 'kvm', 'o')): srd_ws(8 + 4 * i, n, 4)
    e("s_lshl_b32 s3, s2, 2"); e("s_add_u32 s3, s3, s6")
    attn_body(8, 12, 16, 20, 24, 3); e("s_endpgm")
    return kdesc("attn_kernel", 176, 176)

def gemm_kernel(name, which):
    n_wg = {'B': 192, 'C': 216, 'D': 192}[which]
    kstart(name); guard(n_wg)
    e(f"s_load_dwordx2 s[4:5], s[0:1], {ARG['ws']}")
    if which == 'B': srd_arg(12, 'wo'); srd_arg(16, 'x')
    if which == 'C': srd_arg(12, 'w1'); srd_arg(16, 'b1')
    if which == 'D': srd_arg(12, 'w2'); srd_arg(24, 'b2'); srd_arg(20, 'out')
    wave_id(6, 7); e("s_waitcnt lgkmcnt(0)")
    e("s_and_b32 s30, s2, 7"); e(f"s_mul_i32 s30, s30, {n_wg//8}"); e("s_lshr_b32 s31, s2, 3"); e("s_add_u32 s30, s30, s31")
    sdivmod(31, 32, 30, 6, 256)
    e("s_and_b32 s33, s6, 1"); e("s_lshr_b32 s34, s6, 1"); e("s_mul_i32 s35, s33, 3")
    if which == 'B':
        srd_ws(8, 'o', 4); srd_ws(20, 'h', 4); e("s_lshl_b32 s36, s34, 1")
        X = Op('t', 96, 1152, 12, 40, "s35", 3, perm=True); Y = Op('k', 64, 8192, 8, 41, "s36", 2)
        e("s_mul_i32 s40, s32, 192"); e("s_lshl_b32 s41, s31, 19"); nk, ns = 64, 4
    if which == 'C':
        srd_ws(8, 'hn', 4); srd_ws(20, 'u', 4); e("s_lshl_b32 s36, s34, 2")
        X = Op('t', 96, 1152, 8, 40, "s35", 3); Y = Op('t', 128, 9216, 12, 41, "s36", 4)
        e("s_mul_i32 s40, s32, 192"); e("s_lshl_b32 s41, s31, 8"); nk, ns = 32, 4
    if which == 'D':
        srd_ws(8, 'u', 4); srd_ws(16, 'h', 4); e("s_lshl_b32 s36, s34, 1")
        X = Op('k', 96, 9216, 8, 40, "s35", 3); Y = Op('t', 64, 4096, 12, 41, "s36", 2, perm=True)
        e(f"s_mul_i32 s40, s32, {96*9216}"); e("s_lshl_b32 s41, s31, 7"); nk, ns = 72, 4
    vb, stage = gemm_setup([X, Y], 8, 6, 2)
    ACC = 32; assert vb <= ACC
    na = X.nt * Y.nt; FB = ACC + 4 * na
    zero(ACC, 4 * na)
    if which == 'C': mf = [(ACC + 4 * (i * Y.nt + j), Y, j, X, i) for i in range(X.nt) for j in range(Y.nt)]
    else: mf = [(ACC + 4 * (i * Y.nt + j), X, i, Y, j) for i in range(X.nt) for j in range(Y.nt)]
    nbuf = 12
    gemm_loop([X, Y], mf, nk, ns, stage, FB, nbuf, 7, 38, 39)
    e("v_and_b32 v2, 15, v0"); e("v_bfe_u32 v3, v0, 4, 2")
    T = FB
    if which in 'BD':
        e("s_lshl_b32 s42, s31, 2"); e("s_add_u32 s42, s42, s36"); e("s_lshl_b32 s42, s42, 4")
        e("v_add_u32 v4, s42, v2"); e("v_mul_u32_u24 v5, 1152, v4"); e("v_lshl_add_u32 v5, v3, 3, v5")
        e("s_mul_i32 s43, s32, 192"); e("s_lshl_b32 s44, s35, 5"); e("s_add_u32 s43, s43, s44"); e(f"s_add_u32 s44, s43, {16*1152}")
        for i in range(3):
            for j in range(2): e(f"buffer_load_dwordx2 {vr(T+2*(i*2+j),2)}, v5, s[16:19], s{43+j} offen offset:{32*i}")
        if which == 'D':
            e("v_lshlrev_b32 v4, 1, v4")
            for j in range(2): e(f"buffer_load_ushort v{6+j}, v4, s[24:27], 0 offen offset:{32*j}")
        e("s_waitcnt vmcnt(0)")
        if which == 'D':
            for j in range(2): e(f"v_lshlrev_b32 v{6+j}, 16, v{6+j}")
        for i in range(3):
            for j in range(2):
                a = ACC + 4 * (i * 2 + j); t = T + 2 * (i * 2 + j)
                for q in range(4):
                    if which == 'D': e(f"v_add_f32 v{a+q}, v{a+q}, v{6+j}")
                    e(f"v_lshlrev_b32 v1, 16, v{t+q//2}" if q % 2 == 0 else f"v_and_b32 v1, 0xffff0000, v{t+q//2}")
                    e(f"v_add_f32 v{a+q}, v{a+q}, v1")
                e(f"v_cvt_pk_bf16_f32 v{a}, v{a}, v{a+1}"); e(f"v_cvt_pk_bf16_f32 v{a+1}, v{a+2}, v{a+3}")
                e(f"buffer_store_dwordx2 {vr(a,2)}, v5, s[20:23], s{43+j} offen offset:{32*i}")
    else:
        e("s_lshl_b32 s42, s31, 3"); e("s_add_u32 s42, s42, s36"); e("s_lshl_b32 s42, s42, 5")
        e("v_lshlrev_b32 v4, 3, v3")
        for j in range(4): e(f"buffer_load_dwordx2 {vr(T+2*j,2)}, v4, s[16:19], s42 offen offset:{32*j}")
        e("s_mul_i32 s43, s32, 6"); e("s_add_u32 s43, s43, s35"); e(f"s_mul_i32 s43, s43, {16*9216}"); e("s_add_u32 s43, s43, s42")
        e("v_mul_u32_u24 v5, 9216, v2"); e("v_lshl_add_u32 v5, v3, 4, v5")
        e("s_waitcnt vmcnt(0)")
        for j in range(4):
            for q in range(4):
                e(f"v_lshlrev_b32 v{T+8+4*j+q}, 16, v{T+2*j+q//2}" if q % 2 == 0 else f"v_and_b32 v{T+8+4*j+q}, 0xffff0000, v{T+2*j+q//2}")
        c0 = -2 * 0.7978845608028654 * LOG2E
        e(f"s_mov_b32 s45, {f2u(c0*0.044715)}"); e(f"v_mov_b32 v6, {f2u(c0)}")
        for i in range(3):
            for j in range(4):
                a = ACC + 4 * (i * 4 + j); t = T + 24
                for q in range(4): e(f"v_add_f32 v{a+q}, v{a+q}, v{T+8+4*j+q}")
                for q in range(4): e(f"v_mul_f32 v{t+q}, v{a+q}, v{a+q}")
                for q in range(4): e(f"v_fma_f32 v{t+q}, v{t+q}, s45, v6")
                for q in range(4): e(f"v_mul_f32 v{t+q}, v{t+q}, v{a+q}")
                for q in range(4): e(f"v_exp_f32 v{t+q}, v{t+q}")
                for q in range(4): e(f"v_add_f32 v{t+q}, 1.0, v{t+q}")
                for q in range(4): e(f"v_rcp_f32 v{t+q}, v{t+q}")
                for q in range(4): e(f"v_mul_f32 v{a+q}, v{a+q}, v{t+q}")
            for m in range(2):
                a = ACC + 4 * (i * 4 + 2 * m)
                for q in range(4): e(f"v_cvt_pk_bf16_f32 v{a+q}, v{a+2*q}, v{a+2*q+1}")
                e(f"buffer_store_dwordx4 {vr(a,4)}, v5, s[20:23], s43 offen offset:{64*m}")
            e(f"s_add_u32 s43, s43, {16*9216}")
    e("s_endpgm")
    nv = (FB + 4 * nbuf + 7) // 8 * 8
    return kdesc(name, nv, nv), n_wg, ns * stage
```

```python
import sys
from common import *
import simple, chain
NAME = "sequential_preLN__memory_aug_recurrent_mem_tr__mixer_token_mlp__prompt"
D = []; la = []
D.append(simple.k_init()); la.append(("init_kernel", 256, 0))
D.append(chain.k_main()); la.append(("main_kernel", 256, chain.LDS_A))
D.append(simple.k_attn()); la.append(("attn_kernel", 512, 0))
d, n, l = simple.gemm_kernel("oproj_kernel", 'B'); D.append(d); la.append(("oproj_kernel", n, l))
D.append(simple.k_ln2()); la.append(("ln2_kernel", 256, 0))
d, n, l = simple.gemm_kernel("mlp1_kernel", 'C'); D.append(d); la.append(("mlp1_kernel", n, l))
d, n, l = simple.gemm_kernel("mlp2_kernel", 'D'); D.append(d); la.append(("mlp2_kernel", n, l))
ref = open(f"cdna_kernels/{NAME}.s.ref").read().split("\n")
hdr = [x for x in ref if x.startswith(";") and "@launch" not in x and "Override" not in x and "grid=ceil" not in x]
hdr += [f"; @launch kernel={k} grid=({g},1,1) block=(256,1,1) lds={l}" for k, g, l in la]
out = "\n".join(hdr) + '\n.amdgcn_target "amdgcn-amd-amdhsa--gfx950"\n.text\n' + "\n".join(L) + '\n.section .rodata,"a"\n' + "\n".join(D) + "\n"
open(sys.argv[1] if len(sys.argv) > 1 else f"cdna_kernels/{NAME}.s", "w").write(out)
import json; json.dump(WS, open("ws.json", "w"))
```

```python
from common import *
from simple import *
import os
PROF = int(os.environ.get('PROF', 0))
_st = [0]
def stamp():
    if PROF:
        e(f's_memtime s[{8+2*_st[0]}:{9+2*_st[0]}]'); _st[0] += 1
X = os.environ.get('X', '')
MI, SREG, WB = 0, 9216, 15360
WV_IMG, WO_IMG = WB, WB + 73728
LDS_A = WB + 147456
def wop(i):
    return 256 + 8 * i if i < 32 else 80 + 8 * (i - 32)
WQ = lambda j, t: wop(2 * j + t)
WK = lambda j, t: wop(18 + 2 * j + t)
WVA = lambda j: wop(36 + j)
WO0 = lambda i: wop(45 + i)
class DS:
    def __init__(s): s.n = 0; s.tag = {}; s.w = 0
    def op(s, ins, tag=None):
        e(ins); s.n += 1
        if tag is not None: s.tag[tag] = s.n
    def need(s, tag):
        r = s.tag[tag]
        if r > s.w:
            c = min(s.n - r, 15); e(f"s_waitcnt lgkmcnt({c})"); s.w = s.n - c
    def drain(s): e("s_waitcnt lgkmcnt(0)"); s.w = s.n
def smf(d, a, b): e(f"v_smfmac_f32_16x16x64_bf16 {vr(d,4)}, {vr(a,4)}, {R(b,8)}, v1")
def cvt(d, a, n):
    for i in range(n): e(f"v_cvt_pk_bf16_f32 v{d+i}, v{a+2*i}, v{a+2*i+1}")
SW, SWL, SH = 6, 7, 3
S_WQ, S_WK, S_WV, S_WO = 8, 12, 16, 20
S_XN, S_QF, S_KF, S_VF, S_FLG = 24, 28, 32, 36, 48
S_P1, S_MH, S_KVM = 52, 56, 60
TMO = 64; STEP = 65

def roles():
    e("s_getreg_b32 s70, hwreg(HW_REG_XCC_ID, 0, 4)"); e("s_and_b32 s70, s70, 7")
    e(f"s_cmp_lg_u32 s{SW}, 0"); e("s_cbranch_scc1 role_wait")
    e("s_lshl_b32 s71, s70, 2"); e("v_mov_b32 v2, s71"); e("v_mov_b32 v3, 1"); e("s_mov_b64 exec, 1")
    e("buffer_atomic_add v3, v2, s[72:75], 0 offen sc0"); e("s_waitcnt vmcnt(0)"); e("s_mov_b64 exec, -1")
    e("v_readfirstlane_b32 s71, v3"); e("v_lshlrev_b32 v2, 2, v0"); e("s_mov_b32 s76, 200000")
    lab("role_poll")
    e("buffer_load_dword v3, v2, s[72:75], 0 offen sc1"); e("s_waitcnt vmcnt(0)")
    for i in range(8): e(f"v_readlane_b32 s{80+i}, v3, {i}")
    e("s_mov_b32 s77, 0")
    for i in range(8): e(f"s_add_u32 s77, s77, s{80+i}")
    e("s_cmp_eq_u32 s77, 256"); e("s_cbranch_scc1 role_calc")
    e("s_sub_u32 s76, s76, 1"); e("s_cmp_lg_u32 s76, 0"); e("s_cbranch_scc1 role_poll")
    e("s_mov_b32 s77, -1"); e("s_branch role_pub")
    lab("role_calc")
    e("s_mov_b32 s78, 7"); e("s_mov_b32 s77, s71")
    for i in range(7, -1, -1):
        e(f"s_cmp_ge_u32 s{80+i}, 32"); e(f"s_cselect_b32 s78, {i}, s78")
        e(f"s_cmp_gt_u32 s70, {i}"); e(f"s_cselect_b32 s79, s{80+i}, 0"); e("s_add_u32 s77, s77, s79")
    e("s_cmp_ge_u32 s70, s78"); e("s_cselect_b32 s79, 32, 0"); e("s_sub_u32 s77, s77, s79")
    e("s_cmp_lg_u32 s70, s78"); e("s_cbranch_scc1 role_pub")
    e("s_cmp_ge_u32 s71, 32"); e("s_cbranch_scc1 role_pub")
    e("s_add_u32 s77, s71, 0x1000")
    lab("role_pub")
    e("v_mov_b32 v2, 0"); e("v_mov_b32 v3, s77"); e("ds_write_b32 v2, v3"); e("s_waitcnt lgkmcnt(0)")
    lab("role_wait")
    e("s_barrier"); e("v_mov_b32 v2, 0"); e("ds_read_b32 v3, v2"); e("s_waitcnt lgkmcnt(0)")
    e(f"v_readfirstlane_b32 s{SH}, v3"); e("s_barrier")
    e(f"s_cmp_eq_u32 s{SH}, -1"); e("s_cbranch_scc0 role_ok"); e("s_endpgm"); lab("role_ok")

def worker():
    e(f"s_lshl_b32 s66, s{SW}, 1")
    X = Op('k', 128, 1152, S_XN, 67, "s66", 2)
    Yq = Op('t', 128, 8192, S_WQ, 68, 0, 8); Yk = Op('t', 128, 8192, S_WK, 69, 0, 8, share=Yq); Yv = Op('t', 128, 8192, S_WV, 70, 0, 8, share=Yq)
    ops = [X, Yq, Yk, Yv]
    vb, stage = gemm_setup(ops, 8, SW, 2); assert vb <= 30 and stage == 65536
    e("v_and_b32 v30, 63, v0"); e("v_lshlrev_b32 v30, 4, v30")
    sdivmod(71, 72, SH, 7, 256)
    lab("wk_task")
    e(f"s_mul_i32 s67, s72, {128*1152}"); e("s_lshl_b32 s68, s71, 8"); e("s_mov_b32 s69, s68"); e("s_mov_b32 s70, s68")
    zero(256, 192)
    acc = lambda m, et, tt: 256 + 4 * ((m * 8 + et) * 2 + tt)
    mf = []
    for m, Y in enumerate((Yq, Yk, Yv)):
        for et in range(8):
            for tt in range(2): mf.append((acc(m, et, tt), Y, et, X, tt) if m < 2 else (acc(m, et, tt), X, tt, Y, et))
    gemm_loop(ops, mf, 9, 2, stage, 32, 12, SWL, 73, 74)
    e(f"s_lshl_b32 s75, s72, 2"); e(f"s_add_u32 s75, s75, s{SW}"); e("s_lshl_b32 s75, s75, 5"); e("s_add_u32 s75, s75, s71")
    e("s_lshl_b32 s75, s75, 13"); e("s_add_u32 s76, s75, 4096"); e("s_nop 7")
    n = 0
    for m, srd in ((1, S_KF), (2, S_VF), (0, S_QF)):
        for f in range(8):
            a0, a1 = (acc(m, f // 2 * 2, f % 2), acc(m, f // 2 * 2 + 1, f % 2)) if m < 2 else (acc(m, f, 0), acc(m, f, 1))
            t = 32 + 8 * (n % 16); n += 1
            for i in range(4): e(f"v_accvgpr_read_b32 v{t+i}, a{a0-256+i}"); e(f"v_accvgpr_read_b32 v{t+4+i}, a{a1-256+i}")
            cvt(t, t, 4)
            e(f"buffer_store_dwordx4 {vr(t,4)}, v30, {sr(srd,4)}, s{75+f//4} offen offset:{(f%4)*1024} sc1")
    e("s_waitcnt vmcnt(0)"); e("s_barrier")
    e("s_lshl_b32 s75, s72, 5"); e("s_add_u32 s75, s75, s71"); e("s_lshl_b32 s75, s75, 2")
    e(f"s_cmp_lg_u32 s{SW}, 0"); e("s_cbranch_scc1 wk_nof")
    e("v_mov_b32 v2, 0"); e("v_mov_b32 v3, 1"); e("s_mov_b64 exec, 1")
    e(f"buffer_store_dword v3, v2, {sr(S_FLG,4)}, s75 offen sc1"); e("s_mov_b64 exec, -1")
    lab("wk_nof")
    e("s_add_u32 s72, s72, 7"); e("s_cmp_lt_u32 s72, 16"); e("s_cbranch_scc1 wk_task")
    e("s_endpgm")

def poll_tmo(again, out):
    e(f"s_cmp_eq_u32 s{TMO}, 0"); e(f"s_cbranch_scc1 {out}"); e(f"s_sub_u32 s{TMO}, s{TMO}, 1"); e(f"s_branch {again}")

def chain_prologue():
    e("v_and_b32 v12, 63, v0"); e("v_lshrrev_b32 v13, 4, v12"); e("v_and_b32 v14, 15, v12")
    e(f"s_and_b32 s66, s{SW}, 1"); e(f"s_lshr_b32 s67, s{SW}, 1")
    e("s_lshl_b32 s68, s67, 5"); e("s_lshl_b32 s69, s66, 1"); e("s_add_u32 s68, s68, s69")
    e("v_lshrrev_b32 v15, 1, v13"); e("v_and_b32 v16, 1, v13"); e("v_lshl_add_u32 v15, v15, 3, v16"); e("v_add_u32 v15, s68, v15")
    e(f"s_lshl_b32 s69, s{SH}, 8")
    for p in range(2):
        e(f"v_add_u32 v16, {4*p}, v13"); e("v_lshlrev_b32 v16, 1, v16"); e("v_xor_b32 v16, v16, v14")
        e(f"v_add_u32 v17, {4*p}, v15"); e("v_lshlrev_b32 v17, 13, v17"); e(f"v_lshl_add_u32 v{20+p}, v16, 4, v17"); e(f"v_add_u32 v{20+p}, s69, v{20+p}")
    e("v_bfe_u32 v15, v12, 4, 1"); e("v_bfe_u32 v16, v12, 3, 1"); e("v_lshl_add_u32 v15, v15, 3, v16"); e("v_lshrrev_b32 v16, 5, v12")
    e("v_lshl_add_u32 v15, v16, 2, v15"); e("v_add_u32 v15, s68, v15"); e("v_lshlrev_b32 v15, 13, v15")
    e("v_and_b32 v16, 7, v12"); e("v_lshlrev_b32 v17, 1, v13"); e("v_xor_b32 v16, v16, v17")
    e("v_lshl_add_u32 v22, v16, 4, v15"); e("v_add_u32 v22, s69, v22")
    e("s_lshl_b32 s68, s67, 3"); e("s_lshl_b32 s70, s66, 1"); e("s_add_u32 s68, s68, s70")
    e(f"s_mul_i32 s70, s{SH}, 147456")
    for i in range(18):
        e(f"v_add_u32 v15, {64*i}, v12"); vdivmod(16, 17, 15, 72, 1152)
        e("v_bfe_u32 v18, v16, 1, 2"); e("v_lshlrev_b32 v18, 1, v18"); e("v_xor_b32 v17, v17, v18")
        e("v_bfe_u32 v18, v16, 2, 1"); e("v_lshlrev_b32 v15, 6, v18"); e("v_bfe_u32 v18, v16, 1, 1"); e("v_lshl_add_u32 v15, v18, 4, v15")
        e("v_bfe_u32 v18, v16, 3, 1"); e("v_lshl_add_u32 v15, v18, 2, v15"); e("v_and_b32 v18, 1, v16"); e("v_add3_u32 v15, v15, v18, s68")
        e("v_mul_u32_u24 v15, 1152, v15"); e(f"v_lshl_add_u32 v{24+i}, v17, 4, v15"); e(f"v_add_u32 v{24+i}, s70, v{24+i}")
    e("v_lshrrev_b32 v15, 2, v12"); e("v_and_b32 v16, 3, v12"); e("v_lshlrev_b32 v16, 3, v16")
    e("v_and_b32 v17, 7, v15"); e(f"s_lshl_b32 s68, s{SW}, 1")
    for t in range(2):
        e(f"s_add_u32 s71, s68, {t}"); e("v_xor_b32 v18, s71, v17"); e("v_lshl_add_u32 v18, v18, 5, v16")
        e(f"v_lshl_add_u32 v{42+t}, v15, 8, v18"); e(f"v_add_u32 v{42+t}, {WB}, v{42+t}")
    e("v_bfe_u32 v17, v15, 1, 2"); e(f"v_xor_b32 v17, s{SW}, v17"); e("v_lshl_add_u32 v17, v17, 5, v16")
    e("v_lshl_add_u32 v4, v15, 7, v17"); e(f"v_add_u32 v4, {WV_IMG}, v4")
    e("v_mul_u32_u24 v5, 1152, v15"); e("v_add_u32 v5, v5, v17"); e(f"v_add_u32 v5, {WO_IMG}, v5")
    def dma(v, srd, so, lds):
        e(f"s_mov_b32 s71, {so}"); e(f"s_add_u32 m0, s72, {lds}"); e("s_nop 0"); e(f"buffer_load_dwordx4 v{v}, {sr(srd,4)}, s71 offen lds")
    def qk_dma(srd):
        e(f"s_lshl_b32 s72, s{SW}, 12")
        for j in range(9):
            for g in range(4): dma(20 + (g & 1), srd, (64 * j + 16 * (g >> 1)) * 8192, WB + j * 16384 + g * 1024)
    def vo_dma(half):
        e(f"s_lshl_b32 s72, s{SW}, 11")
        for j in range(9):
            for gp in range(2): dma(22, S_WV, (64 * j + 16 * gp) * 8192 + 128 * half, WV_IMG + j * 8192 + gp * 1024)
        e(f"s_mul_i32 s72, s{SW}, 18432")
        for i in range(18): dma(24 + i, S_WO, 32 * half * 1152, WO_IMG + i * 1024)
    def sync(): e("s_waitcnt vmcnt(0) lgkmcnt(0)"); e("s_barrier")
    for srd, W in ((S_WQ, WQ), (S_WK, WK)):
        qk_dma(srd); sync()
        for t in range(2):
            for j in range(9):
                if j % 4 == 0: e(f"v_add_u32 v11, {j*16384}, v{42+t}")
                for m in range(4): e(f"ds_read_b64_tr_b16 {R(W(j,t)+2*m,2)}, v11 offset:{(j%4)*16384+m*4096}")
        sync()
    vo_dma(0); sync()
    e("v_add_u32 v11, 65536, v4")
    for j in range(9):
        for m in range(4):
            e(f"ds_read_b64_tr_b16 {R(WVA(j)+2*m,2)}, v{4 if j<8 else 11} offset:{(j%8)*8192+m*2048}")
            e(f"ds_read_b64_tr_b16 {R(WO0(j)+2*m,2)}, v5 offset:{m*18432+j*128}")
    sync(); vo_dma(1)
    e(f"s_mul_i32 s68, s{SW}, 18432"); e(f"s_add_u32 s68, s68, {WV_IMG}"); e("v_lshlrev_b32 v0, 4, v12"); e("v_add_u32 v6, s68, v0")
    e("v_add_u32 v7, 73728, v6"); e("v_mov_b32 v3, v11"); sync()
    for img in range(2):
        for j in range(9):
            for m in range(4):
                if img == 0: e(f"ds_read_b64_tr_b16 {vr(8+8*j+2*m,2)}, v{4 if j<8 else 3} offset:{(j%8)*8192+m*2048}")
                else: e(f"ds_read_b64_tr_b16 {vr(8+8*j+2*m,2)}, v5 offset:{m*18432+j*128}")
        sync()
        for j in range(18): e(f"ds_write_b128 v{6+img}, {vr(8+4*j,4)} offset:{1024*j}")
        e("s_waitcnt lgkmcnt(0)")
    e("v_mov_b32 v4, v6"); e("v_lshrrev_b32 v12, 4, v0"); e("v_lshrrev_b32 v13, 4, v12"); e("v_and_b32 v14, 15, v12")
    e("v_mov_b32 v1, 0x44444444"); e("v_mov_b32 v15, 0xeeeeeeee"); e("v_cmp_le_u32 vcc, 8, v14"); e("s_nop 1"); e("v_cndmask_b32 v1, v1, v15, vcc")
    e("v_and_b32 v20, 1, v13"); e("v_lshlrev_b32 v15, 2, v20"); e("v_and_b32 v16, 7, v14"); e("v_sub_u32 v15, v16, v15")
    for r in range(2):
        e(f"v_mov_b32 v{2+r}, 0")
        for hh, val in ((0, 0x3f80), (1, 0x3f800000)):
            e(f"v_mov_b32 v17, {val:#x}"); e(f"v_cmp_eq_u32 vcc, {2*r+hh}, v15"); e("s_nop 1"); e(f"v_cndmask_b32 v{2+r}, v{2+r}, v17, vcc")
    e("v_lshlrev_b32 v17, 4, v16"); e("v_lshl_add_u32 v17, v13, 7, v17")
    e(f"s_lshl_b32 s68, s{SW}, 9"); e("v_add_u32 v7, s68, v17")
    e("v_lshrrev_b32 v18, 3, v14"); e("v_lshl_add_u32 v8, v18, 9, v17")
    e("v_lshl_add_u32 v5, v18, 11, v17"); e("v_lshl_add_u32 v6, v18, 3, v17")
    e("v_lshrrev_b32 v19, 1, v13"); e("v_lshl_add_u32 v19, v19, 3, v20"); e(f"s_lshl_b32 s68, s{SW}, 1"); e("v_add_u32 v19, s68, v19")
    e("v_lshlrev_b32 v9, 12, v19"); e("v_lshl_add_u32 v9, v14, 4, v9")
    e(f"s_lshr_b32 s68, s{SH}, 1"); e("s_lshl_b32 s68, s68, 8"); e(f"s_and_b32 s69, s{SH}, 1"); e("s_lshl_b32 s69, s69, 3"); e("s_add_u32 s68, s68, s69")
    e("v_add_u32 v9, s68, v9")
    if 'd' in X:
        e("v_lshlrev_b32 v9, 12, v19"); e("v_lshl_add_u32 v9, v16, 4, v9"); e("v_lshl_add_u32 v9, v18, 3, v9"); e(f"s_lshl_b32 s68, s{SH}, 7"); e("v_add_u32 v9, s68, v9")
    e(f"s_lshl_b32 s73, s{SW}, 5"); e(f"s_add_u32 s73, s73, s{SH}")
    e("v_lshrrev_b32 v19, 1, v13"); e("v_lshlrev_b32 v10, 7, v19"); e("v_and_b32 v19, 3, v14"); e("v_lshl_add_u32 v10, v19, 4, v10"); e("v_lshl_add_u32 v10, v20, 3, v10")
    e("s_lshr_b32 s68, s73, 1"); e("s_lshl_b32 s68, s68, 8"); e("s_and_b32 s69, s73, 1"); e("s_lshl_b32 s69, s69, 6"); e("s_add_u32 s68, s68, s69")
    e("v_add_u32 v10, s68, v10"); e("s_lshl_b32 s74, s73, 12")

def wait_flag(stb):
    a, o = uid("fl"), uid("flo")
    e(f"s_lshl_b32 s71, s{stb}, 5"); e(f"s_add_u32 s71, s71, s{SH}"); e("s_lshl_b32 s71, s71, 2"); e("v_mov_b32 v28, 0")
    lab(a); e(f"buffer_load_dword v29, v28, {sr(S_FLG,4)}, s71 offen sc1"); e("s_waitcnt vmcnt(0)")
    e("v_cmp_ne_u32 vcc, 0, v29"); e(f"s_cbranch_vccnz {o}"); poll_tmo(a, o); lab(o)

def chain():
    chain_prologue()
    e(f"s_mov_b32 s{TMO}, 400000"); e(f"s_mov_b32 s{STEP}, 0")
    e("s_mov_b32 s75, 0"); e("s_mov_b32 s76, 9216"); e("s_mov_b32 s77, 18432")
    e("s_mov_b32 s78, 0")
    e(f"s_lshl_b32 s79, s{SH}, 13")
    e(f"s_mov_b32 s80, {f2u(128**-0.5*LOG2E)}"); e("s_mov_b32 s82, 0x00ff00ff"); e("s_mov_b32 s83, 0x00ff00ff")
    pass
    e("s_mov_b32 s86, 0"); wait_flag(86)
    KX, VX, AL, ACC, WL = 12, 20, 28, 40, 64
    z2 = lambda r: e(f"v_mov_b64 {vr(r,2)}, 0")
    e(f"s_lshl_b32 s46, s{SW}, 4"); e("s_mov_b64 s[84:85], 0xffff"); e("s_lshl_b64 s[84:85], s[84:85], s46")
    e("s_mov_b32 s46, 0x000f000f"); e("s_mov_b32 s47, 0x000f000f")
    if PROF:
        e("s_memtime s[40:41]")
        for i in range(12): e(f"s_mov_b32 s{90+i}, 0")
    lab("step"); stamp()
    e(f"s_add_u32 s87, s75, s{SWL}"); e("s_add_u32 s88, s87, 4096"); e("s_add_u32 s89, s75, 8192"); e(f"v_add_u32 v11, s{SWL}, v0")
    def mp_ld(b):
        for i in range(2): e(f"buffer_load_dwordx4 {vr(b+4*i,4)}, v0, {sr(S_MH,4)}, s{87+i} offen sc1")
        e("s_mov_b64 exec, s[84:85]"); e(f"buffer_load_dwordx4 {vr(b+8,4)}, v0, {sr(S_MH,4)}, s89 offen sc1"); e("s_mov_b64 exec, -1")
    def mp_ck(b):
        e("s_waitcnt vmcnt(3)")
        e(f"ds_write_b128 v11, {vr(b,4)}"); e(f"v_max3_u32 v36, v{b}, v{b+2}, v{b+4}"); e(f"ds_write_b128 v11, {vr(b+4,4)} offset:4096")
        e(f"v_max3_u32 v37, v{b+6}, v{b+8}, v{b+10}"); e("s_mov_b64 exec, s[84:85]"); e(f"ds_write_b128 v0, {vr(b+8,4)} offset:8192"); e("s_mov_b64 exec, -1")
        e("v_max_u32 v36, v36, v37"); e("v_cmp_eq_u32 vcc, -1, v36"); e("s_cbranch_vccz mpo")
    for r in (20, 22, 32, 34): z2(r)
    mp_ld(12)
    for r in range(ACC, ACC + 24, 2): z2(r)
    lab("mp"); mp_ld(24); mp_ck(12); e("s_waitcnt lgkmcnt(0)"); mp_ld(12); mp_ck(24); e("s_waitcnt lgkmcnt(0)"); poll_tmo("mp", "mpo"); lab("mpo"); stamp()
    e(f"s_lshl_b32 s87, s{SWL}, 1"); e("s_add_u32 s87, s87, s79"); e(f"s_add_u32 s88, s79, s{SWL}"); e("s_add_u32 s89, s88, 4096")
    e("s_waitcnt vmcnt(0) lgkmcnt(0)"); e("s_barrier")
    d = DS(); stamp()
    def rdA(j): d.op(f"ds_read_b128 {vr(AL+4*(j%3),4)}, v0 offset:{MI+j*1024}", ('a', j))
    def rdW(dst, adr, i, tag):
        for m in range(2): d.op(f"ds_read_b128 {vr(dst+4*m,4)}, v{adr} offset:{i*2048+m*1024}", tag)
    rdV = lambda j: rdW(WL + 8 * (j % 2), 4, j, ('wv', j))
    for j in range(3): rdA(j)
    rdV(0); rdV(1)
    for i in range(2): e(f"buffer_load_dwordx4 {vr(KX+4*i,4)}, v0, {sr(S_KF,4)}, s87 offen offset:{1024*i} sc1")
    for i in range(2): e(f"buffer_load_dwordx4 {vr(VX+4*i,4)}, v0, {sr(S_VF,4)}, s{88+i} offen sc1")
    def vA(j): smf(56, AL + 4 * (j % 3), WVA(j))
    def vB(j): d.need(('wv', j)); smf(60, AL + 4 * (j % 3), WL + 8 * (j % 2))
    for j in range(9):
        d.need(('a', j))
        for t in range(2): smf(ACC + 4 * t, AL + 4 * (j % 3), WQ(j, t))
        for t in range(2): smf(ACC + 8 + 4 * t, AL + 4 * (j % 3), WK(j, t))
        if j < 7:
            vA(j); vB(j); rdV(j + 2)
            if j + 3 < 9: rdA(j + 3)
    stamp()
    tr = lambda dd, a: e(f"v_mfma_f32_16x16x16_bf16 {vr(dd,4)}, {vr(a,2)}, v[2:3], 0")
    vA(7); vB(7); e("v_add_u32 v11, 73728, v4"); e(f"s_lshl_b32 s87, s{SWL}, 1"); e("s_add_u32 s87, s87, s79"); e("s_nop 1")
    WLS = (72, 64, 20)
    rdO = lambda i: rdW(WLS[i % 3], 11, i, ('wo', i))
    cvt(28, 40, 4); rdO(0); tr(40, 28); tr(44, 30)
    cvt(28, 48, 4); e("s_nop 1"); tr(48, 28); tr(52, 30)
    vA(8)
    cvt(28, 40, 4); e("s_nop 2"); cvt(40, 48, 4); e("s_waitcnt vmcnt(2)")
    for n, a in ((1, KX), (2, KX + 4), (0, 40)): e(f"v_mfma_f32_16x16x32_bf16 {vr(44+4*n,4)}, {vr(a,4)}, v[28:31], 0")
    vB(8); e(f"buffer_store_dwordx4 v[40:43], v0, {sr(S_KVM,4)}, {'s87' if 'a' not in X else 's74'} offen"); rdO(1); e("s_nop 2")
    for n in (1, 2, 0): d.op(f"ds_write_b128 v7, {vr(44+4*n,4)} offset:{SREG+2048*n}")
    stamp()
    e("v_mov_b32 v32, 0x3f803f80"); e("v_mov_b32 v33, 0x3f803f80"); e("v_mov_b64 v[34:35], v[32:33]"); e("v_mov_b32 v36, 0x3f003f00"); e("v_mov_b32 v37, 0x3f003f00")
    cvt(40, 56, 4)
    d.drain(); e("s_barrier"); stamp()
    SX = (44, 48, 52, 56); SM = (12, 14, 16, 18)
    for w in range(4):
        d.op(f"ds_read_b128 {vr(SX[w],4)}, v5 offset:{SREG+2048+512*w}"); d.op(f"ds_read_b64 {vr(SM[w],2)}, v6 offset:{SREG+512*w}", ('s', w))
    e(f"buffer_store_dwordx4 v[40:43], v0, {sr(S_KVM,4)}, {'s87' if 'a' not in X else 's74'} offen offset:1024")
    e(f"s_cmp_eq_u32 s{STEP}, 63"); e("s_cbranch_scc1 chain_end")
    z2(60); z2(62)
    pk = lambda op, dd, a, b: e(f"v_pk_{op}_f32 {vr(dd,2)}, {vr(a,2)}, {vr(b,2)}")
    d.need(('s', 1)); pk("add", 44, 44, 48); pk("add", 46, 46, 50); pk("add", 12, 12, 14)
    d.need(('s', 3)); pk("add", 52, 52, 56); pk("add", 54, 54, 58); pk("add", 16, 16, 18)
    pk("add", 44, 44, 52); pk("add", 46, 46, 54); pk("add", 48, 12, 16)
    e("v_max3_f32 v38, v44, v45, v46"); e("v_max3_f32 v39, v47, v48, v49"); e("v_max_f32 v38, v38, v39"); z2(52); z2(54)
    e("v_max_f32_dpp v38, v38, v38 row_ror:8 row_mask:0xf bank_mask:0xf"); e("v_mov_b32 v39, v38"); z2(56); z2(58)
    e("v_permlane32_swap_b32 v38, v39"); e("v_max_f32 v38, v38, v39"); e("v_mov_b32 v39, v38"); e("s_nop 1")
    e("v_permlane16_swap_b32 v38, v39"); e("v_max_f32 v38, v38, v39"); e("v_mul_f32 v38, s80, v38")
    for r in range(44, 50): e(f"v_fma_f32 v{r}, v{r}, s80, -v38")
    for r in range(44, 50): e(f"v_exp_f32 v{r}, v{r}")
    cvt(12, 44, 2); e("v_cvt_pk_bf16_f32 v16, v48, v49"); e("s_waitcnt vmcnt(2)")
    for dd, a in ((14, 12), (15, 13), (17, 16)): e(f"v_mov_b32_dpp v{dd}, v{a} row_ror:8 row_mask:0xf bank_mask:0xf")
    e("s_nop 0")
    for dd, a in ((28, 32), (44, VX), (48, VX + 4)): e(f"v_mfma_f32_16x16x32_bf16 {vr(dd,4)}, {vr(a,4)}, v[12:15], 0")
    for dd, a in ((28, 36), (44, 40), (48, 42)): e(f"v_mfma_f32_16x16x16_bf16 {vr(dd,4)}, {vr(a,2)}, v[16:17], {vr(dd,4)}")
    rdO(2); stamp()
    OA = [52, 56, 60, 12, 16, 36, 40, 44, 48]
    for r in (12, 14, 16, 18): z2(r)
    e("v_rcp_f32 v28, v28"); z2(36); e("v_mov_b32 v29, v28")
    for r in range(44, 52, 2): pk("mul", r, r, 28)
    cvt(32, 44, 4)
    e("s_mov_b64 exec, s[82:83]"); d.op("ds_write_b128 v7, v[32:35]"); e("s_mov_b64 exec, -1")
    for r in range(38, 52, 2): z2(r)
    d.drain(); e("s_barrier")
    for k in range(2): d.op(f"ds_read_b128 {vr(AL+4*k,4)}, v8 offset:{1024*k}", ('o', k))
    def fold(i):
        a, b = OA[i], OA[i + 1] if i < 8 else 28
        ins = []
        if i == 8: ins += [f"v_mov_b64 {vr(b,2)}, {vr(a,2)}", f"v_mov_b64 {vr(b+2,2)}, {vr(a+2,2)}", "s_nop 0"]
        ins += [f"v_permlane32_swap_b32 v{a+q}, v{b+q}" for q in range(4)]
        ins += [f"v_pk_add_f32 {vr(a+q,2)}, {vr(a+q,2)}, {vr(b+q,2)}" for q in (0, 2)]
        ins += [f"v_cvt_pk_bf16_f32 v{a}, v{a}, v{a+1}", f"v_cvt_pk_bf16_f32 v{a+1}, v{a+2}, v{a+3}"]
        if i == 8: ins += ["s_mov_b32 exec_hi, 0"]
        ins += [f"buffer_store_dwordx2 {vr(a,2)}, v9, {sr(S_P1,4)}, s{66+i//2} offen"]
        if i == 8: ins += ["s_mov_b64 exec, -1"]
        return ins
    for i in range(5): e(f"s_add_u32 s{66+i}, s78, {i*65536}")
    d.need(('o', 0)); stamp()
    for i in range(3): smf(OA[i], AL, WO0(i))
    d.need(('o', 1))
    pend = []
    def fill(n):
        for _ in range(n):
            if pend: e(pend.pop(0))
    for i in range(9):
        d.need(('wo', i)); smf(OA[i], AL + 4, WLS[i % 3])
        if i + 3 < 9: rdO(i + 3); smf(OA[i + 3], AL, WO0(i + 3))
        if i in (3, 5, 7): pend += fold(i - 3)
        fill(3)
    fill(99); pend += fold(6) + fold(8); fill(99)
    stamp()
    e("s_cmp_ge_u32 s73, 72"); e("s_cbranch_scc1 red_done")
    e("s_add_u32 s87, s78, s74")
    def rp_ld(b):
        for i in range(4): e(f"buffer_load_dwordx4 {vr(b+4*i,4)}, v0, {sr(S_P1,4)}, s87 offen offset:{1024*i} sc1")
    def rp_ck(b):
        for i in range(4):
            e(f"s_waitcnt vmcnt({7-i})"); e(f"v_mfma_f32_16x16x32_bf16 v[72:75], {vr(b+4*i,4)}, v[64:67], {'v[72:75]' if i else 0}")
        e("s_nop 6"); e("s_mov_b64 exec, s[46:47]"); e("v_cvt_pk_bf16_f32 v76, v72, v73"); e("v_cvt_pk_bf16_f32 v77, v74, v75")
        e("v_cmp_u_f32 vcc, v72, v73"); e("v_cmp_u_f32 s[88:89], v74, v75"); e("s_or_b64 vcc, vcc, s[88:89]"); e("s_cbranch_scc0 rpo"); e("s_mov_b64 exec, -1")
    for r in range(68, 72): e(f"v_mov_b32 v{r}, -1")
    e("v_bfe_u32 v76, v0, 4, 1"); e("v_lshlrev_b32 v76, 4, v76"); e("v_mov_b32 v64, 0x3f80"); e("v_lshlrev_b32 v64, v76, v64")
    e("v_bfe_i32 v76, v0, 5, 1"); e("v_and_b32 v65, v64, v76"); e("v_xor_b32 v64, v64, v65"); e("v_mov_b64 v[66:67], v[64:65]")
    if 'e' in X: e("s_waitcnt vmcnt(0)"); stamp()
    e(f"buffer_store_dwordx2 v[68:69], v10, {sr(S_MH,4)}, s77 offen")
    if 'b' in X: e("s_waitcnt vmcnt(0)")
    if 'c' in X: stamp()
    rp_ld(12)
    lab("rp"); rp_ld(28); rp_ck(12); rp_ld(12); rp_ck(28); poll_tmo("rp", "rpo"); lab("rpo"); stamp()
    e(f"buffer_store_dwordx2 v[76:77], v10, {sr(S_MH,4)}, s76 offen"); e("s_mov_b64 exec, -1"); e("s_waitcnt vmcnt(1)")
    for i in range(4): e(f"buffer_store_dwordx4 v[68:71], v0, {sr(S_P1,4)}, s87 offen offset:{1024*i}")
    lab("red_done"); e("s_barrier"); stamp()
    if PROF:
        e("s_waitcnt lgkmcnt(0)")
        for i in range(_st[0]-1): e(f"s_sub_u32 s87, s{10+2*i}, s{8+2*i}"); e(f"s_add_u32 s{90+i}, s{90+i}, s87")
    e(f"s_add_u32 s{STEP}, s{STEP}, 1"); e(f"s_xor_b32 s78, s78, {72*8192}"); e(f"s_add_u32 s79, s79, {32*8192}")
    e("s_mov_b32 s87, s75"); e("s_mov_b32 s75, s76"); e("s_mov_b32 s76, s77"); e("s_mov_b32 s77, s87")
    e(f"s_and_b32 s87, s{STEP}, 3"); e("s_cmp_lg_u32 s87, 0"); e("s_cbranch_scc1 step")
    e(f"s_lshr_b32 s86, s{STEP}, 2"); wait_flag(86); e("s_branch step")
    lab("chain_end")
    if PROF:
        e("s_memtime s[42:43]"); srd_arg(8, 'dbg'); e("s_waitcnt lgkmcnt(0)")
        e("s_sub_u32 s100, s40, s44"); e("s_sub_u32 s101, s42, s40")
        e(f"s_cmp_lg_u32 s{SH}, 0"); e("s_cbranch_scc1 prof_end"); e(f"s_mul_i32 s87, s{SW}, 48"); e("s_add_u32 s87, s87, 64"); e("v_mov_b32 v2, 0")
        for i in range(12): e(f"v_mov_b32 v3, s{90+i}"); e(f"buffer_store_dword v3, v2, s[8:11], s87 offen offset:{4*i}")
        lab("prof_end")
    e("s_endpgm")

def k_main():
    kstart("main_kernel"); guard(256)
    if PROF: e("s_memtime s[44:45]")
    e(f"s_load_dwordx2 s[4:5], s[0:1], {ARG['ws']}")
    for s, n in ((S_WQ, 'wq'), (S_WK, 'wk'), (S_WV, 'wv'), (S_WO, 'wo'), (72, 'dbg')): srd_arg(s, n)
    wave_id(SW, SWL); e("s_waitcnt lgkmcnt(0)")
    for s, n in ((S_XN, 'xn'), (S_QF, 'qf'), (S_KF, 'kf'), (S_VF, 'vf'), (S_FLG, 'flg'), (S_P1, 'p1'), (S_MH, 'mh'), (S_KVM, 'kvm')): srd_ws(s, n, 4)
    roles()
    e(f"s_cmp_ge_u32 s{SH}, 0x1000"); e("s_cbranch_scc1 is_chain")
    worker()
    lab("is_chain"); e(f"s_and_b32 s{SH}, s{SH}, 31")
    chain()
    return kdesc("main_kernel", 512, 256)
```

```python
from common import *
from simple import *
import os
PROF = int(os.environ.get('PROF', 0))
_st = [0]
def stamp():
    if PROF:
        e(f's_memtime s[{8+2*_st[0]}:{9+2*_st[0]}]'); _st[0] += 1
X = os.environ.get('X', '')
MI, SREG, WB = 0, 9216, 15360
WV_IMG, WO_IMG = WB, WB + 73728
LDS_A = WB + 147456
def wop(i):
    return 256 + 8 * i if i < 32 else 80 + 8 * (i - 32)
WQ = lambda j, t: wop(2 * j + t)
WK = lambda j, t: wop(18 + 2 * j + t)
WVA = lambda j: wop(36 + j)
WO0 = lambda i: wop(45 + i)
class DS:
    def __init__(s): s.n = 0; s.tag = {}; s.w = 0
    def op(s, ins, tag=None):
        e(ins); s.n += 1
        if tag is not None: s.tag[tag] = s.n
    def need(s, tag):
        r = s.tag[tag]
        if r > s.w:
            c = min(s.n - r, 15); e(f"s_waitcnt lgkmcnt({c})"); s.w = s.n - c
    def drain(s): e("s_waitcnt lgkmcnt(0)"); s.w = s.n
def smf(d, a, b): e(f"v_smfmac_f32_16x16x64_bf16 {vr(d,4)}, {vr(a,4)}, {R(b,8)}, v1")
def cvt(d, a, n):
    for i in range(n): e(f"v_cvt_pk_bf16_f32 v{d+i}, v{a+2*i}, v{a+2*i+1}")
SW, SWL, SH = 6, 7, 3
S_WQ, S_WK, S_WV, S_WO = 8, 12, 16, 20
S_XN, S_QF, S_KF, S_VF, S_FLG = 24, 28, 32, 36, 48
S_P1, S_MH, S_KVM = 52, 56, 60
TMO = 64; STEP = 65

def roles():
    e("s_getreg_b32 s70, hwreg(HW_REG_XCC_ID, 0, 4)"); e("s_and_b32 s70, s70, 7")
    e(f"s_cmp_lg_u32 s{SW}, 0"); e("s_cbranch_scc1 role_wait")
    e("s_lshl_b32 s71, s70, 2"); e("v_mov_b32 v2, s71"); e("v_mov_b32 v3, 1"); e("s_mov_b64 exec, 1")
    e("buffer_atomic_add v3, v2, s[72:75], 0 offen sc0"); e("s_waitcnt vmcnt(0)"); e("s_mov_b64 exec, -1")
    e("v_readfirstlane_b32 s71, v3"); e("v_lshlrev_b32 v2, 2, v0"); e("s_mov_b32 s76, 200000")
    lab("role_poll")
    e("buffer_load_dword v3, v2, s[72:75], 0 offen sc1"); e("s_waitcnt vmcnt(0)")
    for i in range(8): e(f"v_readlane_b32 s{80+i}, v3, {i}")
    e("s_mov_b32 s77, 0")
    for i in range(8): e(f"s_add_u32 s77, s77, s{80+i}")
    e("s_cmp_eq_u32 s77, 256"); e("s_cbranch_scc1 role_calc")
    e("s_sub_u32 s76, s76, 1"); e("s_cmp_lg_u32 s76, 0"); e("s_cbranch_scc1 role_poll")
    e("s_mov_b32 s77, -1"); e("s_branch role_pub")
    lab("role_calc")
    e("s_mov_b32 s78, 7"); e("s_mov_b32 s77, s71")
    for i in range(7, -1, -1):
        e(f"s_cmp_ge_u32 s{80+i}, 32"); e(f"s_cselect_b32 s78, {i}, s78")
        e(f"s_cmp_gt_u32 s70, {i}"); e(f"s_cselect_b32 s79, s{80+i}, 0"); e("s_add_u32 s77, s77, s79")
    e("s_cmp_ge_u32 s70, s78"); e("s_cselect_b32 s79, 32, 0"); e("s_sub_u32 s77, s77, s79")
    e("s_cmp_lg_u32 s70, s78"); e("s_cbranch_scc1 role_pub")
    e("s_cmp_ge_u32 s71, 32"); e("s_cbranch_scc1 role_pub")
    e("s_add_u32 s77, s71, 0x1000")
    lab("role_pub")
    e("v_mov_b32 v2, 0"); e("v_mov_b32 v3, s77"); e("ds_write_b32 v2, v3"); e("s_waitcnt lgkmcnt(0)")
    lab("role_wait")
    e("s_barrier"); e("v_mov_b32 v2, 0"); e("ds_read_b32 v3, v2"); e("s_waitcnt lgkmcnt(0)")
    e(f"v_readfirstlane_b32 s{SH}, v3"); e("s_barrier")
    e(f"s_cmp_eq_u32 s{SH}, -1"); e("s_cbranch_scc0 role_ok"); e("s_endpgm"); lab("role_ok")

def worker():
    e(f"s_lshl_b32 s66, s{SW}, 1")
    X = Op('k', 128, 1152, S_XN, 67, "s66", 2)
    Yq = Op('t', 128, 8192, S_WQ, 68, 0, 8); Yk = Op('t', 128, 8192, S_WK, 69, 0, 8, share=Yq); Yv = Op('t', 128, 8192, S_WV, 70, 0, 8, share=Yq)
    ops = [X, Yq, Yk, Yv]
    vb, stage = gemm_setup(ops, 8, SW, 2); assert vb <= 30 and stage == 65536
    e("v_and_b32 v30, 63, v0"); e("v_lshlrev_b32 v30, 4, v30")
    sdivmod(71, 72, SH, 7, 256)
    lab("wk_task")
    e(f"s_mul_i32 s67, s72, {128*1152}"); e("s_lshl_b32 s68, s71, 8"); e("s_mov_b32 s69, s68"); e("s_mov_b32 s70, s68")
    zero(256, 192)
    acc = lambda m, et, tt: 256 + 4 * ((m * 8 + et) * 2 + tt)
    mf = []
    for m, Y in enumerate((Yq, Yk, Yv)):
        for et in range(8):
            for tt in range(2): mf.append((acc(m, et, tt), Y, et, X, tt) if m < 2 else (acc(m, et, tt), X, tt, Y, et))
    gemm_loop(ops, mf, 9, 2, stage, 32, 12, SWL, 73, 74)
    e(f"s_lshl_b32 s75, s72, 2"); e(f"s_add_u32 s75, s75, s{SW}"); e("s_lshl_b32 s75, s75, 5"); e("s_add_u32 s75, s75, s71")
    e("s_lshl_b32 s75, s75, 13"); e("s_add_u32 s76, s75, 4096"); e("s_nop 7")
    n = 0
    for m, srd in ((1, S_KF), (2, S_VF), (0, S_QF)):
        for f in range(8):
            a0, a1 = (acc(m, f // 2 * 2, f % 2), acc(m, f // 2 * 2 + 1, f % 2)) if m < 2 else (acc(m, f, 0), acc(m, f, 1))
            t = 32 + 8 * (n % 16); n += 1
            for i in range(4): e(f"v_accvgpr_read_b32 v{t+i}, a{a0-256+i}"); e(f"v_accvgpr_read_b32 v{t+4+i}, a{a1-256+i}")
            cvt(t, t, 4)
            e(f"buffer_store_dwordx4 {vr(t,4)}, v30, {sr(srd,4)}, s{75+f//4} offen offset:{(f%4)*1024} sc1")
    e("s_waitcnt vmcnt(0)"); e("s_barrier")
    e("s_lshl_b32 s75, s72, 5"); e("s_add_u32 s75, s75, s71"); e("s_lshl_b32 s75, s75, 2")
    e(f"s_cmp_lg_u32 s{SW}, 0"); e("s_cbranch_scc1 wk_nof")
    e("v_mov_b32 v2, 0"); e("v_mov_b32 v3, 1"); e("s_mov_b64 exec, 1")
    e(f"buffer_store_dword v3, v2, {sr(S_FLG,4)}, s75 offen sc1"); e("s_mov_b64 exec, -1")
    lab("wk_nof")
    e("s_add_u32 s72, s72, 7"); e("s_cmp_lt_u32 s72, 16"); e("s_cbranch_scc1 wk_task")
    phase2()

def pollv(off, cmp, nl=None):
    a, o = uid("pv"), uid("pvo")
    lab(a); e(f"buffer_load_dword v195, v194, {sr(S_FLG,4)}, s{off} offen sc1"); e("s_waitcnt vmcnt(0)")
    e(cmp); e(f"s_cbranch_vccz {o}"); poll_tmo(a, o); lab(o)
def flag_store(off, val):
    e("v_mov_b32 v194, 0"); e(f"v_mov_b32 v195, {val}"); e("s_mov_b64 exec, 1")
    e(f"buffer_store_dword v195, v194, {sr(S_FLG,4)}, s{off} offen sc1"); e("s_mov_b64 exec, -1")
S_HP, S_HN, S_W1, S_U, S_B1, S_X, S_H = 8, 12, 16, 24, 52, 56, 76
def ln_role():
    e(f"s_and_b32 s86, s{SH}, 7"); e("s_lshl_b32 s86, s86, 2"); e(f"s_add_u32 s86, s86, s{SW}"); e("s_lshl_b32 s87, s73, 5"); e("s_add_u32 s86, s86, s87")
    e("v_and_b32 v1, 63, v0"); e("v_lshlrev_b32 v2, 4, v1"); e("v_lshlrev_b32 v3, 3, v1"); e("s_lshl_b32 s87, s73, 8"); e("s_add_u32 s87, s87, 4096")
    e("s_mov_b32 s88, -1"); e("s_mov_b32 s89, 0xffff")
    e("s_mul_i32 s90, s86, 18432"); e("s_mul_i32 s91, s86, 1152"); e("v_mov_b32 v4, 0"); e("v_mov_b32 v5, 0"); e("s_mov_b64 exec, s[88:89]")
    for r in range(3): e(f"buffer_load_dwordx2 {vr(8+2*r,2)}, v3, {sr(S_X,4)}, s91 offen offset:{384*r}")
    e("v_lshlrev_b32 v194, 2, v1"); pollv(87, "v_cmp_eq_u32 vcc, 0, v195")
    for hg in range(8):
        for r in range(3): e(f"buffer_load_dwordx4 {vr(32+12*hg+4*r,4)}, v2, {sr(S_HP,4)}, s90 offen offset:{768*r} sc1")
        e("s_add_u32 s90, s90, 2304")
    for i in range(6): e(f"v_lshlrev_b32 v{16+2*i}, 16, v{8+i}"); e(f"v_and_b32 v{17+2*i}, 0xffff0000, v{8+i}")
    for hg in range(8):
        e(f"s_waitcnt vmcnt({21-3*hg})")
        for i in range(0, 12, 2): e(f"v_pk_add_f32 {vr(16+i,2)}, {vr(16+i,2)}, {vr(32+12*hg+i,2)}")
    for i in range(6): e(f"v_cvt_pk_bf16_f32 v{8+i}, v{16+2*i}, v{17+2*i}")
    for i in range(6): e(f"v_lshlrev_b32 v{16+2*i}, 16, v{8+i}"); e(f"v_and_b32 v{17+2*i}, 0xffff0000, v{8+i}")
    for i in range(12): e(f"v_add_f32 v4, v4, v{16+i}")
    def allred(v): e("s_mov_b64 exec, -1"); red16("v_add_f32", v, 6); xswap(16, "v_add_f32", v, 6); xswap(32, "v_add_f32", v, 6); e(f"v_mul_f32 v{v}, {f2u(1/576)}, v{v}"); e("s_mov_b64 exec, s[88:89]")
    allred(4)
    for i in range(12): e(f"v_sub_f32 v{16+i}, v{16+i}, v4"); e(f"v_fmac_f32 v5, v{16+i}, v{16+i}")
    allred(5)
    e(f"v_add_f32 v4, {f2u(1e-5)}, v5"); e("v_rsq_f32 v4, v4"); e("s_nop 0")
    e("v_mul_f32 v5, v5, v4"); e("v_mul_f32 v5, v5, v4"); e(f"v_add_f32 v5, {f2u(1e-5)}, v5"); e("v_rsq_f32 v5, v5"); e("s_nop 0"); e("v_mul_f32 v4, v4, v5")
    for i in range(12): e(f"v_mul_f32 v{16+i}, v{16+i}, v4")
    for i in range(6): e(f"v_cvt_pk_bf16_f32 v{16+i}, v{16+2*i}, v{17+2*i}")
    for r in range(3): e(f"buffer_store_dwordx2 {vr(16+2*r,2)}, v3, {sr(S_HN,4)}, s91 offen offset:{384*r} sc1")
    e("s_lshl_b32 s92, s86, 2"); e("s_add_u32 s92, s92, 20480"); e("s_waitcnt vmcnt(0)"); flag_store(92, 1); e("s_mov_b64 exec, s[88:89]")
    for r in range(3): e(f"buffer_store_dwordx2 {vr(8+2*r,2)}, v3, {sr(S_H,4)}, s91 offen offset:{384*r}")
    e("s_mov_b64 exec, -1"); e("s_add_u32 s73, s73, 4")
def phase2():
    for s, n in ((S_W1, 'w1'), (S_B1, 'b1'), (S_X, 'x')): srd_arg(s, n)
    for s, n in ((S_HP, 'hp'), (S_HN, 'hn'), (S_U, 'u'), (S_H, 'h')): srd_ws(s, n, 4)
    e(f"s_mov_b32 s{TMO}, 400000"); e("s_waitcnt lgkmcnt(0)")
    sdivmod(66, 67, SH, 6, 256)
    e(f"s_and_b32 s68, s{SW}, 1"); e("s_mul_i32 s68, s68, 3"); e(f"s_lshr_b32 s69, s{SW}, 1"); e("s_lshl_b32 s69, s69, 2")
    e("s_and_b32 s72, s66, 7"); e("s_lshr_b32 s73, s66, 3")
    RED = 57344
    e(f"s_cmp_lt_u32 s{SH}, 192"); e("s_cbranch_scc1 p2_wo"); e(f"s_bfe_u32 s73, s{SH}, 0x20003"); lab("p2_wo")
    W = Op('t', 96, 1152, S_WO, 70, 0, 6, perm=True); gemm_setup([W], 8, SW, 2)
    e(f"s_mul_i32 s70, s72, {512*1152}"); e("s_mul_i32 s71, s67, 192"); e("s_add_u32 s70, s70, s71")
    for k in range(8): gemm_dma([W], k * 12288, SWL, 74)
    e(f"s_mul_i32 s71, s{SW}, 24576")
    for j in range(W.nrv): e(f"v_add_u32 v{W.rv+j}, s71, v{W.rv+j}")
    e("s_waitcnt vmcnt(0)"); e("s_barrier")
    for m in range(4):
        for nt in range(6):
            for ins in frag_reads(W, nt, m & 1, 64 + 4 * (m * 6 + nt), (m >> 1) * 12288): e(ins.replace(" v[", " a[", 1))
    e("v_and_b32 v2, 15, v0"); e("v_bfe_u32 v3, v0, 4, 2"); e("v_mul_u32_u24 v2, 400, v2"); e("v_lshl_add_u32 v2, v3, 4, v2")
    e(f"s_mul_i32 s71, s{SW}, 12800"); e(f"s_add_u32 s71, s71, {RED}"); e("v_add_u32 v196, s71, v2")
    e("s_mul_i32 s70, s72, 2304"); e("s_mul_i32 s71, s67, 384"); e("s_add_u32 s70, s70, s71")
    for r in range(3):
        e(f"v_add_u32 v2, {256*r}, v0"); vdivmod(3, 4, 2, 24, 768); e("v_lshlrev_b32 v4, 4, v4")
        e(f"v_mul_u32_u24 v5, 400, v3"); e(f"v_add_u32 v5, {RED}, v5"); e(f"v_add_u32 v{197+r}, v5, v4")
        e(f"v_mul_u32_u24 v5, 18432, v3"); e(f"v_add3_u32 v{200+r}, v5, v4, s70")
    e("s_waitcnt lgkmcnt(0)"); e("s_barrier")
    Xo = Op('t', 96, 1152, S_HN, 70, "s68", 3); Y = Op('t', 128, 9216, S_W1, 71, "s69", 4)
    vb, stage = gemm_setup([Xo, Y], 204, SW, 2); assert vb <= 256 and 2 * stage == RED
    e("s_mul_i32 s70, s67, 192"); e("s_lshl_b32 s71, s66, 8"); zero(256, 48)
    mf = [(256 + 4 * (i * 4 + j), Y, j, Xo, i) for i in range(3) for j in range(4)]
    e("s_mov_b32 s80, 0"); e("s_mov_b32 s81, 20480")
    e("s_lshl_b32 s82, s72, 2"); e(f"s_add_u32 s82, s82, s{SW}")
    e("s_mul_i32 s83, s72, 6"); e("s_add_u32 s83, s83, s67"); e("s_lshl_b32 s83, s83, 2"); e("s_add_u32 s83, s83, 4096")
    lab("p2_loop")
    e("s_cmp_eq_u32 s80, 0"); e("s_cbranch_scc1 p2_noy"); e(f"s_cmp_ge_u32 s{SH}, 216"); e("s_cbranch_scc1 p2_noy")
    for st in range(2): gemm_dma([Y], st * stage, SWL, 74)
    lab("p2_noy")
    e("s_cmp_eq_u32 s80, 16"); e("s_cbranch_scc1 p2_noat"); e(f"s_cmp_lt_u32 s{SH}, 192"); e("s_cbranch_scc1 p2_at"); ln_role(); e("s_branch p2_noat"); lab("p2_at")
    e("s_lshl_b32 s84, s80, 5"); e("s_add_u32 s84, s84, s82"); e("s_lshl_b32 s84, s84, 2"); e("v_mov_b32 v194, 0")
    pollv(84, "v_cmp_eq_u32 vcc, 0, v195")
    e("s_lshl_b32 s84, s73, 5"); e("s_add_u32 s84, s84, s82"); e("s_lshl_b32 s85, s82, 7"); e("s_add_u32 s85, s85, 28672")
    attn_body(S_QF, S_KF, S_VF, S_KVM, 84, lambda: pollv(85, "v_cmp_ge_u32 vcc, s73, v195"))
    e("s_nop 0")
    for m in range(4):
        for tt in range(2):
            for nt in range(6):
                a = 104 + 4 * (6 * tt + nt)
                e(f"v_mfma_f32_16x16x32_bf16 {vr(a,4)}, {ar(64+4*(m*6+nt),4)}, {vr(72+16*tt+4*m,4)}, {vr(a,4) if m else 0}")
    e(f"s_mul_i32 s84, s73, {32*18432}"); e("s_lshl_b32 s85, s73, 8"); e("s_add_u32 s85, s85, s83"); e("s_nop 2")
    for tt in range(2):
        for nt in range(6): e(f"ds_write_b128 v196, {vr(104+4*(6*tt+nt),4)} offset:{tt*6400+nt*64}")
    e("s_waitcnt lgkmcnt(0)"); e("s_barrier")
    for r in range(3):
        for w in range(4): e(f"ds_read_b128 {vr(8+16*r+4*w,4)}, v{197+r} offset:{w*12800}")
    for r in range(3):
        b = 8 + 16 * r; e(f"s_waitcnt lgkmcnt({8-4*r})")
        for x, y in ((0, 4), (8, 12), (0, 8)):
            for i in (0, 2): e(f"v_pk_add_f32 {vr(b+x+i,2)}, {vr(b+x+i,2)}, {vr(b+y+i,2)}")
        e(f"buffer_store_dwordx4 {vr(b,4)}, v{200+r}, {sr(S_HP,4)}, s84 offen sc1")
    e("s_waitcnt vmcnt(0)"); e("s_barrier"); e("s_add_u32 s73, s73, 4")
    e(f"s_cmp_lg_u32 s{SW}, 0"); e("s_cbranch_scc1 p2_noat"); flag_store(85, 1)
    lab("p2_noat")
    e("s_cmp_eq_u32 s80, 0"); e("s_cbranch_scc1 p2_next"); e(f"s_cmp_ge_u32 s{SH}, 216"); e("s_cbranch_scc1 p2_next")
    for st in range(2):
        e("v_and_b32 v194, 63, v0"); e("v_lshlrev_b32 v194, 2, v194"); pollv(81, "v_cmp_eq_u32 vcc, 0, v195"); e("s_add_u32 s81, s81, 256")
        gemm_dma([Xo], st * stage, SWL, 74, "sc1"); e("s_waitcnt vmcnt(0)"); e("s_barrier")
        gemm_compute(mf, st * stage, 8, 14)
    e("s_barrier")
    lab("p2_next")
    e("s_add_u32 s80, s80, 1"); e("s_cmp_le_u32 s80, 16"); e("s_cbranch_scc1 p2_loop")
    e(f"s_cmp_lt_u32 s{SH}, 216"); e("s_cbranch_scc1 p2_epi"); e("s_endpgm"); lab("p2_epi"); e("s_nop 7")
    for i in range(48): e(f"v_accvgpr_read_b32 v{32+i}, a{i}")
    e("v_and_b32 v2, 15, v0"); e("v_bfe_u32 v3, v0, 4, 2")
    mlp1_epi(32, 80, 66, 67, 68, 69, S_B1, S_U); e("s_endpgm")

def poll_tmo(again, out):
    e(f"s_cmp_eq_u32 s{TMO}, 0"); e(f"s_cbranch_scc1 {out}"); e(f"s_sub_u32 s{TMO}, s{TMO}, 1"); e(f"s_branch {again}")

def chain_prologue():
    e("v_and_b32 v12, 63, v0"); e("v_lshrrev_b32 v13, 4, v12"); e("v_and_b32 v14, 15, v12")
    e(f"s_and_b32 s66, s{SW}, 1"); e(f"s_lshr_b32 s67, s{SW}, 1")
    e("s_lshl_b32 s68, s67, 5"); e("s_lshl_b32 s69, s66, 1"); e("s_add_u32 s68, s68, s69")
    e("v_lshrrev_b32 v15, 1, v13"); e("v_and_b32 v16, 1, v13"); e("v_lshl_add_u32 v15, v15, 3, v16"); e("v_add_u32 v15, s68, v15")
    e(f"s_lshl_b32 s69, s{SH}, 8")
    for p in range(2):
        e(f"v_add_u32 v16, {4*p}, v13"); e("v_lshlrev_b32 v16, 1, v16"); e("v_xor_b32 v16, v16, v14")
        e(f"v_add_u32 v17, {4*p}, v15"); e("v_lshlrev_b32 v17, 13, v17"); e(f"v_lshl_add_u32 v{20+p}, v16, 4, v17"); e(f"v_add_u32 v{20+p}, s69, v{20+p}")
    e("v_bfe_u32 v15, v12, 4, 1"); e("v_bfe_u32 v16, v12, 3, 1"); e("v_lshl_add_u32 v15, v15, 3, v16"); e("v_lshrrev_b32 v16, 5, v12")
    e("v_lshl_add_u32 v15, v16, 2, v15"); e("v_add_u32 v15, s68, v15"); e("v_lshlrev_b32 v15, 13, v15")
    e("v_and_b32 v16, 7, v12"); e("v_lshlrev_b32 v17, 1, v13"); e("v_xor_b32 v16, v16, v17")
    e("v_lshl_add_u32 v22, v16, 4, v15"); e("v_add_u32 v22, s69, v22")
    e("s_lshl_b32 s68, s67, 3"); e("s_lshl_b32 s70, s66, 1"); e("s_add_u32 s68, s68, s70")
    e(f"s_mul_i32 s70, s{SH}, 147456")
    for i in range(18):
        e(f"v_add_u32 v15, {64*i}, v12"); vdivmod(16, 17, 15, 72, 1152)
        e("v_bfe_u32 v18, v16, 1, 2"); e("v_lshlrev_b32 v18, 1, v18"); e("v_xor_b32 v17, v17, v18")
        e("v_bfe_u32 v18, v16, 2, 1"); e("v_lshlrev_b32 v15, 6, v18"); e("v_bfe_u32 v18, v16, 1, 1"); e("v_lshl_add_u32 v15, v18, 4, v15")
        e("v_bfe_u32 v18, v16, 3, 1"); e("v_lshl_add_u32 v15, v18, 2, v15"); e("v_and_b32 v18, 1, v16"); e("v_add3_u32 v15, v15, v18, s68")
        e("v_mul_u32_u24 v15, 1152, v15"); e(f"v_lshl_add_u32 v{24+i}, v17, 4, v15"); e(f"v_add_u32 v{24+i}, s70, v{24+i}")
    e("v_lshrrev_b32 v15, 2, v12"); e("v_and_b32 v16, 3, v12"); e("v_lshlrev_b32 v16, 3, v16")
    e("v_and_b32 v17, 7, v15"); e(f"s_lshl_b32 s68, s{SW}, 1")
    for t in range(2):
        e(f"s_add_u32 s71, s68, {t}"); e("v_xor_b32 v18, s71, v17"); e("v_lshl_add_u32 v18, v18, 5, v16")
        e(f"v_lshl_add_u32 v{42+t}, v15, 8, v18"); e(f"v_add_u32 v{42+t}, {WB}, v{42+t}")
    e("v_bfe_u32 v17, v15, 1, 2"); e(f"v_xor_b32 v17, s{SW}, v17"); e("v_lshl_add_u32 v17, v17, 5, v16")
    e("v_lshl_add_u32 v4, v15, 7, v17"); e(f"v_add_u32 v4, {WV_IMG}, v4")
    e("v_mul_u32_u24 v5, 1152, v15"); e("v_add_u32 v5, v5, v17"); e(f"v_add_u32 v5, {WO_IMG}, v5")
    def dma(v, srd, so, lds):
        e(f"s_mov_b32 s71, {so}"); e(f"s_add_u32 m0, s72, {lds}"); e("s_nop 0"); e(f"buffer_load_dwordx4 v{v}, {sr(srd,4)}, s71 offen lds")
    def qk_dma(srd):
        e(f"s_lshl_b32 s72, s{SW}, 12")
        for j in range(9):
            for g in range(4): dma(20 + (g & 1), srd, (64 * j + 16 * (g >> 1)) * 8192, WB + j * 16384 + g * 1024)
    def vo_dma(half):
        e(f"s_lshl_b32 s72, s{SW}, 11")
        for j in range(9):
            for gp in range(2): dma(22, S_WV, (64 * j + 16 * gp) * 8192 + 128 * half, WV_IMG + j * 8192 + gp * 1024)
        e(f"s_mul_i32 s72, s{SW}, 18432")
        for i in range(18): dma(24 + i, S_WO, 32 * half * 1152, WO_IMG + i * 1024)
    def sync(): e("s_waitcnt vmcnt(0) lgkmcnt(0)"); e("s_barrier")
    for srd, W in ((S_WQ, WQ), (S_WK, WK)):
        qk_dma(srd); sync()
        for t in range(2):
            for j in range(9):
                if j % 4 == 0: e(f"v_add_u32 v11, {j*16384}, v{42+t}")
                for m in range(4): e(f"ds_read_b64_tr_b16 {R(W(j,t)+2*m,2)}, v11 offset:{(j%4)*16384+m*4096}")
        sync()
    vo_dma(0); sync()
    e("v_add_u32 v11, 65536, v4")
    for j in range(9):
        for m in range(4):
            e(f"ds_read_b64_tr_b16 {R(WVA(j)+2*m,2)}, v{4 if j<8 else 11} offset:{(j%8)*8192+m*2048}")
            e(f"ds_read_b64_tr_b16 {R(WO0(j)+2*m,2)}, v5 offset:{m*18432+j*128}")
    sync(); vo_dma(1)
    e(f"s_mul_i32 s68, s{SW}, 18432"); e(f"s_add_u32 s68, s68, {WV_IMG}"); e("v_lshlrev_b32 v0, 4, v12"); e("v_add_u32 v6, s68, v0")
    e("v_add_u32 v7, 73728, v6"); e("v_mov_b32 v3, v11"); sync()
    for img in range(2):
        for j in range(9):
            for m in range(4):
                if img == 0: e(f"ds_read_b64_tr_b16 {vr(8+8*j+2*m,2)}, v{4 if j<8 else 3} offset:{(j%8)*8192+m*2048}")
                else: e(f"ds_read_b64_tr_b16 {vr(8+8*j+2*m,2)}, v5 offset:{m*18432+j*128}")
        sync()
        for j in range(18): e(f"ds_write_b128 v{6+img}, {vr(8+4*j,4)} offset:{1024*j}")
        e("s_waitcnt lgkmcnt(0)")
    e("v_mov_b32 v4, v6"); e("v_lshrrev_b32 v12, 4, v0"); e("v_lshrrev_b32 v13, 4, v12"); e("v_and_b32 v14, 15, v12")
    e("v_mov_b32 v1, 0x44444444"); e("v_mov_b32 v15, 0xeeeeeeee"); e("v_cmp_le_u32 vcc, 8, v14"); e("s_nop 1"); e("v_cndmask_b32 v1, v1, v15, vcc")
    e("v_and_b32 v20, 1, v13"); e("v_lshlrev_b32 v15, 2, v20"); e("v_and_b32 v16, 7, v14"); e("v_sub_u32 v15, v16, v15")
    for r in range(2):
        e(f"v_mov_b32 v{2+r}, 0")
        for hh, val in ((0, 0x3f80), (1, 0x3f800000)):
            e(f"v_mov_b32 v17, {val:#x}"); e(f"v_cmp_eq_u32 vcc, {2*r+hh}, v15"); e("s_nop 1"); e(f"v_cndmask_b32 v{2+r}, v{2+r}, v17, vcc")
    e("v_lshlrev_b32 v17, 4, v16"); e("v_lshl_add_u32 v17, v13, 7, v17")
    e(f"s_lshl_b32 s68, s{SW}, 9"); e("v_add_u32 v7, s68, v17")
    e("v_lshrrev_b32 v18, 3, v14"); e("v_lshl_add_u32 v8, v18, 9, v17")
    e("v_lshl_add_u32 v5, v18, 11, v17"); e("v_lshl_add_u32 v6, v18, 3, v17")
    e("v_lshrrev_b32 v19, 1, v13"); e("v_lshl_add_u32 v19, v19, 3, v20"); e(f"s_lshl_b32 s68, s{SW}, 1"); e("v_add_u32 v19, s68, v19")
    e("v_lshlrev_b32 v9, 12, v19"); e("v_lshl_add_u32 v9, v14, 4, v9")
    e(f"s_lshr_b32 s68, s{SH}, 1"); e("s_lshl_b32 s68, s68, 8"); e(f"s_and_b32 s69, s{SH}, 1"); e("s_lshl_b32 s69, s69, 3"); e("s_add_u32 s68, s68, s69")
    e("v_add_u32 v9, s68, v9")
    if 'd' in X:
        e("v_lshlrev_b32 v9, 12, v19"); e("v_lshl_add_u32 v9, v16, 4, v9"); e("v_lshl_add_u32 v9, v18, 3, v9"); e(f"s_lshl_b32 s68, s{SH}, 7"); e("v_add_u32 v9, s68, v9")
    e(f"s_lshl_b32 s73, s{SW}, 5"); e(f"s_add_u32 s73, s73, s{SH}")
    e("v_lshrrev_b32 v19, 1, v13"); e("v_lshlrev_b32 v10, 7, v19"); e("v_and_b32 v19, 3, v14"); e("v_lshl_add_u32 v10, v19, 4, v10"); e("v_lshl_add_u32 v10, v20, 3, v10")
    e("s_lshr_b32 s68, s73, 1"); e("s_lshl_b32 s68, s68, 8"); e("s_and_b32 s69, s73, 1"); e("s_lshl_b32 s69, s69, 6"); e("s_add_u32 s68, s68, s69")
    e("v_add_u32 v10, s68, v10"); e("s_lshl_b32 s74, s73, 12")

def wait_flag(stb):
    a, o = uid("fl"), uid("flo")
    e(f"s_lshl_b32 s71, s{stb}, 5"); e(f"s_add_u32 s71, s71, s{SH}"); e("s_lshl_b32 s71, s71, 2"); e("v_mov_b32 v28, 0")
    lab(a); e(f"buffer_load_dword v29, v28, {sr(S_FLG,4)}, s71 offen sc1"); e("s_waitcnt vmcnt(0)")
    e("v_cmp_ne_u32 vcc, 0, v29"); e(f"s_cbranch_vccnz {o}"); poll_tmo(a, o); lab(o)

def chain():
    chain_prologue()
    e(f"s_mov_b32 s{TMO}, 400000"); e(f"s_mov_b32 s{STEP}, 0")
    e("s_mov_b32 s75, 0"); e("s_mov_b32 s76, 9216"); e("s_mov_b32 s77, 18432")
    e("s_mov_b32 s78, 0")
    e(f"s_lshl_b32 s79, s{SH}, 13")
    e(f"s_mov_b32 s80, {f2u(128**-0.5*LOG2E)}"); e("s_mov_b32 s82, 0x00ff00ff"); e("s_mov_b32 s83, 0x00ff00ff")
    e(f"s_lshl_b32 s81, s{SH}, 7"); e("s_add_u32 s81, s81, 28672")
    e("s_mov_b32 s86, 0"); wait_flag(86)
    KX, VX, AL, ACC, WL = 12, 20, 28, 40, 64
    z2 = lambda r: e(f"v_mov_b64 {vr(r,2)}, 0")
    e(f"s_mul_i32 s84, s{SW}, 3072")
    e("s_mov_b32 s46, 0x000f000f"); e("s_mov_b32 s47, 0x000f000f")
    if PROF:
        e("s_memtime s[40:41]")
        for i in range(12): e(f"s_mov_b32 s{90+i}, 0")
    lab("step"); stamp()
    e(f"s_add_u32 s87, s75, s84"); e("v_add_u32 v11, s84, v0")
    def mp_ld(b):
        for i in range(3): e(f"buffer_load_dwordx4 {vr(b+4*i,4)}, v0, {sr(S_MH,4)}, s87 offen offset:{1024*i} sc1")
    def mp_ck(b):
        e("s_waitcnt vmcnt(3)")
        e(f"ds_write_b128 v11, {vr(b,4)}"); e(f"v_max3_u32 v36, v{b}, v{b+2}, v{b+4}"); e(f"ds_write_b128 v11, {vr(b+4,4)} offset:1024")
        e(f"v_max3_u32 v37, v{b+6}, v{b+8}, v{b+10}"); e(f"ds_write_b128 v11, {vr(b+8,4)} offset:2048")
        e("v_max_u32 v36, v36, v37"); e("v_cmp_eq_u32 vcc, -1, v36"); e("s_cbranch_vccz mpo")
    e(f"s_cmp_lg_u32 s{SW}, 3"); e("s_cbranch_scc1 mp0")
    for r in range(ACC, ACC + 24, 2): z2(r)
    e("s_branch mp3"); lab("mp0")
    mp_ld(12)
    for r in range(ACC, ACC + 24, 2): z2(r)
    lab("mp"); mp_ld(24); mp_ck(12); e("s_waitcnt lgkmcnt(0)"); mp_ld(12); mp_ck(24); e("s_waitcnt lgkmcnt(0)"); poll_tmo("mp", "mpo"); lab("mpo")
    e("s_waitcnt vmcnt(0)"); lab("mp3"); stamp()
    e(f"s_lshl_b32 s87, s{SWL}, 1"); e("s_add_u32 s87, s87, s79"); e(f"s_add_u32 s88, s79, s{SWL}"); e("s_add_u32 s89, s88, 4096")
    e("s_waitcnt lgkmcnt(0)"); e("s_barrier")
    d = DS(); stamp()
    def prog(val):
        e(f"v_mov_b32 v11, {val}"); e("s_mov_b64 exec, 1"); e(f"buffer_store_dword v11, v0, {sr(S_FLG,4)}, s81 offen sc1"); e("s_mov_b64 exec, -1")
    def rdA(j): d.op(f"ds_read_b128 {vr(AL+4*(j%3),4)}, v0 offset:{MI+j*1024}", ('a', j))
    def rdW(dst, adr, i, tag):
        for m in range(2): d.op(f"ds_read_b128 {vr(dst+4*m,4)}, v{adr} offset:{i*2048+m*1024}", tag)
    rdV = lambda j: rdW(WL + 8 * (j % 2), 4, j, ('wv', j))
    for j in range(3): rdA(j)
    rdV(0); rdV(1)
    for i in range(2): e(f"buffer_load_dwordx4 {vr(KX+4*i,4)}, v0, {sr(S_KF,4)}, s87 offen offset:{1024*i} sc1")
    for i in range(2): e(f"buffer_load_dwordx4 {vr(VX+4*i,4)}, v0, {sr(S_VF,4)}, s{88+i} offen sc1")
    def vA(j): smf(56, AL + 4 * (j % 3), WVA(j))
    def vB(j): d.need(('wv', j)); smf(60, AL + 4 * (j % 3), WL + 8 * (j % 2))
    for j in range(9):
        d.need(('a', j))
        for t in range(2): smf(ACC + 4 * t, AL + 4 * (j % 3), WQ(j, t))
        for t in range(2): smf(ACC + 8 + 4 * t, AL + 4 * (j % 3), WK(j, t))
        if j == 0: e(f"s_cmp_lg_u32 s{SW}, 3"); e("s_cbranch_scc1 noprog"); prog(f"s{STEP}"); lab("noprog")
        if j < 7:
            vA(j); vB(j); rdV(j + 2)
            if j + 3 < 9: rdA(j + 3)
    stamp()
    tr = lambda dd, a: e(f"v_mfma_f32_16x16x16_bf16 {vr(dd,4)}, {vr(a,2)}, v[2:3], 0")
    vA(7); vB(7); e("v_add_u32 v11, 73728, v4"); e("s_nop 3")
    WLS = (72, 64, 20)
    rdO = lambda i: rdW(WLS[i % 3], 11, i, ('wo', i))
    cvt(28, 40, 4); rdO(0); tr(40, 28); tr(44, 30)
    cvt(28, 48, 4); e("s_nop 1"); tr(48, 28); tr(52, 30)
    vA(8)
    cvt(28, 40, 4); e("s_nop 2"); cvt(40, 48, 4); e("s_waitcnt vmcnt(2)")
    for n, a in ((1, KX), (2, KX + 4), (0, 40)): e(f"v_mfma_f32_16x16x32_bf16 {vr(44+4*n,4)}, {vr(a,4)}, v[28:31], 0")
    vB(8); e(f"buffer_store_dwordx4 v[40:43], v0, {sr(S_KVM,4)}, s87 offen sc1"); rdO(1); e("s_nop 2")
    for n in (1, 2, 0): d.op(f"ds_write_b128 v7, {vr(44+4*n,4)} offset:{SREG+2048*n}")
    stamp()
    e("v_mov_b32 v32, 0x3f803f80"); e("v_mov_b32 v33, 0x3f803f80"); e("v_mov_b64 v[34:35], v[32:33]"); e("v_mov_b32 v36, 0x3f003f00"); e("v_mov_b32 v37, 0x3f003f00")
    cvt(40, 56, 4)
    d.drain(); e("s_barrier"); stamp()
    SX = (44, 48, 52, 56); SM = (12, 14, 16, 18)
    for w in range(4):
        d.op(f"ds_read_b128 {vr(SX[w],4)}, v5 offset:{SREG+2048+512*w}"); d.op(f"ds_read_b64 {vr(SM[w],2)}, v6 offset:{SREG+512*w}", ('s', w))
    e(f"buffer_store_dwordx4 v[40:43], v0, {sr(S_KVM,4)}, s87 offen offset:1024 sc1")
    e(f"s_cmp_eq_u32 s{STEP}, 63"); e("s_cbranch_scc1 chain_end")
    z2(60); z2(62)
    pk = lambda op, dd, a, b: e(f"v_pk_{op}_f32 {vr(dd,2)}, {vr(a,2)}, {vr(b,2)}")
    d.need(('s', 1)); pk("add", 44, 44, 48); pk("add", 46, 46, 50); pk("add", 12, 12, 14)
    d.need(('s', 3)); pk("add", 52, 52, 56); pk("add", 54, 54, 58); pk("add", 16, 16, 18)
    pk("add", 44, 44, 52); pk("add", 46, 46, 54); pk("add", 48, 12, 16)
    e("v_max3_f32 v38, v44, v45, v46"); e("v_max3_f32 v39, v47, v48, v49"); e("v_max_f32 v38, v38, v39"); z2(52); z2(54)
    e("v_max_f32_dpp v38, v38, v38 row_ror:8 row_mask:0xf bank_mask:0xf"); e("v_mov_b32 v39, v38"); z2(56); z2(58)
    e("v_permlane32_swap_b32 v38, v39"); e("v_max_f32 v38, v38, v39"); e("v_mov_b32 v39, v38"); e("s_nop 1")
    e("v_permlane16_swap_b32 v38, v39"); e("v_max_f32 v38, v38, v39"); e("v_mul_f32 v38, s80, v38")
    for r in range(44, 50): e(f"v_fma_f32 v{r}, v{r}, s80, -v38")
    for r in range(44, 50): e(f"v_exp_f32 v{r}, v{r}")
    cvt(12, 44, 2); e("v_cvt_pk_bf16_f32 v16, v48, v49"); e("s_waitcnt vmcnt(2)")
    for dd, a in ((14, 12), (15, 13), (17, 16)): e(f"v_mov_b32_dpp v{dd}, v{a} row_ror:8 row_mask:0xf bank_mask:0xf")
    e("s_nop 0")
    for dd, a in ((28, 32), (44, VX), (48, VX + 4)): e(f"v_mfma_f32_16x16x32_bf16 {vr(dd,4)}, {vr(a,4)}, v[12:15], 0")
    for dd, a in ((28, 36), (44, 40), (48, 42)): e(f"v_mfma_f32_16x16x16_bf16 {vr(dd,4)}, {vr(a,2)}, v[16:17], {vr(dd,4)}")
    rdO(2); stamp()
    OA = [52, 56, 60, 12, 16, 36, 40, 44, 48]
    for r in (12, 14, 16, 18): z2(r)
    e("v_rcp_f32 v28, v28"); z2(36); e("v_mov_b32 v29, v28")
    for r in range(44, 52, 2): pk("mul", r, r, 28)
    cvt(32, 44, 4)
    e("s_mov_b64 exec, s[82:83]"); d.op("ds_write_b128 v7, v[32:35]"); e("s_mov_b64 exec, -1")
    for r in range(38, 52, 2): z2(r)
    d.drain(); e("s_barrier")
    for k in range(2): d.op(f"ds_read_b128 {vr(AL+4*k,4)}, v8 offset:{1024*k}", ('o', k))
    def fold(i):
        a, b = OA[i], OA[i + 1] if i < 8 else 28
        ins = []
        if i == 8: ins += [f"v_mov_b64 {vr(b,2)}, {vr(a,2)}", f"v_mov_b64 {vr(b+2,2)}, {vr(a+2,2)}", "s_nop 0"]
        ins += [f"v_permlane32_swap_b32 v{a+q}, v{b+q}" for q in range(4)]
        ins += [f"v_pk_add_f32 {vr(a+q,2)}, {vr(a+q,2)}, {vr(b+q,2)}" for q in (0, 2)]
        ins += [f"v_cvt_pk_bf16_f32 v{a}, v{a}, v{a+1}", f"v_cvt_pk_bf16_f32 v{a+1}, v{a+2}, v{a+3}"]
        if i == 8: ins += ["s_mov_b32 exec_hi, 0"]
        ins += [f"buffer_store_dwordx2 {vr(a,2)}, v9, {sr(S_P1,4)}, s{66+i//2} offen"]
        if i == 8: ins += ["s_mov_b64 exec, -1"]
        return ins
    for i in range(5): e(f"s_add_u32 s{66+i}, s78, {i*65536}")
    d.need(('o', 0)); stamp()
    for i in range(3): smf(OA[i], AL, WO0(i))
    d.need(('o', 1))
    pend = []
    def fill(n):
        for _ in range(n):
            if pend: e(pend.pop(0))
    for i in range(9):
        d.need(('wo', i)); smf(OA[i], AL + 4, WLS[i % 3])
        if i + 3 < 9: rdO(i + 3); smf(OA[i + 3], AL, WO0(i + 3))
        if i in (3, 5, 7): pend += fold(i - 3)
        fill(3)
    fill(99); pend += fold(6) + fold(8); fill(99)
    stamp()
    e("s_cmp_lt_u32 s73, 72"); e("s_cbranch_scc1 red_go"); e(f"s_cmp_lg_u32 s{SW}, 3"); e("s_cbranch_scc1 red_done")
    e(f"s_add_u32 s86, s{STEP}, 1"); e("s_and_b32 s87, s86, 3"); e("s_cbranch_scc1 nofl"); e("s_lshr_b32 s86, s86, 2"); wait_flag(86); lab("nofl")
    e("s_waitcnt vmcnt(0)"); e("s_branch red_done"); lab("red_go")
    e("s_add_u32 s87, s78, s74")
    def rp_ld(b):
        for i in range(4): e(f"buffer_load_dwordx4 {vr(b+4*i,4)}, v0, {sr(S_P1,4)}, s87 offen offset:{1024*i} sc1")
    def rp_ck(b):
        for i in range(4):
            e(f"s_waitcnt vmcnt({7-i})"); e(f"v_mfma_f32_16x16x32_bf16 v[72:75], {vr(b+4*i,4)}, v[64:67], {'v[72:75]' if i else 0}")
        e("s_nop 6"); e("s_mov_b64 exec, s[46:47]"); e("v_cvt_pk_bf16_f32 v76, v72, v73"); e("v_cvt_pk_bf16_f32 v77, v74, v75")
        e("v_cmp_u_f32 vcc, v72, v73"); e("v_cmp_u_f32 s[88:89], v74, v75"); e("s_or_b64 vcc, vcc, s[88:89]"); e("s_cbranch_scc0 rpo"); e("s_mov_b64 exec, -1")
    for r in range(68, 72): e(f"v_mov_b32 v{r}, -1")
    e("v_bfe_u32 v76, v0, 4, 1"); e("v_lshlrev_b32 v76, 4, v76"); e("v_mov_b32 v64, 0x3f80"); e("v_lshlrev_b32 v64, v76, v64")
    e("v_bfe_i32 v76, v0, 5, 1"); e("v_and_b32 v65, v64, v76"); e("v_xor_b32 v64, v64, v65"); e("v_mov_b64 v[66:67], v[64:65]")
    if 'e' in X: e("s_waitcnt vmcnt(0)"); stamp()
    e(f"buffer_store_dwordx2 v[68:69], v10, {sr(S_MH,4)}, s77 offen")
    if 'b' in X: e("s_waitcnt vmcnt(0)")
    if 'c' in X: stamp()
    rp_ld(12)
    lab("rp"); rp_ld(28); rp_ck(12); rp_ld(12); rp_ck(28); poll_tmo("rp", "rpo"); lab("rpo"); stamp()
    e(f"buffer_store_dwordx2 v[76:77], v10, {sr(S_MH,4)}, s76 offen"); e("s_mov_b64 exec, -1"); e("s_waitcnt vmcnt(1)")
    for i in range(4): e(f"buffer_store_dwordx4 v[68:71], v0, {sr(S_P1,4)}, s87 offen offset:{1024*i}")
    lab("red_done"); e("s_barrier"); lab("red_done2"); stamp()
    if PROF:
        e("s_waitcnt lgkmcnt(0)")
        for i in range(_st[0]-1): e(f"s_sub_u32 s87, s{10+2*i}, s{8+2*i}"); e(f"s_add_u32 s{90+i}, s{90+i}, s87")
    e(f"s_add_u32 s{STEP}, s{STEP}, 1"); e(f"s_xor_b32 s78, s78, {72*8192}"); e(f"s_add_u32 s79, s79, {32*8192}")
    e("s_mov_b32 s87, s75"); e("s_mov_b32 s75, s76"); e("s_mov_b32 s76, s77"); e("s_mov_b32 s77, s87")
    e("s_branch step")
    lab("chain_end"); e("s_waitcnt vmcnt(0)"); e("s_barrier"); prog(64)
    if PROF:
        e("s_memtime s[42:43]"); srd_arg(8, 'dbg'); e("s_waitcnt lgkmcnt(0)")
        e("s_sub_u32 s100, s40, s44"); e("s_sub_u32 s101, s42, s40")
        e(f"s_cmp_lg_u32 s{SH}, 0"); e("s_cbranch_scc1 prof_end"); e(f"s_mul_i32 s87, s{SW}, 48"); e("s_add_u32 s87, s87, 64"); e("v_mov_b32 v2, 0")
        for i in range(12): e(f"v_mov_b32 v3, s{90+i}"); e(f"buffer_store_dword v3, v2, s[8:11], s87 offen offset:{4*i}")
        lab("prof_end")
    e("s_endpgm")

def k_main():
    kstart("main_kernel"); guard(256)
    if PROF: e("s_memtime s[44:45]")
    e(f"s_load_dwordx2 s[4:5], s[0:1], {ARG['ws']}")
    for s, n in ((S_WQ, 'wq'), (S_WK, 'wk'), (S_WV, 'wv'), (S_WO, 'wo'), (72, 'dbg')): srd_arg(s, n)
    wave_id(SW, SWL); e("s_waitcnt lgkmcnt(0)")
    for s, n in ((S_XN, 'xn'), (S_QF, 'qf'), (S_KF, 'kf'), (S_VF, 'vf'), (S_FLG, 'flg'), (S_P1, 'p1'), (S_MH, 'mh'), (S_KVM, 'kvm')): srd_ws(s, n, 4)
    roles()
    e(f"s_cmp_ge_u32 s{SH}, 0x1000"); e("s_cbranch_scc1 is_chain")
    worker()
    lab("is_chain"); e(f"s_and_b32 s{SH}, s{SH}, 31")
    chain()
    return kdesc("main_kernel", 512, 256)
```

```python
L = []
def e(s): L.append("    " + s)
def lab(s): L.append(s + ":")
_uid = [0]
def uid(p):
    _uid[0] += 1
    return f"{p}_{_uid[0]}"
def vr(b, n=1): return f"v{b}" if n == 1 else f"v[{b}:{b+n-1}]"
def ar(b, n=1): return f"a{b}" if n == 1 else f"a[{b}:{b+n-1}]"
def R(b, n=1):
    return vr(b, n) if b < 256 else ar(b - 256, n)
def sr(b, n=1): return f"s{b}" if n == 1 else f"s[{b}:{b+n-1}]"

ARG = dict(x=0, mem0=8, wq=16, wk=24, wv=32, wo=40, w1=64, b1=72, w2=80, b2=88, out=96, dbg=104, ws=112)
SZ = dict(x=2359296, mem0=9216, wq=4718592, wk=4718592, wv=4718592, wo=4718592, w1=18874368, b1=9216,
          w2=18874368, b2=4096, out=2359296, dbg=256)
WS = {}
_o = 0
def wsreg(n, sz):
    global _o
    WS[n] = (_o, sz); _o += (sz + 4095) // 4096 * 4096
wsreg('xn', 2359296)
wsreg('p1', 2 * 72 * 8192)
wsreg('mh', 3 * 9216)
wsreg('flg', 131072)
wsreg('qf', 16777216); wsreg('kf', 16777216); wsreg('vf', 16777216)
wsreg('kvm', 68 * 32 * 8192)
wsreg('hp', 2048 * 18432)
wsreg('h', 2359296); wsreg('hn', 2359296)
wsreg('u', 576 * 4608 * 2)

def srd_arg(d, name):
    e(f"s_load_dwordx2 {sr(d,2)}, s[0:1], {ARG[name]}")
    e(f"s_mov_b32 s{d+2}, {SZ[name]}"); e(f"s_mov_b32 s{d+3}, 0x00020000")
def srd_ws(d, name, wsb):
    o, sz = WS[name]
    e(f"s_add_u32 s{d}, s{wsb}, {o}"); e(f"s_addc_u32 s{d+1}, s{wsb+1}, 0")
    e(f"s_mov_b32 s{d+2}, {sz}"); e(f"s_mov_b32 s{d+3}, 0x00020000")

def kstart(name):
    L.append(f".globl {name}\n.p2align 8\n.type {name},@function\n{name}:")
def kdesc(name, nv, acc, ns=102):
    return (f".p2align 6\n.amdhsa_kernel {name}\n  .amdhsa_next_free_vgpr {nv}\n  .amdhsa_next_free_sgpr {ns}\n"
            f"  .amdhsa_accum_offset {acc}\n  .amdhsa_group_segment_fixed_size 0\n  .amdhsa_kernarg_size 120\n"
            f"  .amdhsa_user_sgpr_count 2\n  .amdhsa_user_sgpr_kernarg_segment_ptr 1\n"
            f"  .amdhsa_system_sgpr_workgroup_id_x 1\n.end_amdhsa_kernel")

def vdivmod(q, r, x, c, maxx):
    if c & (c - 1) == 0:
        e(f"v_lshrrev_b32 v{q}, {c.bit_length()-1}, v{x}"); e(f"v_and_b32 v{r}, {c-1}, v{x}"); return
    m = (1 << 16) // c + 1
    assert all((i * m) >> 16 == i // c for i in range(maxx)), (c, maxx)
    e(f"v_mul_u32_u24 v{q}, {m}, v{x}"); e(f"v_lshrrev_b32 v{q}, 16, v{q}")
    e(f"v_mul_u32_u24 v{r}, {c}, v{q}"); e(f"v_sub_u32 v{r}, v{x}, v{r}")
def sdivmod(q, r, x, c, maxx):
    if c & (c - 1) == 0:
        e(f"s_lshr_b32 s{q}, s{x}, {c.bit_length()-1}"); e(f"s_and_b32 s{r}, s{x}, {c-1}"); return
    m = (1 << 16) // c + 1
    assert all((i * m) >> 16 == i // c for i in range(maxx)), (c, maxx)
    e(f"s_mul_i32 s{q}, s{x}, {m}"); e(f"s_lshr_b32 s{q}, s{q}, 16")
    e(f"s_mul_i32 s{r}, s{q}, {c}"); e(f"s_sub_u32 s{r}, s{x}, s{r}")

def swz(RB):
    m = RB % 256
    if m == 0: return 7, lambda k: (k & 3) | ((k >> 3) & 1) << 2
    if m == 128: return 3, lambda k: ((k >> 1) & 1) | ((k >> 3) & 1) << 1
    assert m in (64, 192)
    return 1, lambda k: (k >> 3) & 1
def emit_f(dst, k, RB, tmp, perm=False):
    m = RB % 256
    e(f"v_bfe_u32 v{dst}, v{k}, {2 if perm else 3}, 1")
    if m == 0:
        e(f"v_and_b32 v{tmp}, 3, v{k}"); e(f"v_lshl_or_b32 v{dst}, v{dst}, 2, v{tmp}")
    elif m == 128:
        e(f"v_bfe_u32 v{tmp}, v{k}, 1, 1"); e(f"v_lshl_or_b32 v{dst}, v{dst}, 1, v{tmp}")

class Op:
    def __init__(s, kind, n, stride, srd, soff, t0, nt, share=None, perm=False):
        s.perm = perm
        s.kind, s.n, s.stride, s.srd, s.soff, s.t0, s.nt, s.share = kind, n, stride, srd, soff, t0, nt, share
        s.bytes = n * 128
        s.ni = s.bytes // 1024 // 4
        assert s.bytes % 4096 == 0

def gemm_setup(ops, vb, swave, T):
    lane, t1, t2, t3, t4, t5 = T, T+1, T+2, T+3, T+4, T+5
    e(f"v_and_b32 v{lane}, 63, v0")
    off = 0
    for o in ops:
        o.lds = off; off += o.bytes
        if o.share:
            o.dv, o.rv, o.nrv = o.share.dv, o.share.rv, o.share.nrv; continue
        if o.kind == 'k':
            o.dv = vb; vb += 1
            e(f"v_lshrrev_b32 v{t1}, 3, v0")
            e(f"v_bfe_u32 v{t2}, v{t1}, 1, 3"); e(f"v_and_b32 v{t3}, 7, v0"); e(f"v_xor_b32 v{t2}, v{t2}, v{t3}")
            e(f"v_mul_u32_u24 v{t1}, {o.stride}, v{t1}"); e(f"v_lshl_add_u32 v{o.dv}, v{t2}, 4, v{t1}")
            o.rv = vb; o.nrv = 2; vb += 2
            e(f"v_and_b32 v{t1}, 15, v0"); e(f"v_bfe_u32 v{t2}, v0, 4, 2"); e(f"v_bfe_u32 v{t3}, v0, 1, 3")
            e(f"v_xor_b32 v{t2}, v{t2}, v{t3}"); e(f"v_lshlrev_b32 v{t1}, 7, v{t1}")
            e(f"v_lshl_add_u32 v{o.rv}, v{t2}, 4, v{t1}")
            if not isinstance(o.t0, int):
                e(f"v_mov_b32 v{t1}, {o.t0}"); e(f"v_lshl_add_u32 v{o.rv}, v{t1}, 11, v{o.rv}")
            e(f"v_xor_b32 v{o.rv+1}, 64, v{o.rv}")
        else:
            RB = 2 * o.n; cpr = RB // 16
            o.dv = vb; vb += o.ni
            for i in range(o.ni):
                e(f"v_add_u32 v{t1}, {256*i}, v0")
                vdivmod(t2, t3, t1, cpr, 256 * o.ni)
                emit_f(t4, t2, RB, t5, o.perm)
                e(f"v_lshlrev_b32 v{t4}, 1, v{t4}"); e(f"v_xor_b32 v{t3}, v{t3}, v{t4}")
                e(f"v_mul_u32_u24 v{t2}, {o.stride}, v{t2}"); e(f"v_lshl_add_u32 v{o.dv+i}, v{t3}, 4, v{t2}")
            mask, _ = swz(RB)
            o.nrv = min(mask + 1, o.nt); o.rv = vb; vb += o.nrv
            e(f"v_bfe_u32 v{t1}, v0, 4, 2"); e(f"v_bfe_u32 v{t2}, v0, 2, 2")
            e(f"v_lshl_add_u32 v{t1}, v{t1}, {2 if o.perm else 3}, v{t2}")
            emit_f(t4, t1, RB, t5, o.perm)
            e(f"v_mul_u32_u24 v{t1}, {RB}, v{t1}"); e(f"v_and_b32 v{t2}, 3, v0")
            e(f"v_lshl_add_u32 v{t1}, v{t2}, 3, v{t1}")
            for j in range(o.nrv):
                if isinstance(o.t0, int): e(f"v_mov_b32 v{t2}, {o.t0 + j}")
                else: e(f"v_mov_b32 v{t2}, {o.t0}"); e(f"v_add_u32 v{t2}, {j}, v{t2}")
                e(f"v_xor_b32 v{t2}, v{t2}, v{t4}"); e(f"v_lshl_add_u32 v{o.rv+j}, v{t2}, 5, v{t1}")
    return vb, off

def gemm_dma(ops, stage_off, swl, stmp, aux=""):
    for o in ops:
        for i in range(o.ni):
            c = o.lds + i * 4096
            if isinstance(stage_off, int): e(f"s_add_u32 m0, s{swl}, {stage_off + c}")
            else: e(f"s_add_u32 s{stmp}, {stage_off}, {c}"); e(f"s_add_u32 m0, s{swl}, s{stmp}")
            if o.kind == 'k':
                e(f"s_add_u32 s{stmp}, s{o.soff}, {i*32*o.stride}")
                e(f"buffer_load_dwordx4 v{o.dv}, {sr(o.srd,4)}, s{stmp} offen {aux} lds")
            else:
                e("s_nop 0")
                e(f"buffer_load_dwordx4 v{o.dv+i}, {sr(o.srd,4)}, s{o.soff} offen {aux} lds")
        e(f"s_add_u32 s{o.soff}, s{o.soff}, {128 if o.kind=='k' else 64*o.stride}")

def frag_reads(o, T, kk, dst, base):
    t0 = o.t0 if isinstance(o.t0, int) else 0
    if o.kind == 'k':
        return [f"ds_read_b128 {vr(dst,4)}, v{o.rv+kk} offset:{base + o.lds + (t0+T)*2048}"]
    RB = 2 * o.n
    j = T % o.nrv; hi = (T - j) * 32
    return [f"ds_read_b64_tr_b16 {vr(dst+2*hh,2)}, v{o.rv+j} offset:{base + o.lds + (32*kk+(16 if o.perm else 4)*hh)*RB + hi}" for hh in range(2)]

def gemm_compute(mf, base, fb, nbuf, extra=None):
    seq = [(kk,) + m for kk in range(2) for m in mf]
    need = []; last = {}
    for i, (kk, acc, a, ta, b, tb) in enumerate(seq):
        for key in ((a, ta, kk), (b, tb, kk)):
            if key not in last: need.append(key)
            last[key] = i
    free = list(range(nbuf)); slot = {}; done_at = {}; issued = 0; ni = 0
    def issue_some(maxn):
        nonlocal ni, issued
        n = 0
        while ni < len(need) and free and n < maxn:
            key = need[ni]; ni += 1; s = free.pop(0); slot[key] = s
            for ins in frag_reads(key[0], key[1], key[2], fb + 4 * s, base): e(ins); issued += 1
            done_at[key] = issued; n += 1
    waited = 0
    extra = list(extra or [])
    for i, (kk, acc, a, ta, b, tb) in enumerate(seq):
        ka, kb = (a, ta, kk), (b, tb, kk)
        while ka not in slot or kb not in slot: issue_some(1)
        if i == 0: issue_some(4)
        req = max(done_at[ka], done_at[kb])
        if req > waited:
            c = min(issued - req, 15); e(f"s_waitcnt lgkmcnt({c})"); waited = issued - c
        e(f"v_mfma_f32_16x16x32_bf16 {R(acc,4)}, {vr(fb+4*slot[ka],4)}, {vr(fb+4*slot[kb],4)}, {R(acc,4)}")
        for key in {ka, kb}:
            if last[key] == i: free.append(slot[key])
        issue_some(1)
        if extra:
            for x in extra.pop(0): e(x)
    for xs in extra:
        for x in xs: e(x)

def capture(fn):
    n = len(L); fn(); out = [x.strip() for x in L[n:]]; del L[n:]; return out

def gemm_loop(ops, mf, nk, ns, stage, fb, nbuf, swl, stmp, scnt, aux=""):
    npd = sum(o.ni for o in ops)
    rvs = sorted({o.rv + j for o in ops for j in range(o.nrv)})
    big = ns * stage > 65536
    for p in range(ns - 1): gemm_dma(ops, p * stage, swl, stmp, aux)
    def step(s, issue, pend):
        e(f"s_waitcnt vmcnt({pend*npd})"); e("s_barrier")
        ex = []
        if issue:
            ins = capture(lambda: gemm_dma(ops, ((s + ns - 1) % ns) * stage, swl, stmp, aux))
            cur = []
            for x in ins:
                cur.append(x)
                if x.startswith("buffer_load"): ex.append(cur); cur = []
            ex[-1] += cur
        gemm_compute(mf, 0 if big else s * stage, fb, nbuf, ex)
        if big:
            d = stage if s < ns - 1 else -(ns - 1) * stage
            for r in rvs: e(f"v_add_u32 v{r}, {d & 0xffffffff:#x}, v{r}")
    nmain = nk - (ns - 1)
    nloop = nmain // ns if scnt is not None else 0
    k = 0
    if nloop > 1:
        lp = uid("kl"); e(f"s_mov_b32 s{scnt}, {nloop}"); lab(lp)
        for s in range(ns): step(s, True, ns - 2)
        e(f"s_sub_u32 s{scnt}, s{scnt}, 1"); e(f"s_cmp_lg_u32 s{scnt}, 0"); e(f"s_cbranch_scc1 {lp}")
        k = nloop * ns
    while k < nk:
        step(k % ns, k < nmain, min(ns - 2, nk - 1 - k)); k += 1
    if big and nk % ns:
        for r in rvs: e(f"v_add_u32 v{r}, {(-(nk % ns) * stage) & 0xffffffff:#x}, v{r}")
def zero(b, n):
    for i in range(n):
        e(f"v_mov_b32 v{b+i}, 0" if b + i < 256 else f"v_accvgpr_write_b32 a{b+i-256}, 0")
```

```python
from common import *
LOG2E = 1.4426950408889634
import struct
def f2u(x): return "%#x" % struct.unpack("<I", struct.pack("<f", x))[0]
def guard(n):
    ex = uid("go"); e(f"s_cmp_lt_u32 s2, {n}"); e(f"s_cbranch_scc1 {ex}"); e("s_endpgm"); lab(ex)
def wave_id(sw, swl):
    e("v_lshrrev_b32 v1, 6, v0"); e("s_nop 0"); e(f"v_readfirstlane_b32 s{sw}, v1"); e(f"s_lshl_b32 s{swl}, s{sw}, 10")
def red16(op, v, t):
    for n in (8, 4, 2, 1):
        e("s_nop 1"); e(f"{op}_dpp v{v}, v{v}, v{v} row_ror:{n} row_mask:0xf bank_mask:0xf")
def xswap(kind, op, v, t):
    e(f"v_mov_b32 v{t}, v{v}"); e("s_nop 1"); e(f"v_permlane{kind}_swap_b32 v{v}, v{t}"); e("s_nop 0"); e(f"{op} v{v}, v{v}, v{t}")

def ln_body(ssrc, sdst, double):
    e("v_lshrrev_b32 v1, 5, v0"); e("s_lshl_b32 s3, s2, 3"); e("v_add_u32 v1, s3, v1")
    e("v_mul_u32_u24 v1, 1152, v1"); e("v_and_b32 v2, 31, v0"); e("v_lshl_add_u32 v1, v2, 2, v1")
    for i in range(9): e(f"buffer_load_dword v{10+i}, v1, {sr(ssrc,4)}, 0 offen offset:{128*i}")
    e("s_waitcnt vmcnt(0)")
    for i in range(9):
        e(f"v_lshlrev_b32 v{20+2*i}, 16, v{10+i}"); e(f"v_and_b32 v{21+2*i}, 0xffff0000, v{10+i}")
    e("v_add_f32 v3, v20, v21")
    for i in range(2, 18): e(f"v_add_f32 v3, v3, v{20+i}")
    red16("v_add_f32", 3, 4); xswap(16, "v_add_f32", 3, 4)
    e(f"v_mul_f32 v3, {f2u(1/576)}, v3")
    for i in range(18): e(f"v_sub_f32 v{20+i}, v{20+i}, v3")
    e("v_mul_f32 v3, v20, v20")
    for i in range(1, 18): e(f"v_fmac_f32 v3, v{20+i}, v{20+i}")
    red16("v_add_f32", 3, 4); xswap(16, "v_add_f32", 3, 4)
    e(f"v_mul_f32 v3, {f2u(1/576)}, v3"); e(f"v_add_f32 v4, {f2u(1e-5)}, v3"); e("v_rsq_f32 v4, v4"); e("s_nop 0")
    if double:
        e("v_mul_f32 v3, v3, v4"); e("v_mul_f32 v3, v3, v4"); e(f"v_add_f32 v3, {f2u(1e-5)}, v3")
        e("v_rsq_f32 v3, v3"); e("s_nop 0"); e("v_mul_f32 v4, v4, v3")
    for i in range(18): e(f"v_mul_f32 v{20+i}, v{20+i}, v4")
    for i in range(9):
        e(f"v_cvt_pk_bf16_f32 v{10+i}, v{20+2*i}, v{21+2*i}")
        e(f"buffer_store_dword v{10+i}, v1, {sr(sdst,4)}, 0 offen offset:{128*i}")

def k_init():
    kstart("init_kernel"); guard(256)
    e(f"s_load_dwordx2 s[4:5], s[0:1], {ARG['ws']}"); srd_arg(8, 'x'); srd_arg(12, 'mem0'); e("s_waitcnt lgkmcnt(0)")
    srd_ws(16, 'xn', 4); srd_ws(20, 'p1', 4); srd_ws(24, 'mh', 4); srd_ws(28, 'flg', 4); srd_ws(32, 'mh', 4)
    e("s_mov_b32 s34, 9216")
    e("s_lshl_b32 s3, s2, 8"); e("v_add_u32 v40, s3, v0"); e("v_lshlrev_b32 v41, 4, v40")
    e("v_and_b32 v42, 7, v40"); e("v_mul_u32_u24 v42, 1152, v42"); e("v_lshrrev_b32 v43, 3, v40"); e("v_lshl_add_u32 v42, v43, 4, v42")
    e("buffer_load_dwordx4 v[44:47], v42, s[12:15], 0 offen")
    for i in range(4): e(f"v_mov_b32 v{48+i}, -1"); e(f"v_mov_b32 v{52+i}, 0")
    e("s_mov_b32 s6, 1048576"); e("s_mov_b32 s7, 9216")
    e("buffer_store_dwordx4 v[48:51], v41, s[20:23], 0 offen"); e("buffer_store_dwordx4 v[48:51], v41, s[20:23], s6 offen")
    e("buffer_store_dwordx4 v[48:51], v41, s[24:27], s7 offen"); e("buffer_store_dwordx4 v[52:55], v41, s[28:31], 0 offen")
    ln_body(8, 16, False)
    e("buffer_store_dwordx4 v[44:47], v41, s[32:35], 0 offen")
    e("s_endpgm")
    return kdesc("init_kernel", 56, 56)

def k_ln2():
    kstart("ln2_kernel"); guard(256)
    e(f"s_load_dwordx2 s[4:5], s[0:1], {ARG['ws']}"); e("s_waitcnt lgkmcnt(0)")
    srd_ws(8, 'h', 4); srd_ws(16, 'hn', 4)
    ln_body(8, 16, True); e("s_endpgm")
    return kdesc("ln2_kernel", 40, 40)

def attn_body(sq, sk, sv, skm, stask, mid, aux="sc1"):
    Q, K, V, KM, VM, S, O = 8, 40, 72, 104, 120, 136, 8
    e("v_and_b32 v1, 63, v0"); e("v_lshlrev_b32 v2, 4, v1"); e(f"s_lshl_b32 s40, s{stask}, 13"); e("s_add_u32 s41, s40, 4096")
    for b, s in ((K, sk), (Q, sq), (V, sv)):
        for i in range(8): e(f"buffer_load_dwordx4 {vr(b+4*i,4)}, v2, {sr(s,4)}, s{40+i//4} offen offset:{(i%4)*1024} {aux}")
    e("v_and_b32 v3, 15, v1"); e("v_lshrrev_b32 v4, 4, v1"); e("v_lshlrev_b32 v5, 2, v4"); e("v_sub_u32 v5, v3, v5")
    tiles = [(0, 'm'), (0, 0), (1, 'm'), (1, 0), (1, 1)]
    def smm(mem):
        for ec in range(4):
            for n, (tt, kt) in enumerate(tiles):
                if (kt == 'm') != mem: continue
                a = KM + 4 * ec if kt == 'm' else K + 4 * (2 * ec + kt)
                e(f"v_mfma_f32_16x16x32_bf16 {vr(S+4*n,4)}, {vr(a,4)}, {vr(Q+4*(2*ec+tt),4)}, {vr(S+4*n,4) if ec else 0}")
    e("s_waitcnt vmcnt(8)"); smm(False); mid()
    for b, o in ((KM, 0), (VM, 1024)):
        for i in range(4): e(f"buffer_load_dwordx4 {vr(b+4*i,4)}, v2, {sr(skm,4)}, s{40+i//2} offen offset:{(i%2)*2048+o} {aux}")
    e("s_waitcnt vmcnt(4)"); smm(True)
    e("s_nop 7"); e(f"v_mov_b32 v7, {f2u(-1e30)}")
    for i in range(4):
        e(f"v_cmp_le_i32 vcc, {i}, v5"); e("s_nop 1")
        for n in (1, 4): e(f"v_cndmask_b32 v{S+4*n+i}, v7, v{S+4*n+i}, vcc")
    e(f"s_mov_b32 s44, {f2u(128**-0.5*LOG2E)}")
    P = 160
    for tt, rs in ((0, list(range(S, S+8))), (1, list(range(S+8, S+20)))):
        m, t, l = 156, 157, 158
        e(f"v_max_f32 v{m}, v{rs[0]}, v{rs[1]}")
        for i in range(2, len(rs), 2): e(f"v_max3_f32 v{m}, v{m}, v{rs[i]}, v{rs[i+1]}")
        xswap(32, "v_max_f32", m, t); xswap(16, "v_max_f32", m, t)
        e(f"v_mul_f32 v{m}, s44, v{m}")
        for r in rs: e(f"v_fma_f32 v{r}, v{r}, s44, -v{m}")
        for r in rs: e(f"v_exp_f32 v{r}, v{r}")
        e(f"v_add_f32 v{l}, v{rs[0]}, v{rs[1]}"); e(f"v_add_f32 v{l}, v{l}, v{rs[2]}"); e(f"v_add_f32 v{l}, v{l}, v{rs[3]}")
        e(f"v_mul_f32 v{l}, 0.5, v{l}")
        for r in rs[4:]: e(f"v_add_f32 v{l}, v{l}, v{r}")
        xswap(32, "v_add_f32", l, t); xswap(16, "v_add_f32", l, t)
        e(f"v_rcp_f32 v{l}, v{l}"); e("s_nop 0")
        for r in rs: e(f"v_mul_f32 v{r}, v{r}, v{l}")
        p = P + 8 * tt
        e(f"v_cvt_pk_bf16_f32 v{p+4}, v{rs[0]}, v{rs[1]}"); e(f"v_cvt_pk_bf16_f32 v{p+5}, v{rs[2]}, v{rs[3]}")
        for i in range(4):
            if 4 + 2 * i < len(rs): e(f"v_cvt_pk_bf16_f32 v{p+i}, v{rs[4+2*i]}, v{rs[5+2*i]}")
            else: e(f"v_mov_b32 v{p+i}, 0")
    e("s_waitcnt vmcnt(0)"); e("s_nop 1")
    for tt in range(2):
        for et in range(8):
            o = O + 4 * (8 * tt + et)
            e(f"v_mfma_f32_16x16x32_bf16 {vr(o,4)}, {vr(V+4*et,4)}, {vr(P+8*tt,4)}, 0")
        for et in range(8):
            o = O + 4 * (8 * tt + et)
            e(f"v_mfma_f32_16x16x16_bf16 {vr(o,4)}, {vr(VM+4*(et%4)+2*(et//4),2)}, {vr(P+8*tt+4,2)}, {vr(o,4)}")
    e("s_nop 7")
    for tt in range(2):
        for m in range(4):
            o = O + 4 * (8 * tt + 2 * m); d = 72 + 16 * tt + 4 * m
            for i in range(4): e(f"v_cvt_pk_bf16_f32 v{d+i}, v{o+2*i}, v{o+2*i+1}")

def mlp1_epi(ACC, T, sft, sdt, sdw, sfw, sb, su):
    e(f"s_lshl_b32 s42, s{sft}, 3"); e(f"s_add_u32 s42, s42, s{sfw}"); e("s_lshl_b32 s42, s42, 5")
    e("v_lshlrev_b32 v4, 3, v3")
    for j in range(4): e(f"buffer_load_dwordx2 {vr(T+2*j,2)}, v4, {sr(sb,4)}, s42 offen offset:{32*j}")
    e(f"s_mul_i32 s43, s{sdt}, 6"); e(f"s_add_u32 s43, s43, s{sdw}"); e(f"s_mul_i32 s43, s43, {16*9216}"); e("s_add_u32 s43, s43, s42")
    e("v_mul_u32_u24 v5, 9216, v2"); e("v_lshl_add_u32 v5, v3, 4, v5")
    e("s_waitcnt vmcnt(0)")
    for j in range(4):
        for q in range(4):
            e(f"v_lshlrev_b32 v{T+8+4*j+q}, 16, v{T+2*j+q//2}" if q % 2 == 0 else f"v_and_b32 v{T+8+4*j+q}, 0xffff0000, v{T+2*j+q//2}")
    c0 = -2 * 0.7978845608028654 * LOG2E
    e(f"s_mov_b32 s45, {f2u(c0*0.044715)}"); e(f"v_mov_b32 v6, {f2u(c0)}")
    for i in range(3):
        for j in range(4):
            a = ACC + 4 * (i * 4 + j); t = T + 24
            for q in range(4): e(f"v_add_f32 v{a+q}, v{a+q}, v{T+8+4*j+q}")
            for q in range(4): e(f"v_mul_f32 v{t+q}, v{a+q}, v{a+q}")
            for q in range(4): e(f"v_fma_f32 v{t+q}, v{t+q}, s45, v6")
            for q in range(4): e(f"v_mul_f32 v{t+q}, v{t+q}, v{a+q}")
            for q in range(4): e(f"v_exp_f32 v{t+q}, v{t+q}")
            for q in range(4): e(f"v_add_f32 v{t+q}, 1.0, v{t+q}")
            for q in range(4): e(f"v_rcp_f32 v{t+q}, v{t+q}")
            for q in range(4): e(f"v_mul_f32 v{a+q}, v{a+q}, v{t+q}")
        for m in range(2):
            a = ACC + 4 * (i * 4 + 2 * m)
            for q in range(4): e(f"v_cvt_pk_bf16_f32 v{a+q}, v{a+2*q}, v{a+2*q+1}")
            e(f"buffer_store_dwordx4 {vr(a,4)}, v5, {sr(su,4)}, s43 offen offset:{64*m}")
        e(f"s_add_u32 s43, s43, {16*9216}")

def gemm_kernel(name, which):
    n_wg = {'B': 192, 'C': 216, 'D': 192}[which]
    kstart(name); guard(n_wg)
    e(f"s_load_dwordx2 s[4:5], s[0:1], {ARG['ws']}")
    if which == 'B': srd_arg(12, 'wo'); srd_arg(16, 'x')
    if which == 'C': srd_arg(12, 'w1'); srd_arg(16, 'b1')
    if which == 'D': srd_arg(12, 'w2'); srd_arg(24, 'b2'); srd_arg(20, 'out')
    wave_id(6, 7); e("s_waitcnt lgkmcnt(0)")
    e("s_and_b32 s30, s2, 7"); e(f"s_mul_i32 s30, s30, {n_wg//8}"); e("s_lshr_b32 s31, s2, 3"); e("s_add_u32 s30, s30, s31")
    sdivmod(31, 32, 30, 6, 256)
    e("s_and_b32 s33, s6, 1"); e("s_lshr_b32 s34, s6, 1"); e("s_mul_i32 s35, s33, 3")
    if which == 'B':
        srd_ws(8, 'o', 4); srd_ws(20, 'h', 4); e("s_lshl_b32 s36, s34, 1")
        X = Op('t', 96, 1152, 12, 40, "s35", 3, perm=True); Y = Op('k', 64, 8192, 8, 41, "s36", 2)
        e("s_mul_i32 s40, s32, 192"); e("s_lshl_b32 s41, s31, 19"); nk, ns = 64, 4
    if which == 'C':
        srd_ws(8, 'hn', 4); srd_ws(20, 'u', 4); e("s_lshl_b32 s36, s34, 2")
        X = Op('t', 96, 1152, 8, 40, "s35", 3); Y = Op('t', 128, 9216, 12, 41, "s36", 4)
        e("s_mul_i32 s40, s32, 192"); e("s_lshl_b32 s41, s31, 8"); nk, ns = 32, 4
    if which == 'D':
        srd_ws(8, 'u', 4); srd_ws(16, 'h', 4); e("s_lshl_b32 s36, s34, 1")
        X = Op('k', 96, 9216, 8, 40, "s35", 3); Y = Op('t', 64, 4096, 12, 41, "s36", 2, perm=True)
        e(f"s_mul_i32 s40, s32, {96*9216}"); e("s_lshl_b32 s41, s31, 7"); nk, ns = 72, 4
    vb, stage = gemm_setup([X, Y], 8, 6, 2)
    ACC = 32; assert vb <= ACC
    na = X.nt * Y.nt; FB = ACC + 4 * na
    zero(ACC, 4 * na)
    if which == 'C': mf = [(ACC + 4 * (i * Y.nt + j), Y, j, X, i) for i in range(X.nt) for j in range(Y.nt)]
    else: mf = [(ACC + 4 * (i * Y.nt + j), X, i, Y, j) for i in range(X.nt) for j in range(Y.nt)]
    nbuf = 12
    gemm_loop([X, Y], mf, nk, ns, stage, FB, nbuf, 7, 38, 39)
    e("v_and_b32 v2, 15, v0"); e("v_bfe_u32 v3, v0, 4, 2")
    T = FB
    if which in 'BD':
        e("s_lshl_b32 s42, s31, 2"); e("s_add_u32 s42, s42, s36"); e("s_lshl_b32 s42, s42, 4")
        e("v_add_u32 v4, s42, v2"); e("v_mul_u32_u24 v5, 1152, v4"); e("v_lshl_add_u32 v5, v3, 3, v5")
        e("s_mul_i32 s43, s32, 192"); e("s_lshl_b32 s44, s35, 5"); e("s_add_u32 s43, s43, s44"); e(f"s_add_u32 s44, s43, {16*1152}")
        for i in range(3):
            for j in range(2): e(f"buffer_load_dwordx2 {vr(T+2*(i*2+j),2)}, v5, s[16:19], s{43+j} offen offset:{32*i}")
        if which == 'D':
            e("v_lshlrev_b32 v4, 1, v4")
            for j in range(2): e(f"buffer_load_ushort v{6+j}, v4, s[24:27], 0 offen offset:{32*j}")
        e("s_waitcnt vmcnt(0)")
        if which == 'D':
            for j in range(2): e(f"v_lshlrev_b32 v{6+j}, 16, v{6+j}")
        for i in range(3):
            for j in range(2):
                a = ACC + 4 * (i * 2 + j); t = T + 2 * (i * 2 + j)
                for q in range(4):
                    if which == 'D': e(f"v_add_f32 v{a+q}, v{a+q}, v{6+j}")
                    e(f"v_lshlrev_b32 v1, 16, v{t+q//2}" if q % 2 == 0 else f"v_and_b32 v1, 0xffff0000, v{t+q//2}")
                    e(f"v_add_f32 v{a+q}, v{a+q}, v1")
                e(f"v_cvt_pk_bf16_f32 v{a}, v{a}, v{a+1}"); e(f"v_cvt_pk_bf16_f32 v{a+1}, v{a+2}, v{a+3}")
                e(f"buffer_store_dwordx2 {vr(a,2)}, v5, s[20:23], s{43+j} offen offset:{32*i}")
    else:
        mlp1_epi(ACC, T, 31, 32, 35, 36, 16, 20)
    e("s_endpgm")
    nv = (FB + 4 * nbuf + 7) // 8 * 8
    return kdesc(name, nv, nv), n_wg, ns * stage
```

```python
import sys
from common import *
import simple, chain
NAME = "sequential_preLN__memory_aug_recurrent_mem_tr__mixer_token_mlp__prompt"
D = []; la = []
D.append(simple.k_init()); la.append(("init_kernel", 256, 0))
D.append(chain.k_main()); la.append(("main_kernel", 256, 163840))
D.append(simple.k_mlp2()); la.append(("mlp2_kernel", 192, 163840))
D.append(simple.k_fin()); la.append(("fin_kernel", 576, 0))
ref = open(f"cdna_kernels/{NAME}.s.ref").read().split("\n")
hdr = [x for x in ref if x.startswith(";") and "@launch" not in x and "Override" not in x and "grid=ceil" not in x]
hdr += [f"; @launch kernel={k} grid=({g},1,1) block=({512 if 'mlp2' in k else 256},1,1) lds={l}" for k, g, l in la]
out = "\n".join(hdr) + '\n.amdgcn_target "amdgcn-amd-amdhsa--gfx950"\n.text\n' + "\n".join(L) + '\n.section .rodata,"a"\n' + "\n".join(D) + "\n"
open(sys.argv[1] if len(sys.argv) > 1 else f"cdna_kernels/{NAME}.s", "w").write(out)
import json; json.dump(WS, open("ws.json", "w"))
```

```python
from common import *
from simple import *
import os
PROF = int(os.environ.get('PROF', 0))
_st = [0]
def stamp():
    if PROF:
        e(f's_memtime s[{8+2*_st[0]}:{9+2*_st[0]}]'); _st[0] += 1
X = os.environ.get('X', '')
MI, SREG, WB = 0, 9216, 15360
WV_IMG, WO_IMG = WB, WB + 73728
LDS_A = WB + 147456
def wop(i):
    return 256 + 8 * i if i < 32 else 80 + 8 * (i - 32)
WQ = lambda j, t: wop(2 * j + t)
WK = lambda j, t: wop(18 + 2 * j + t)
WVA = lambda j: wop(36 + j)
WO0 = lambda i: wop(45 + i)
class DS:
    def __init__(s): s.n = 0; s.tag = {}; s.w = 0
    def op(s, ins, tag=None):
        e(ins); s.n += 1
        if tag is not None: s.tag[tag] = s.n
    def need(s, tag):
        r = s.tag[tag]
        if r > s.w:
            c = min(s.n - r, 15); e(f"s_waitcnt lgkmcnt({c})"); s.w = s.n - c
    def drain(s): e("s_waitcnt lgkmcnt(0)"); s.w = s.n
def smf(d, a, b): e(f"v_smfmac_f32_16x16x64_bf16 {vr(d,4)}, {vr(a,4)}, {R(b,8)}, v1")
def cvt(d, a, n):
    for i in range(n): e(f"v_cvt_pk_bf16_f32 v{d+i}, v{a+2*i}, v{a+2*i+1}")
SW, SWL, SH = 6, 7, 3
S_WQ, S_WK, S_WV, S_WO = 8, 12, 16, 20
S_XN, S_QF, S_KF, S_VF, S_FLG = 24, 28, 32, 36, 48
S_P1, S_MH, S_KVM = 52, 56, 60
TMO = 64; STEP = 65

def roles():
    e("s_getreg_b32 s70, hwreg(HW_REG_XCC_ID, 0, 4)"); e("s_and_b32 s70, s70, 7")
    e(f"s_cmp_lg_u32 s{SW}, 0"); e("s_cbranch_scc1 role_wait")
    e("s_lshl_b32 s71, s70, 2"); e("v_mov_b32 v2, s71"); e("v_mov_b32 v3, 1"); e("s_mov_b64 exec, 1")
    e("buffer_atomic_add v3, v2, s[72:75], 0 offen sc0"); e("s_waitcnt vmcnt(0)"); e("s_mov_b64 exec, -1")
    e("v_readfirstlane_b32 s71, v3"); e("v_lshlrev_b32 v2, 2, v0"); e("s_mov_b32 s76, 200000")
    lab("role_poll")
    e("buffer_load_dword v3, v2, s[72:75], 0 offen sc1"); e("s_waitcnt vmcnt(0)")
    for i in range(8): e(f"v_readlane_b32 s{80+i}, v3, {i}")
    e("s_mov_b32 s77, 0")
    for i in range(8): e(f"s_add_u32 s77, s77, s{80+i}")
    e("s_cmp_eq_u32 s77, 256"); e("s_cbranch_scc1 role_calc")
    e("s_sub_u32 s76, s76, 1"); e("s_cmp_lg_u32 s76, 0"); e("s_cbranch_scc1 role_poll")
    e("s_mov_b32 s77, -1"); e("s_branch role_pub")
    lab("role_calc")
    e("s_mov_b32 s78, 7"); e("s_mov_b32 s77, s71")
    for i in range(7, -1, -1):
        e(f"s_cmp_ge_u32 s{80+i}, 32"); e(f"s_cselect_b32 s78, {i}, s78")
        e(f"s_cmp_gt_u32 s70, {i}"); e(f"s_cselect_b32 s79, s{80+i}, 0"); e("s_add_u32 s77, s77, s79")
    e("s_cmp_ge_u32 s70, s78"); e("s_cselect_b32 s79, 32, 0"); e("s_sub_u32 s77, s77, s79")
    e("s_cmp_lg_u32 s70, s78"); e("s_cbranch_scc1 role_pub")
    e("s_cmp_ge_u32 s71, 32"); e("s_cbranch_scc1 role_pub")
    e("s_add_u32 s77, s71, 0x1000")
    lab("role_pub")
    e("v_mov_b32 v2, 0"); e("v_mov_b32 v3, s77"); e("ds_write_b32 v2, v3"); e("s_waitcnt lgkmcnt(0)")
    lab("role_wait")
    e("s_barrier"); e("v_mov_b32 v2, 0"); e("ds_read_b32 v3, v2"); e("s_waitcnt lgkmcnt(0)")
    e(f"v_readfirstlane_b32 s{SH}, v3"); e("s_barrier")
    e(f"s_cmp_eq_u32 s{SH}, -1"); e("s_cbranch_scc0 role_ok"); e("s_endpgm"); lab("role_ok")

def worker():
    e(f"s_lshl_b32 s66, s{SW}, 1")
    X = Op('k', 128, 1152, S_XN, 67, "s66", 2)
    Yq = Op('t', 128, 8192, S_WQ, 68, 0, 8); Yk = Op('t', 128, 8192, S_WK, 69, 0, 8, share=Yq); Yv = Op('t', 128, 8192, S_WV, 70, 0, 8, share=Yq)
    ops = [X, Yq, Yk, Yv]
    vb, stage = gemm_setup(ops, 8, SW, 2); assert vb <= 30 and stage == 65536
    e("v_and_b32 v30, 63, v0"); e("v_lshlrev_b32 v30, 4, v30")
    sdivmod(71, 72, SH, 7, 256)
    lab("wk_task")
    e(f"s_mul_i32 s67, s72, {128*1152}"); e("s_lshl_b32 s68, s71, 8"); e("s_mov_b32 s69, s68"); e("s_mov_b32 s70, s68")
    zero(256, 192)
    acc = lambda m, et, tt: 256 + 4 * ((m * 8 + et) * 2 + tt)
    mf = []
    for m, Y in enumerate((Yq, Yk, Yv)):
        for et in range(8):
            for tt in range(2): mf.append((acc(m, et, tt), Y, et, X, tt) if m < 2 else (acc(m, et, tt), X, tt, Y, et))
    gemm_loop(ops, mf, 9, 2, stage, 32, 12, SWL, 73, 74)
    e(f"s_lshl_b32 s75, s72, 2"); e(f"s_add_u32 s75, s75, s{SW}"); e("s_lshl_b32 s75, s75, 5"); e("s_add_u32 s75, s75, s71")
    e("s_lshl_b32 s75, s75, 13"); e("s_add_u32 s76, s75, 4096"); e("s_nop 7")
    n = 0
    for m, srd in ((1, S_KF), (2, S_VF), (0, S_QF)):
        for f in range(8):
            a0, a1 = (acc(m, f // 2 * 2, f % 2), acc(m, f // 2 * 2 + 1, f % 2)) if m < 2 else (acc(m, f, 0), acc(m, f, 1))
            t = 32 + 8 * (n % 16); n += 1
            for i in range(4): e(f"v_accvgpr_read_b32 v{t+i}, a{a0-256+i}"); e(f"v_accvgpr_read_b32 v{t+4+i}, a{a1-256+i}")
            cvt(t, t, 4)
            e(f"buffer_store_dwordx4 {vr(t,4)}, v30, {sr(srd,4)}, s{75+f//4} offen offset:{(f%4)*1024} sc1")
    e("s_waitcnt vmcnt(0)"); e("s_barrier")
    e("s_lshl_b32 s75, s72, 5"); e("s_add_u32 s75, s75, s71"); e("s_lshl_b32 s75, s75, 2")
    e(f"s_cmp_lg_u32 s{SW}, 0"); e("s_cbranch_scc1 wk_nof")
    e("v_mov_b32 v2, 0"); e("v_mov_b32 v3, 1"); e("s_mov_b64 exec, 1")
    e(f"buffer_store_dword v3, v2, {sr(S_FLG,4)}, s75 offen sc1"); e("s_mov_b64 exec, -1")
    lab("wk_nof")
    e("s_add_u32 s72, s72, 7"); e("s_cmp_lt_u32 s72, 16"); e("s_cbranch_scc1 wk_task")
    phase2()

def pollv(off, cmp, nl=None):
    a, o = uid("pv"), uid("pvo")
    if nl: e(f"s_cmp_lg_u32 s{SW}, 0"); e(f"s_cbranch_scc1 {o}")
    lab(a); e(f"buffer_load_dword v195, v194, {sr(S_FLG,4)}, s{off} offen sc1"); e("s_waitcnt vmcnt(0)")
    e(cmp); e(f"s_cbranch_vccz {o}"); poll_tmo(a, o); lab(o)
    if nl: e("s_barrier")
def flag_store(off, val):
    e("v_mov_b32 v194, 0"); e(f"v_mov_b32 v195, {val}"); e("s_mov_b64 exec, 1")
    e(f"buffer_store_dword v195, v194, {sr(S_FLG,4)}, s{off} offen sc1"); e("s_mov_b64 exec, -1")
S_HP, S_HN, S_W1, S_U, S_B1, S_X, S_H = 8, 12, 16, 24, 52, 56, 76
def ln_role():
    e(f"s_and_b32 s86, s{SH}, 7"); e("s_lshl_b32 s86, s86, 2"); e(f"s_add_u32 s86, s86, s{SW}"); e("s_lshl_b32 s87, s73, 5"); e("s_add_u32 s86, s86, s87")
    e("v_and_b32 v1, 63, v0"); e("v_lshlrev_b32 v2, 4, v1"); e("v_lshlrev_b32 v3, 3, v1"); e("s_lshl_b32 s87, s73, 8"); e("s_add_u32 s87, s87, 4096")
    e("s_mov_b32 s88, -1"); e("s_mov_b32 s89, 0xffff")
    e("s_mul_i32 s90, s86, 18432"); e("s_mul_i32 s91, s86, 1152"); e("v_mov_b32 v4, 0"); e("v_mov_b32 v5, 0"); e("s_mov_b64 exec, s[88:89]")
    for r in range(3): e(f"buffer_load_dwordx2 {vr(8+2*r,2)}, v3, {sr(S_X,4)}, s91 offen offset:{384*r}")
    e("v_lshlrev_b32 v194, 2, v1"); pollv(87, "v_cmp_eq_u32 vcc, 0, v195", True)
    if PROF: e("s_memtime s[94:95]")
    for hg in range(8):
        for r in range(3): e(f"buffer_load_dwordx4 {vr(32+12*hg+4*r,4)}, v2, {sr(S_HP,4)}, s90 offen offset:{768*r} sc1")
        e("s_add_u32 s90, s90, 2304")
    for i in range(6): e(f"v_lshlrev_b32 v{16+2*i}, 16, v{8+i}"); e(f"v_and_b32 v{17+2*i}, 0xffff0000, v{8+i}")
    for hg in range(8):
        e(f"s_waitcnt vmcnt({21-3*hg})")
        for i in range(0, 12, 2): e(f"v_pk_add_f32 {vr(16+i,2)}, {vr(16+i,2)}, {vr(32+12*hg+i,2)}")
    for i in range(6): e(f"v_cvt_pk_bf16_f32 v{8+i}, v{16+2*i}, v{17+2*i}")
    for i in range(6): e(f"v_lshlrev_b32 v{16+2*i}, 16, v{8+i}"); e(f"v_and_b32 v{17+2*i}, 0xffff0000, v{8+i}")
    for i in range(12): e(f"v_add_f32 v4, v4, v{16+i}")
    def allred(v): e("s_mov_b64 exec, -1"); red16("v_add_f32", v, 6); xswap(16, "v_add_f32", v, 6); xswap(32, "v_add_f32", v, 6); e(f"v_mul_f32 v{v}, {f2u(1/576)}, v{v}"); e("s_mov_b64 exec, s[88:89]")
    if PROF: e("s_memtime s[96:97]")
    allred(4)
    for i in range(12): e(f"v_sub_f32 v{16+i}, v{16+i}, v4"); e(f"v_fmac_f32 v5, v{16+i}, v{16+i}")
    allred(5)
    e(f"v_add_f32 v4, {f2u(1e-5)}, v5"); e("v_rsq_f32 v4, v4"); e("s_nop 0")
    e("v_mul_f32 v5, v5, v4"); e("v_mul_f32 v5, v5, v4"); e(f"v_add_f32 v5, {f2u(1e-5)}, v5"); e("v_rsq_f32 v5, v5"); e("s_nop 0"); e("v_mul_f32 v4, v4, v5")
    for i in range(12): e(f"v_mul_f32 v{16+i}, v{16+i}, v4")
    for i in range(6): e(f"v_cvt_pk_bf16_f32 v{16+i}, v{16+2*i}, v{17+2*i}")
    for r in range(3): e(f"buffer_store_dwordx2 {vr(16+2*r,2)}, v3, {sr(S_HN,4)}, s91 offen offset:{384*r} sc1")
    e(f"s_lshl_b32 s92, s{SH}, 2"); e("s_lshl_b32 s93, s80, 11"); e("s_add_u32 s92, s92, s93"); e(f"s_add_u32 s92, s92, {32768-768}")
    e("v_lshlrev_b32 v194, 7, v1"); e("v_mov_b32 v195, 1"); e("s_waitcnt vmcnt(0)"); e("s_barrier"); e(f"s_cmp_lg_u32 s{SW}, 0"); e("s_cbranch_scc1 ln_nf")
    e("s_mov_b64 exec, 0xffff"); e(f"buffer_store_dword v195, v194, {sr(S_FLG,4)}, s92 offen sc1"); lab("ln_nf")
    if PROF: e("s_memtime s[100:101]"); e("s_waitcnt lgkmcnt(0)")
    e("s_mov_b64 exec, s[88:89]")
    for r in range(3): e(f"buffer_store_dwordx2 {vr(8+2*r,2)}, v3, {sr(S_H,4)}, s91 offen offset:{384*r}")
    e("s_mov_b64 exec, -1")
    if 'w' not in X:
        e(f"s_and_b32 s90, s{SH}, 7"); e("s_lshl_b32 s91, s73, 3"); e("s_add_u32 s90, s90, s91"); e("s_mul_i32 s90, s90, 36864"); e("v_lshlrev_b32 v2, 4, v0")
        for i in range(9): e(f"buffer_load_dwordx4 {vr(32+4*i,4)}, v2, {sr(S_WO,4)}, s90 offen"); e("s_add_u32 s90, s90, 4096")
        e("s_waitcnt vmcnt(0)")
    e("s_add_u32 s73, s73, 4")
def phase2():
    if PROF: e("s_memtime s[96:97]"); e("s_mov_b32 s98, s44")
    for s, n in ((S_W1, 'w1'), (S_B1, 'b1'), (S_X, 'x')): srd_arg(s, n)
    for s, n in ((S_HP, 'hp'), (S_HN, 'hn'), (S_U, 'u'), (S_H, 'h')): srd_ws(s, n, 4)
    e(f"s_mov_b32 s{TMO}, 400000"); e("s_waitcnt lgkmcnt(0)")
    sdivmod(66, 67, SH, 6, 256)
    e(f"s_and_b32 s68, s{SW}, 1"); e("s_mul_i32 s68, s68, 3"); e(f"s_lshr_b32 s69, s{SW}, 1"); e("s_lshl_b32 s69, s69, 2")
    e("s_and_b32 s72, s66, 7"); e("s_lshr_b32 s73, s66, 3")
    RED = 57344
    e(f"s_cmp_lt_u32 s{SH}, 192"); e("s_cbranch_scc1 p2_wo"); e(f"s_bfe_u32 s73, s{SH}, 0x20003"); lab("p2_wo")
    W = Op('t', 96, 1152, S_WO, 70, 0, 6, perm=True); gemm_setup([W], 8, SW, 2)
    e(f"s_mul_i32 s70, s72, {512*1152}"); e("s_mul_i32 s71, s67, 192"); e("s_add_u32 s70, s70, s71")
    for k in range(8): gemm_dma([W], k * 12288, SWL, 74)
    e(f"s_mul_i32 s71, s{SW}, 24576")
    for j in range(W.nrv): e(f"v_add_u32 v{W.rv+j}, s71, v{W.rv+j}")
    e("s_waitcnt vmcnt(0)"); e("s_barrier")
    for m in range(4):
        for nt in range(6):
            for ins in frag_reads(W, nt, m & 1, 64 + 4 * (m * 6 + nt), (m >> 1) * 12288): e(ins.replace(" v[", " a[", 1))
    e("v_and_b32 v2, 15, v0"); e("v_bfe_u32 v3, v0, 4, 2"); e("v_mul_u32_u24 v2, 400, v2"); e("v_lshl_add_u32 v2, v3, 4, v2")
    e(f"s_mul_i32 s71, s{SW}, 12800"); e(f"s_add_u32 s71, s71, {RED}"); e("v_add_u32 v196, s71, v2")
    e("s_mul_i32 s70, s72, 2304"); e("s_mul_i32 s71, s67, 384"); e("s_add_u32 s70, s70, s71")
    for r in range(3):
        e(f"v_add_u32 v2, {256*r}, v0"); vdivmod(3, 4, 2, 24, 768); e("v_lshlrev_b32 v4, 4, v4")
        e(f"v_mul_u32_u24 v5, 400, v3"); e(f"v_add_u32 v5, {RED}, v5"); e(f"v_add_u32 v{197+r}, v5, v4")
        e(f"v_mul_u32_u24 v5, 18432, v3"); e(f"v_add3_u32 v{200+r}, v5, v4, s70")
    e("s_waitcnt lgkmcnt(0)"); e("s_barrier")
    srd_arg(S_WO, 'w2'); e("s_waitcnt lgkmcnt(0)")
    Xo = Op('t', 96, 1152, S_HN, 70, "s68", 3); Y = Op('t', 128, 9216, S_W1, 71, "s69", 4)
    vb, stage = gemm_setup([Xo, Y], 204, SW, 2); assert vb <= 256 and 2 * stage == RED
    e("s_mul_i32 s70, s67, 192"); e("s_lshl_b32 s71, s66, 8"); zero(256, 48)
    mf = [(256 + 4 * (i * 4 + j), Y, j, Xo, i) for i in range(3) for j in range(4)]
    e("s_mov_b32 s80, 0"); e(f"s_and_b32 s81, s{SH}, 15"); e("s_lshl_b32 s81, s81, 7"); e("s_add_u32 s81, s81, 32768")
    e("s_lshl_b32 s82, s72, 2"); e(f"s_add_u32 s82, s82, s{SW}")
    e("s_mul_i32 s83, s72, 6"); e("s_add_u32 s83, s83, s67"); e("s_lshl_b32 s83, s83, 2"); e("s_add_u32 s83, s83, 4096")
    lab("p2_loop")
    e("s_cmp_eq_u32 s80, 0"); e("s_cbranch_scc1 p2_noy"); e(f"s_cmp_ge_u32 s{SH}, 216"); e("s_cbranch_scc1 p2_noy")
    for st in range(2): gemm_dma([Y], st * stage, SWL, 74)
    lab("p2_noy")
    e("s_cmp_eq_u32 s80, 16"); e("s_cbranch_scc1 p2_noat"); e(f"s_cmp_lt_u32 s{SH}, 192"); e("s_cbranch_scc1 p2_at"); ln_role(); e("s_branch p2_noat"); lab("p2_at")
    e("s_lshl_b32 s84, s80, 5"); e("s_add_u32 s84, s84, s82"); e("s_lshl_b32 s84, s84, 2"); e("v_mov_b32 v194, 0")
    pollv(84, "v_cmp_eq_u32 vcc, 0, v195")
    e("s_lshl_b32 s84, s73, 5"); e("s_add_u32 s84, s84, s82"); e("s_lshl_b32 s85, s82, 7"); e("s_add_u32 s85, s85, 28672")
    attn_body(S_QF, S_KF, S_VF, S_KVM, 84, lambda: pollv(85, "v_cmp_ge_u32 vcc, s73, v195"))
    e("s_nop 0")
    for m in range(4):
        for tt in range(2):
            for nt in range(6):
                a = 104 + 4 * (6 * tt + nt)
                e(f"v_mfma_f32_16x16x32_bf16 {vr(a,4)}, {ar(64+4*(m*6+nt),4)}, {vr(72+16*tt+4*m,4)}, {vr(a,4) if m else 0}")
    e(f"s_mul_i32 s84, s73, {32*18432}"); e("s_lshl_b32 s85, s73, 8"); e("s_add_u32 s85, s85, s83"); e("s_nop 2")
    for tt in range(2):
        for nt in range(6): e(f"ds_write_b128 v196, {vr(104+4*(6*tt+nt),4)} offset:{tt*6400+nt*64}")
    e("s_waitcnt lgkmcnt(0)"); e("s_barrier")
    for r in range(3):
        for w in range(4): e(f"ds_read_b128 {vr(8+16*r+4*w,4)}, v{197+r} offset:{w*12800}")
    for r in range(3):
        b = 8 + 16 * r; e(f"s_waitcnt lgkmcnt({8-4*r})")
        for x, y in ((0, 4), (8, 12), (0, 8)):
            for i in (0, 2): e(f"v_pk_add_f32 {vr(b+x+i,2)}, {vr(b+x+i,2)}, {vr(b+y+i,2)}")
        e(f"buffer_store_dwordx4 {vr(b,4)}, v{200+r}, {sr(S_HP,4)}, s84 offen sc1")
    e("s_waitcnt vmcnt(0)"); e("s_barrier"); e("s_add_u32 s73, s73, 4")
    if PROF: e("s_memtime s[94:95]"); e("s_waitcnt lgkmcnt(0)")
    e(f"s_cmp_lg_u32 s{SW}, 0"); e("s_cbranch_scc1 p2_noat"); flag_store(85, 1)
    lab("p2_noat")
    e("s_cmp_eq_u32 s80, 0"); e("s_cbranch_scc1 p2_next"); e(f"s_cmp_ge_u32 s{SH}, 216"); e("s_cbranch_scc1 p2_next")
    e("v_and_b32 v194, 31, v0"); e("v_lshlrev_b32 v194, 2, v194"); pollv(81, "v_cmp_eq_u32 vcc, 0, v195", True); e("s_add_u32 s81, s81, 2048")
    if PROF: e("s_memtime s[96:97]"); e("s_waitcnt lgkmcnt(0)")
    for st in range(2): gemm_dma([Xo], st * stage, SWL, 74, "sc1")
    e("s_waitcnt vmcnt(0)"); e("s_barrier")
    for st in range(2): gemm_compute(mf, st * stage, 8, 14)
    e("s_barrier")
    lab("p2_next")
    e("s_add_u32 s80, s80, 1"); e("s_cmp_le_u32 s80, 16"); e("s_cbranch_scc1 p2_loop")
    e(f"s_cmp_lt_u32 s{SH}, 216"); e("s_cbranch_scc1 p2_epi")
    if PROF:
        srd_arg(8, 'dbg'); e("s_waitcnt lgkmcnt(0)"); e(f"s_cmp_lg_u32 s{SH}, 223"); e("s_cbranch_scc1 wpe2"); e("v_mov_b32 v2, 0")
        for i, r in enumerate((94, 96, 100)): e(f"s_sub_u32 s{r}, s{r}, s98"); e(f"v_mov_b32 v3, s{r}"); e(f"buffer_store_dword v3, v2, s[8:11], 0 offen offset:{48+4*i}")
        lab("wpe2")
    e("s_endpgm"); lab("p2_epi"); e("s_nop 7")
    for i in range(48): e(f"v_accvgpr_read_b32 v{32+i}, a{i}")
    e("v_and_b32 v2, 15, v0"); e("v_bfe_u32 v3, v0, 4, 2")
    if PROF: e("s_memtime s[90:91]")
    mlp1_epi(32, 80, 66, 67, 68, 69, S_B1, S_U)
    if PROF:
        e("s_waitcnt vmcnt(0)"); e("s_memtime s[92:93]"); srd_arg(8, 'dbg'); e("s_waitcnt lgkmcnt(0)"); e(f"s_cmp_lg_u32 s{SH}, 191"); e("s_cbranch_scc1 wpe"); e("v_mov_b32 v2, 0")
        for i, r in enumerate((96, 94, 90, 92)): e(f"s_sub_u32 s{r}, s{r}, s98"); e(f"v_mov_b32 v3, s{r}"); e(f"buffer_store_dword v3, v2, s[8:11], 0 offen offset:{32+4*i}")
        lab("wpe")
    e("s_endpgm")

def poll_tmo(again, out):
    e(f"s_cmp_eq_u32 s{TMO}, 0"); e(f"s_cbranch_scc1 {out}"); e(f"s_sub_u32 s{TMO}, s{TMO}, 1"); e(f"s_branch {again}")

def chain_prologue():
    e("v_and_b32 v12, 63, v0"); e("v_lshrrev_b32 v13, 4, v12"); e("v_and_b32 v14, 15, v12")
    e(f"s_and_b32 s66, s{SW}, 1"); e(f"s_lshr_b32 s67, s{SW}, 1")
    e("s_lshl_b32 s68, s67, 5"); e("s_lshl_b32 s69, s66, 1"); e("s_add_u32 s68, s68, s69")
    e("v_lshrrev_b32 v15, 1, v13"); e("v_and_b32 v16, 1, v13"); e("v_lshl_add_u32 v15, v15, 3, v16"); e("v_add_u32 v15, s68, v15")
    e(f"s_lshl_b32 s69, s{SH}, 8")
    for p in range(2):
        e(f"v_add_u32 v16, {4*p}, v13"); e("v_lshlrev_b32 v16, 1, v16"); e("v_xor_b32 v16, v16, v14")
        e(f"v_add_u32 v17, {4*p}, v15"); e("v_lshlrev_b32 v17, 13, v17"); e(f"v_lshl_add_u32 v{20+p}, v16, 4, v17"); e(f"v_add_u32 v{20+p}, s69, v{20+p}")
    e("v_bfe_u32 v15, v12, 4, 1"); e("v_bfe_u32 v16, v12, 3, 1"); e("v_lshl_add_u32 v15, v15, 3, v16"); e("v_lshrrev_b32 v16, 5, v12")
    e("v_lshl_add_u32 v15, v16, 2, v15"); e("v_add_u32 v15, s68, v15"); e("v_lshlrev_b32 v15, 13, v15")
    e("v_and_b32 v16, 7, v12"); e("v_lshlrev_b32 v17, 1, v13"); e("v_xor_b32 v16, v16, v17")
    e("v_lshl_add_u32 v22, v16, 4, v15"); e("v_add_u32 v22, s69, v22")
    e("s_lshl_b32 s68, s67, 3"); e("s_lshl_b32 s70, s66, 1"); e("s_add_u32 s68, s68, s70")
    e(f"s_mul_i32 s70, s{SH}, 147456")
    for i in range(18):
        e(f"v_add_u32 v15, {64*i}, v12"); vdivmod(16, 17, 15, 72, 1152)
        e("v_bfe_u32 v18, v16, 1, 2"); e("v_lshlrev_b32 v18, 1, v18"); e("v_xor_b32 v17, v17, v18")
        e("v_bfe_u32 v18, v16, 2, 1"); e("v_lshlrev_b32 v15, 6, v18"); e("v_bfe_u32 v18, v16, 1, 1"); e("v_lshl_add_u32 v15, v18, 4, v15")
        e("v_bfe_u32 v18, v16, 3, 1"); e("v_lshl_add_u32 v15, v18, 2, v15"); e("v_and_b32 v18, 1, v16"); e("v_add3_u32 v15, v15, v18, s68")
        e("v_mul_u32_u24 v15, 1152, v15"); e(f"v_lshl_add_u32 v{24+i}, v17, 4, v15"); e(f"v_add_u32 v{24+i}, s70, v{24+i}")
    e("v_lshrrev_b32 v15, 2, v12"); e("v_and_b32 v16, 3, v12"); e("v_lshlrev_b32 v16, 3, v16")
    e("v_and_b32 v17, 7, v15"); e(f"s_lshl_b32 s68, s{SW}, 1")
    for t in range(2):
        e(f"s_add_u32 s71, s68, {t}"); e("v_xor_b32 v18, s71, v17"); e("v_lshl_add_u32 v18, v18, 5, v16")
        e(f"v_lshl_add_u32 v{42+t}, v15, 8, v18"); e(f"v_add_u32 v{42+t}, {WB}, v{42+t}")
    e("v_bfe_u32 v17, v15, 1, 2"); e(f"v_xor_b32 v17, s{SW}, v17"); e("v_lshl_add_u32 v17, v17, 5, v16")
    e("v_lshl_add_u32 v4, v15, 7, v17"); e(f"v_add_u32 v4, {WV_IMG}, v4")
    e("v_mul_u32_u24 v5, 1152, v15"); e("v_add_u32 v5, v5, v17"); e(f"v_add_u32 v5, {WO_IMG}, v5")
    def dma(v, srd, so, lds):
        e(f"s_mov_b32 s71, {so}"); e(f"s_add_u32 m0, s72, {lds}"); e("s_nop 0"); e(f"buffer_load_dwordx4 v{v}, {sr(srd,4)}, s71 offen lds")
    def qk_dma(srd):
        e(f"s_lshl_b32 s72, s{SW}, 12")
        for j in range(9):
            for g in range(4): dma(20 + (g & 1), srd, (64 * j + 16 * (g >> 1)) * 8192, WB + j * 16384 + g * 1024)
    def vo_dma(half):
        e(f"s_lshl_b32 s72, s{SW}, 11")
        for j in range(9):
            for gp in range(2): dma(22, S_WV, (64 * j + 16 * gp) * 8192 + 128 * half, WV_IMG + j * 8192 + gp * 1024)
        e(f"s_mul_i32 s72, s{SW}, 18432")
        for i in range(18): dma(24 + i, S_WO, 32 * half * 1152, WO_IMG + i * 1024)
    def sync(): e("s_waitcnt vmcnt(0) lgkmcnt(0)"); e("s_barrier")
    for srd, W in ((S_WQ, WQ), (S_WK, WK)):
        qk_dma(srd); sync()
        for t in range(2):
            for j in range(9):
                if j % 4 == 0: e(f"v_add_u32 v11, {j*16384}, v{42+t}")
                for m in range(4): e(f"ds_read_b64_tr_b16 {R(W(j,t)+2*m,2)}, v11 offset:{(j%4)*16384+m*4096}")
        sync()
    vo_dma(0); sync()
    e("v_add_u32 v11, 65536, v4")
    for j in range(9):
        for m in range(4):
            e(f"ds_read_b64_tr_b16 {R(WVA(j)+2*m,2)}, v{4 if j<8 else 11} offset:{(j%8)*8192+m*2048}")
            e(f"ds_read_b64_tr_b16 {R(WO0(j)+2*m,2)}, v5 offset:{m*18432+j*128}")
    sync(); vo_dma(1)
    e(f"s_mul_i32 s68, s{SW}, 18432"); e(f"s_add_u32 s68, s68, {WV_IMG}"); e("v_lshlrev_b32 v0, 4, v12"); e("v_add_u32 v6, s68, v0")
    e("v_add_u32 v7, 73728, v6"); e("v_mov_b32 v3, v11"); sync()
    for img in range(2):
        for j in range(9):
            for m in range(4):
                if img == 0: e(f"ds_read_b64_tr_b16 {vr(8+8*j+2*m,2)}, v{4 if j<8 else 3} offset:{(j%8)*8192+m*2048}")
                else: e(f"ds_read_b64_tr_b16 {vr(8+8*j+2*m,2)}, v5 offset:{m*18432+j*128}")
        sync()
        for j in range(18): e(f"ds_write_b128 v{6+img}, {vr(8+4*j,4)} offset:{1024*j}")
        e("s_waitcnt lgkmcnt(0)")
    e("v_mov_b32 v4, v6"); e("v_lshrrev_b32 v12, 4, v0"); e("v_lshrrev_b32 v13, 4, v12"); e("v_and_b32 v14, 15, v12")
    e("v_mov_b32 v1, 0x44444444"); e("v_mov_b32 v15, 0xeeeeeeee"); e("v_cmp_le_u32 vcc, 8, v14"); e("s_nop 1"); e("v_cndmask_b32 v1, v1, v15, vcc")
    e("v_and_b32 v20, 1, v13"); e("v_lshlrev_b32 v15, 2, v20"); e("v_and_b32 v16, 7, v14"); e("v_sub_u32 v15, v16, v15")
    for r in range(2):
        e(f"v_mov_b32 v{2+r}, 0")
        for hh, val in ((0, 0x3f80), (1, 0x3f800000)):
            e(f"v_mov_b32 v17, {val:#x}"); e(f"v_cmp_eq_u32 vcc, {2*r+hh}, v15"); e("s_nop 1"); e(f"v_cndmask_b32 v{2+r}, v{2+r}, v17, vcc")
    e("v_lshlrev_b32 v17, 4, v16"); e("v_lshl_add_u32 v17, v13, 7, v17")
    e(f"s_lshl_b32 s68, s{SW}, 9"); e("v_add_u32 v7, s68, v17")
    e("v_lshrrev_b32 v18, 3, v14"); e("v_lshl_add_u32 v8, v18, 9, v17")
    e("v_lshl_add_u32 v5, v18, 11, v17"); e("v_lshl_add_u32 v6, v18, 3, v17")
    e("v_lshrrev_b32 v19, 1, v13"); e("v_lshl_add_u32 v19, v19, 3, v20"); e(f"s_lshl_b32 s68, s{SW}, 1"); e("v_add_u32 v19, s68, v19")
    e("v_lshlrev_b32 v9, 12, v19"); e("v_lshl_add_u32 v9, v16, 4, v9"); e("v_lshl_add_u32 v9, v18, 3, v9"); e(f"s_lshl_b32 s68, s{SH}, 7"); e("v_add_u32 v9, s68, v9")
    e(f"s_lshl_b32 s73, s{SW}, 5"); e(f"s_add_u32 s73, s73, s{SH}")
    e("v_lshrrev_b32 v19, 1, v13"); e("v_lshlrev_b32 v10, 2, v19"); e("v_lshl_add_u32 v10, v16, 4, v10"); e("v_lshl_add_u32 v10, v20, 3, v10")
    e("s_lshl_b32 s68, s73, 7"); e("v_add_u32 v10, s68, v10"); e("s_lshl_b32 s74, s73, 12"); swap67(39, 0)

def wait_flag(stb):
    a, o = uid("fl"), uid("flo")
    e(f"s_lshl_b32 s71, s{stb}, 5"); e(f"s_add_u32 s71, s71, s{SH}"); e("s_lshl_b32 s71, s71, 2"); e("v_mov_b32 v28, 0")
    lab(a); e(f"buffer_load_dword v29, v28, {sr(S_FLG,4)}, s71 offen sc1"); e("s_waitcnt vmcnt(0)")
    e("v_cmp_ne_u32 vcc, 0, v29"); e(f"s_cbranch_vccnz {o}"); poll_tmo(a, o); lab(o)

def chain():
    chain_prologue()
    e(f"s_mov_b32 s{TMO}, 400000"); e(f"s_mov_b32 s{STEP}, 0")
    e("s_mov_b32 s75, 0"); e("s_mov_b32 s76, 9216"); e("s_mov_b32 s77, 18432")
    e("s_mov_b32 s78, 0")
    e(f"s_lshl_b32 s79, s{SH}, 13")
    e(f"s_mov_b32 s80, {f2u(128**-0.5*LOG2E)}"); e("s_mov_b32 s82, 0x00ff00ff"); e("s_mov_b32 s83, 0x00ff00ff")
    e(f"s_lshl_b32 s81, s{SH}, 7"); e("s_add_u32 s81, s81, 28672")
    e("s_mov_b32 s86, 0"); wait_flag(86)
    KX, VX, AL, ACC, WL = 12, 20, 28, 40, 64
    z2 = lambda r: e(f"v_mov_b64 {vr(r,2)}, 0")
    e(f"s_mul_i32 s84, s{SW}, 3072")
    if PROF:
        e("s_memtime s[40:41]")
        for i in range(12): e(f"s_mov_b32 s{90+i}, 0")
    lab("step"); stamp()
    e(f"s_add_u32 s87, s75, s84"); e("v_add_u32 v11, s84, v0")
    def mp_ld(b):
        for i in range(3): e(f"buffer_load_dwordx4 {vr(b[i],4)}, v39, {sr(S_MH,4)}, s87 offen offset:{1024*i} sc1")
    def mp_ck(b):
        e("s_waitcnt vmcnt(3)")
        p, q, r = b
        e(f"ds_write_b128 v11, {vr(p,4)}"); e(f"v_max3_u32 v36, v{p}, v{p+1}, v{p+2}"); e(f"v_max3_u32 v37, v{p+3}, v{q}, v{q+1}")
        e(f"ds_write_b128 v11, {vr(q,4)} offset:1024"); e(f"v_max3_u32 v38, v{q+2}, v{q+3}, v{r}"); e(f"v_max3_u32 v36, v36, v{r+1}, v{r+2}")
        e(f"ds_write_b128 v11, {vr(r,4)} offset:2048"); e(f"v_max3_u32 v37, v37, v38, v{r+3}")
        e("v_max_u32 v36, v36, v37"); e("v_cmp_eq_u32 vcc, -1, v36"); e("s_cbranch_vccz mpo")
    e(f"s_cmp_lg_u32 s{SW}, 3"); e("s_cbranch_scc1 mp0")
    for r in range(ACC, ACC + 24, 2): z2(r)
    e("s_branch mp3"); lab("mp0")
    mp_ld((12,16,20))
    for r in range(ACC, ACC + 24, 2): z2(r)
    lab("mp"); mp_ld((24,72,76)); mp_ck((12,16,20)); e("s_waitcnt lgkmcnt(0)"); mp_ld((12,16,20)); mp_ck((24,72,76)); e("s_waitcnt lgkmcnt(0)"); poll_tmo("mp", "mpo"); lab("mpo")
    lab("mp3"); stamp()
    e(f"s_lshl_b32 s87, s{SWL}, 1"); e("s_add_u32 s87, s87, s79"); e(f"s_add_u32 s88, s79, s{SWL}"); e("s_add_u32 s89, s88, 4096")
    e("s_waitcnt lgkmcnt(0)"); e("s_barrier")
    d = DS(); stamp()
    def prog(val):
        e(f"v_mov_b32 v11, {val}"); e("s_mov_b64 exec, 1"); e(f"buffer_store_dword v11, v0, {sr(S_FLG,4)}, s81 offen sc1"); e("s_mov_b64 exec, -1")
    def rdA(j): d.op(f"ds_read_b128 {vr(AL+4*(j%3),4)}, v0 offset:{MI+j*1024}", ('a', j))
    def rdW(dst, adr, i, tag):
        for m in range(2): d.op(f"ds_read_b128 {vr(dst+4*m,4)}, v{adr} offset:{i*2048+m*1024}", tag)
    rdV = lambda j: rdW(WL + 8 * (j % 2), 4, j, ('wv', j))
    for j in range(3): rdA(j)
    rdV(0)
    for i in range(2): e(f"buffer_load_dwordx4 {vr(KX+4*i,4)}, v0, {sr(S_KF,4)}, s87 offen offset:{1024*i} sc1")
    for i in range(2): e(f"buffer_load_dwordx4 {vr(VX+4*i,4)}, v0, {sr(S_VF,4)}, s{88+i} offen sc1")
    def vA(j): smf(56, AL + 4 * (j % 3), WVA(j))
    def vB(j): d.need(('wv', j)); smf(60, AL + 4 * (j % 3), WL + 8 * (j % 2))
    for j in range(9):
        d.need(('a', j))
        for t in range(2): smf(ACC + 4 * t, AL + 4 * (j % 3), WQ(j, t))
        for t in range(2): smf(ACC + 8 + 4 * t, AL + 4 * (j % 3), WK(j, t))
        if j == 0: e("s_waitcnt vmcnt(4)"); rdV(1); e(f"s_cmp_lg_u32 s{SW}, 3"); e("s_cbranch_scc1 noprog"); prog(f"s{STEP}"); lab("noprog")
        if j < 7:
            vA(j); vB(j); rdV(j + 2)
            if j + 3 < 9: rdA(j + 3)
    stamp()
    tr = lambda dd, a: e(f"v_mfma_f32_16x16x16_bf16 {vr(dd,4)}, {vr(a,2)}, v[2:3], 0")
    vA(7); vB(7); e("v_add_u32 v11, 73728, v4"); e("s_nop 3")
    WLS = (72, 64, 20)
    rdO = lambda i: rdW(WLS[i % 3], 11, i, ('wo', i))
    cvt(28, 40, 4); rdO(0); tr(40, 28); tr(44, 30)
    cvt(28, 48, 4); e("s_nop 1"); tr(48, 28); tr(52, 30)
    vA(8)
    cvt(28, 40, 4); e("s_nop 2"); cvt(40, 48, 4); e("s_waitcnt vmcnt(2)")
    for n, a in ((1, KX), (2, KX + 4), (0, 40)): e(f"v_mfma_f32_16x16x32_bf16 {vr(44+4*n,4)}, {vr(a,4)}, v[28:31], 0")
    vB(8); e(f"buffer_store_dwordx4 v[40:43], v0, {sr(S_KVM,4)}, s87 offen sc1"); rdO(1); e("s_nop 2")
    for n in (1, 2, 0): d.op(f"ds_write_b128 v7, {vr(44+4*n,4)} offset:{SREG+2048*n}")
    stamp()
    e("v_mov_b32 v32, 0x3f803f80"); e("v_mov_b32 v33, 0x3f803f80"); e("v_mov_b64 v[34:35], v[32:33]"); e("v_mov_b32 v36, 0x3f003f00"); e("v_mov_b32 v37, 0x3f003f00")
    cvt(40, 56, 4)
    d.drain(); e("s_barrier"); stamp()
    SX = (44, 48, 52, 56); SM = (12, 14, 16, 18)
    for w in range(4):
        d.op(f"ds_read_b128 {vr(SX[w],4)}, v5 offset:{SREG+2048+512*w}"); d.op(f"ds_read_b64 {vr(SM[w],2)}, v6 offset:{SREG+512*w}", ('s', w))
    e(f"buffer_store_dwordx4 v[40:43], v0, {sr(S_KVM,4)}, s87 offen offset:1024 sc1")
    e(f"s_cmp_eq_u32 s{STEP}, 63"); e("s_cbranch_scc1 chain_end")
    z2(60); z2(62)
    pk = lambda op, dd, a, b: e(f"v_pk_{op}_f32 {vr(dd,2)}, {vr(a,2)}, {vr(b,2)}")
    d.need(('s', 1)); pk("add", 44, 44, 48); pk("add", 46, 46, 50); pk("add", 12, 12, 14)
    d.need(('s', 3)); pk("add", 52, 52, 56); pk("add", 54, 54, 58); pk("add", 16, 16, 18)
    pk("add", 44, 44, 52); pk("add", 46, 46, 54); pk("add", 48, 12, 16)
    e("v_max3_f32 v38, v44, v45, v46"); e("v_max3_f32 v39, v47, v48, v49"); e("v_max_f32 v38, v38, v39"); z2(52); z2(54)
    e("v_max_f32_dpp v38, v38, v38 row_ror:8 row_mask:0xf bank_mask:0xf"); e("v_mov_b32 v39, v38"); z2(56); z2(58)
    e("v_permlane32_swap_b32 v38, v39"); e("v_max_f32 v38, v38, v39"); e("v_mov_b32 v39, v38"); e("s_nop 1")
    e("v_permlane16_swap_b32 v38, v39"); e("v_max_f32 v38, v38, v39"); e("v_mul_f32 v38, s80, v38")
    for r in range(44, 50): e(f"v_fma_f32 v{r}, v{r}, s80, -v38")
    for r in range(44, 50): e(f"v_exp_f32 v{r}, v{r}")
    cvt(12, 44, 2); e("v_cvt_pk_bf16_f32 v16, v48, v49"); e("s_waitcnt vmcnt(2)")
    for dd, a in ((14, 12), (15, 13), (17, 16)): e(f"v_mov_b32_dpp v{dd}, v{a} row_ror:8 row_mask:0xf bank_mask:0xf")
    e("s_nop 0")
    for dd, a in ((28, 32), (44, VX), (48, VX + 4)): e(f"v_mfma_f32_16x16x32_bf16 {vr(dd,4)}, {vr(a,4)}, v[12:15], 0")
    for dd, a in ((28, 36), (44, 40), (48, 42)): e(f"v_mfma_f32_16x16x16_bf16 {vr(dd,4)}, {vr(a,2)}, v[16:17], {vr(dd,4)}")
    rdO(2); stamp()
    OA = [52, 56, 60, 12, 16, 36, 40, 44, 48]
    for r in (12, 14, 16, 18): z2(r)
    e("v_rcp_f32 v28, v28"); z2(36); e("v_mov_b32 v29, v28")
    for r in range(44, 52, 2): pk("mul", r, r, 28)
    cvt(32, 44, 4)
    e("s_mov_b64 exec, s[82:83]"); d.op("ds_write_b128 v7, v[32:35]"); e("s_mov_b64 exec, -1")
    for r in range(38, 52, 2): z2(r)
    d.drain(); e("s_barrier")
    for k in range(2): d.op(f"ds_read_b128 {vr(AL+4*k,4)}, v8 offset:{1024*k}", ('o', k))
    def fold(i):
        a, b = OA[i], OA[i + 1] if i < 8 else 28
        ins = []
        if i == 8: ins += [f"v_mov_b64 {vr(b,2)}, {vr(a,2)}", f"v_mov_b64 {vr(b+2,2)}, {vr(a+2,2)}", "s_nop 0"]
        ins += [f"v_permlane32_swap_b32 v{a+q}, v{b+q}" for q in range(4)]
        ins += [f"v_pk_add_f32 {vr(a+q,2)}, {vr(a+q,2)}, {vr(b+q,2)}" for q in (0, 2)]
        ins += [f"v_cvt_pk_bf16_f32 v{a}, v{a}, v{a+1}", f"v_cvt_pk_bf16_f32 v{a+1}, v{a+2}, v{a+3}"]
        if i == 8: ins += ["s_mov_b32 exec_hi, 0"]
        ins += [f"buffer_store_dwordx2 {vr(a,2)}, v9, {sr(S_P1,4)}, s{66+i//2} offen"]
        if i == 8: ins += ["s_mov_b64 exec, -1"]
        return ins
    for i in range(5): e(f"s_add_u32 s{66+i}, s78, {i*65536}")
    d.need(('o', 0)); stamp()
    for i in range(3): smf(OA[i], AL, WO0(i))
    d.need(('o', 1))
    pend = []
    def fill(n):
        for _ in range(n):
            if pend: e(pend.pop(0))
    for i in range(9):
        d.need(('wo', i)); smf(OA[i], AL + 4, WLS[i % 3])
        if i + 3 < 9: rdO(i + 3); smf(OA[i + 3], AL, WO0(i + 3))
        if i in (3, 5, 7): pend += fold(i - 3)
        fill(3)
    fill(99); pend += fold(6) + fold(8); fill(99)
    stamp()
    e("s_cmp_lt_u32 s73, 72"); e("s_cbranch_scc1 red_go"); swap67(39, 0); e(f"s_cmp_lg_u32 s{SW}, 3"); e("s_cbranch_scc1 red_done")
    e(f"s_add_u32 s86, s{STEP}, 1"); e("s_and_b32 s87, s86, 3"); e("s_cbranch_scc1 nofl"); e("s_lshr_b32 s86, s86, 2"); wait_flag(86); lab("nofl")
    e("s_waitcnt vmcnt(0)"); e("s_branch red_done"); lab("red_go")
    e("s_add_u32 s87, s78, s74")
    def rp_ld(b):
        for i in range(4): e(f"buffer_load_dwordx4 {vr(b+4*i,4)}, v0, {sr(S_P1,4)}, s87 offen offset:{1024*i} sc1")
    def rp_ck(b):
        for i in range(4):
            e(f"s_waitcnt vmcnt({7-i})"); e(f"v_mfma_f32_16x16x32_bf16 v[72:75], {vr(b+4*i,4)}, v[64:67], {'v[72:75]' if i else 0}")
        e("s_nop 7"); e("v_permlane32_swap_b32 v72, v74"); e("v_permlane32_swap_b32 v73, v75"); e("v_add_f32 v72, v72, v74"); e("v_add_f32 v73, v73, v75")
        e("v_cmp_u_f32 vcc, v72, v73"); e("v_cvt_pk_bf16_f32 v76, v72, v73"); e("s_cbranch_vccz rpo")
    for r in range(68, 72): e(f"v_mov_b32 v{r}, -1")
    e("s_mov_b64 exec, s[82:83]"); e(f"buffer_store_dword v68, v10, {sr(S_MH,4)}, s77 offen"); e("s_mov_b64 exec, -1")
    e("v_and_b32 v76, 0x30, v0"); e("v_mov_b32 v64, 0x3f80"); e("v_mov_b32 v65, 0"); e("v_lshlrev_b64 v[64:65], v76, v[64:65]"); e("v_bfe_i32 v76, v0, 6, 1")
    e("v_and_b32 v66, v64, v76"); e("v_and_b32 v67, v65, v76"); e("v_xor_b32 v64, v64, v66"); e("v_xor_b32 v65, v65, v67"); swap67(39, 0)
    if 'b' in X: e("s_waitcnt vmcnt(0)")
    if 'c' in X: stamp()
    rp_ld(12)
    lab("rp"); rp_ld(44); rp_ck(12); rp_ld(12); rp_ck(44); poll_tmo("rp", "rpo"); lab("rpo"); stamp()
    e("s_mov_b64 exec, s[82:83]"); e(f"buffer_store_dword v76, v10, {sr(S_MH,4)}, s76 offen"); e("s_mov_b64 exec, -1"); e("s_waitcnt vmcnt(1)")
    for i in range(4): e(f"buffer_store_dwordx4 v[68:71], v0, {sr(S_P1,4)}, s87 offen offset:{1024*i}")
    lab("red_done"); e("s_barrier"); lab("red_done2"); stamp()
    if PROF:
        e("s_waitcnt lgkmcnt(0)")
        for i in range(_st[0]-1): e(f"s_sub_u32 s87, s{10+2*i}, s{8+2*i}"); e(f"s_add_u32 s{90+i}, s{90+i}, s87")
    e(f"s_add_u32 s{STEP}, s{STEP}, 1"); e(f"s_xor_b32 s78, s78, {72*8192}"); e(f"s_add_u32 s79, s79, {32*8192}")
    e("s_mov_b32 s87, s75"); e("s_mov_b32 s75, s76"); e("s_mov_b32 s76, s77"); e("s_mov_b32 s77, s87")
    e("s_branch step")
    lab("chain_end"); e("s_waitcnt vmcnt(0)"); e("s_barrier"); prog(64)
    if PROF:
        e("s_memtime s[42:43]"); srd_arg(8, 'dbg'); e("s_waitcnt lgkmcnt(0)")
        e("s_sub_u32 s100, s40, s44"); e("s_sub_u32 s101, s42, s40")
        e(f"s_cmp_lg_u32 s{SH}, 0"); e("s_cbranch_scc1 prof_end"); e(f"s_mul_i32 s87, s{SW}, 48"); e("s_add_u32 s87, s87, 64"); e("v_mov_b32 v2, 0")
        for i in range(12): e(f"v_mov_b32 v3, s{90+i}"); e(f"buffer_store_dword v3, v2, s[8:11], s87 offen offset:{4*i}")
        lab("prof_end")
    e("s_endpgm")

def k_main():
    kstart("main_kernel"); guard(256)
    if PROF: e("s_memtime s[44:45]")
    e(f"s_load_dwordx2 s[4:5], s[0:1], {ARG['ws']}")
    for s, n in ((S_WQ, 'wq'), (S_WK, 'wk'), (S_WV, 'wv'), (S_WO, 'wo'), (72, 'dbg')): srd_arg(s, n)
    wave_id(SW, SWL); e("s_waitcnt lgkmcnt(0)")
    for s, n in ((S_XN, 'xn'), (S_QF, 'qf'), (S_KF, 'kf'), (S_VF, 'vf'), (S_FLG, 'flg'), (S_P1, 'p1'), (S_MH, 'mh'), (S_KVM, 'kvm')): srd_ws(s, n, 4)
    roles()
    e(f"s_cmp_ge_u32 s{SH}, 0x1000"); e("s_cbranch_scc1 is_chain")
    worker()
    lab("is_chain"); e(f"s_and_b32 s{SH}, s{SH}, 31")
    chain()
    return kdesc("main_kernel", 512, 256)
```

```python
from common import *
LOG2E = 1.4426950408889634
import struct, os
def f2u(x): return "%#x" % struct.unpack("<I", struct.pack("<f", x))[0]
def guard(n):
    ex = uid("go"); e(f"s_cmp_lt_u32 s2, {n}"); e(f"s_cbranch_scc1 {ex}"); e("s_endpgm"); lab(ex)
def wave_id(sw, swl):
    e("v_lshrrev_b32 v1, 6, v0"); e("s_nop 0"); e(f"v_readfirstlane_b32 s{sw}, v1"); e(f"s_lshl_b32 s{swl}, s{sw}, 10")
def red16(op, v, t):
    for n in (8, 4, 2, 1):
        e("s_nop 1"); e(f"{op}_dpp v{v}, v{v}, v{v} row_ror:{n} row_mask:0xf bank_mask:0xf")
def xswap(kind, op, v, t):
    e(f"v_mov_b32 v{t}, v{v}"); e("s_nop 1"); e(f"v_permlane{kind}_swap_b32 v{v}, v{t}"); e("s_nop 0"); e(f"{op} v{v}, v{v}, v{t}")

def swap67(d, x):
    e(f"v_lshrrev_b32 v{d}, 1, v{x}"); e(f"v_xor_b32 v{d}, v{d}, v{x}"); e(f"v_bfe_i32 v{d}, v{d}, 6, 1"); e(f"v_and_b32 v{d}, 0xc0, v{d}"); e(f"v_xor_b32 v{d}, v{d}, v{x}")
def ln_body(ssrc, sdst, double):
    e("v_lshrrev_b32 v1, 5, v0"); e("s_lshl_b32 s3, s2, 3"); e("v_add_u32 v1, s3, v1")
    e("v_mul_u32_u24 v1, 1152, v1"); e("v_and_b32 v2, 31, v0"); e("v_lshl_add_u32 v1, v2, 2, v1")
    for i in range(9): e(f"buffer_load_dword v{10+i}, v1, {sr(ssrc,4)}, 0 offen offset:{128*i}")
    e("s_waitcnt vmcnt(0)")
    for i in range(9):
        e(f"v_lshlrev_b32 v{20+2*i}, 16, v{10+i}"); e(f"v_and_b32 v{21+2*i}, 0xffff0000, v{10+i}")
    e("v_add_f32 v3, v20, v21")
    for i in range(2, 18): e(f"v_add_f32 v3, v3, v{20+i}")
    red16("v_add_f32", 3, 4); xswap(16, "v_add_f32", 3, 4)
    e(f"v_mul_f32 v3, {f2u(1/576)}, v3")
    for i in range(18): e(f"v_sub_f32 v{20+i}, v{20+i}, v3")
    e("v_mul_f32 v3, v20, v20")
    for i in range(1, 18): e(f"v_fmac_f32 v3, v{20+i}, v{20+i}")
    red16("v_add_f32", 3, 4); xswap(16, "v_add_f32", 3, 4)
    e(f"v_mul_f32 v3, {f2u(1/576)}, v3"); e(f"v_add_f32 v4, {f2u(1e-5)}, v3"); e("v_rsq_f32 v4, v4"); e("s_nop 0")
    if double:
        e("v_mul_f32 v3, v3, v4"); e("v_mul_f32 v3, v3, v4"); e(f"v_add_f32 v3, {f2u(1e-5)}, v3")
        e("v_rsq_f32 v3, v3"); e("s_nop 0"); e("v_mul_f32 v4, v4, v3")
    for i in range(18): e(f"v_mul_f32 v{20+i}, v{20+i}, v4")
    for i in range(9):
        e(f"v_cvt_pk_bf16_f32 v{10+i}, v{20+2*i}, v{21+2*i}")
        e(f"buffer_store_dword v{10+i}, v1, {sr(sdst,4)}, 0 offen offset:{128*i}")

def k_init():
    kstart("init_kernel"); guard(256)
    e(f"s_load_dwordx2 s[4:5], s[0:1], {ARG['ws']}"); srd_arg(8, 'x'); srd_arg(12, 'mem0'); e("s_waitcnt lgkmcnt(0)")
    srd_ws(16, 'xn', 4); srd_ws(20, 'p1', 4); srd_ws(24, 'mh', 4); srd_ws(28, 'flg', 4); srd_ws(32, 'mh', 4)
    e("s_mov_b32 s34, 9216")
    e("s_lshl_b32 s3, s2, 8"); e("v_add_u32 v40, s3, v0"); e("v_lshlrev_b32 v41, 4, v40")
    e("v_and_b32 v42, 7, v40"); e("v_mul_u32_u24 v42, 1152, v42"); e("v_lshrrev_b32 v43, 3, v40"); e("v_lshl_add_u32 v42, v43, 4, v42")
    e("buffer_load_dwordx4 v[44:47], v42, s[12:15], 0 offen")
    for i in range(4): e(f"v_mov_b32 v{48+i}, -1"); e(f"v_mov_b32 v{52+i}, 0")
    e("s_mov_b32 s6, 1048576"); e("s_mov_b32 s7, 9216")
    e("buffer_store_dwordx4 v[48:51], v41, s[20:23], 0 offen"); e("buffer_store_dwordx4 v[48:51], v41, s[20:23], s6 offen")
    e("buffer_store_dwordx4 v[48:51], v41, s[24:27], s7 offen"); e("buffer_store_dwordx4 v[52:55], v41, s[28:31], 0 offen")
    ln_body(8, 16, False)
    swap67(42, 41); e("buffer_store_dwordx4 v[44:47], v42, s[32:35], 0 offen")
    e("s_endpgm")
    return kdesc("init_kernel", 56, 56)

def k_ln2():
    kstart("ln2_kernel"); guard(256)
    e(f"s_load_dwordx2 s[4:5], s[0:1], {ARG['ws']}"); e("s_waitcnt lgkmcnt(0)")
    srd_ws(8, 'h', 4); srd_ws(16, 'hn', 4)
    ln_body(8, 16, True); e("s_endpgm")
    return kdesc("ln2_kernel", 40, 40)

def attn_body(sq, sk, sv, skm, stask, mid, aux="sc1"):
    Q, K, V, KM, VM, S, O = 8, 40, 72, 104, 120, 136, 8
    e("v_and_b32 v1, 63, v0"); e("v_lshlrev_b32 v2, 4, v1"); e(f"s_lshl_b32 s40, s{stask}, 13"); e("s_add_u32 s41, s40, 4096")
    for b, s in ((K, sk), (Q, sq), (V, sv)):
        for i in range(8): e(f"buffer_load_dwordx4 {vr(b+4*i,4)}, v2, {sr(s,4)}, s{40+i//4} offen offset:{(i%4)*1024} {aux}")
    e("v_and_b32 v3, 15, v1"); e("v_lshrrev_b32 v4, 4, v1"); e("v_lshlrev_b32 v5, 2, v4"); e("v_sub_u32 v5, v3, v5")
    tiles = [(0, 'm'), (0, 0), (1, 'm'), (1, 0), (1, 1)]
    def smm(mem):
        for ec in range(4):
            for n, (tt, kt) in enumerate(tiles):
                if (kt == 'm') != mem: continue
                a = KM + 4 * ec if kt == 'm' else K + 4 * (2 * ec + kt)
                e(f"v_mfma_f32_16x16x32_bf16 {vr(S+4*n,4)}, {vr(a,4)}, {vr(Q+4*(2*ec+tt),4)}, {vr(S+4*n,4) if ec else 0}")
    e("s_waitcnt vmcnt(8)"); smm(False); mid()
    for b, o in ((KM, 0), (VM, 1024)):
        for i in range(4): e(f"buffer_load_dwordx4 {vr(b+4*i,4)}, v2, {sr(skm,4)}, s{40+i//2} offen offset:{(i%2)*2048+o} {aux}")
    e("s_waitcnt vmcnt(4)"); smm(True)
    e("s_nop 7"); e(f"v_mov_b32 v7, {f2u(-1e30)}")
    for i in range(4):
        e(f"v_cmp_le_i32 vcc, {i}, v5"); e("s_nop 1")
        for n in (1, 4): e(f"v_cndmask_b32 v{S+4*n+i}, v7, v{S+4*n+i}, vcc")
    e(f"s_mov_b32 s44, {f2u(128**-0.5*LOG2E)}")
    P = 160
    for tt, rs in ((0, list(range(S, S+8))), (1, list(range(S+8, S+20)))):
        m, t, l = 156, 157, 158
        e(f"v_max_f32 v{m}, v{rs[0]}, v{rs[1]}")
        for i in range(2, len(rs), 2): e(f"v_max3_f32 v{m}, v{m}, v{rs[i]}, v{rs[i+1]}")
        xswap(32, "v_max_f32", m, t); xswap(16, "v_max_f32", m, t)
        e(f"v_mul_f32 v{m}, s44, v{m}")
        for r in rs: e(f"v_fma_f32 v{r}, v{r}, s44, -v{m}")
        for r in rs: e(f"v_exp_f32 v{r}, v{r}")
        e(f"v_add_f32 v{l}, v{rs[0]}, v{rs[1]}"); e(f"v_add_f32 v{l}, v{l}, v{rs[2]}"); e(f"v_add_f32 v{l}, v{l}, v{rs[3]}")
        e(f"v_mul_f32 v{l}, 0.5, v{l}")
        for r in rs[4:]: e(f"v_add_f32 v{l}, v{l}, v{r}")
        xswap(32, "v_add_f32", l, t); xswap(16, "v_add_f32", l, t)
        e(f"v_rcp_f32 v{l}, v{l}"); e("s_nop 0")
        for r in rs: e(f"v_mul_f32 v{r}, v{r}, v{l}")
        p = P + 8 * tt
        e(f"v_cvt_pk_bf16_f32 v{p+4}, v{rs[0]}, v{rs[1]}"); e(f"v_cvt_pk_bf16_f32 v{p+5}, v{rs[2]}, v{rs[3]}")
        for i in range(4):
            if 4 + 2 * i < len(rs): e(f"v_cvt_pk_bf16_f32 v{p+i}, v{rs[4+2*i]}, v{rs[5+2*i]}")
            else: e(f"v_mov_b32 v{p+i}, 0")
    e("s_waitcnt vmcnt(0)"); e("s_nop 1")
    for tt in range(2):
        for et in range(8):
            o = O + 4 * (8 * tt + et)
            e(f"v_mfma_f32_16x16x32_bf16 {vr(o,4)}, {vr(V+4*et,4)}, {vr(P+8*tt,4)}, 0")
        for et in range(8):
            o = O + 4 * (8 * tt + et)
            e(f"v_mfma_f32_16x16x16_bf16 {vr(o,4)}, {vr(VM+4*(et%4)+2*(et//4),2)}, {vr(P+8*tt+4,2)}, {vr(o,4)}")
    e("s_nop 7")
    for tt in range(2):
        for m in range(4):
            o = O + 4 * (8 * tt + 2 * m); d = 72 + 16 * tt + 4 * m
            for i in range(4): e(f"v_cvt_pk_bf16_f32 v{d+i}, v{o+2*i}, v{o+2*i+1}")

def mlp1_epi(ACC, T, sft, sdt, sdw, sfw, sb, su):
    e(f"s_lshl_b32 s42, s{sft}, 3"); e(f"s_add_u32 s42, s42, s{sfw}"); e("s_lshl_b32 s42, s42, 5")
    e("v_lshlrev_b32 v4, 3, v3")
    for j in range(4): e(f"buffer_load_dwordx2 {vr(T+2*j,2)}, v4, {sr(sb,4)}, s42 offen offset:{32*j}")
    e(f"s_mul_i32 s43, s{sdt}, 6"); e(f"s_add_u32 s43, s43, s{sdw}"); e(f"s_mul_i32 s43, s43, {16*9216}"); e("s_add_u32 s43, s43, s42")
    e("v_mul_u32_u24 v5, 9216, v2"); e("v_lshl_add_u32 v5, v3, 4, v5")
    e("s_waitcnt vmcnt(0)")
    for j in range(4):
        for q in range(4):
            e(f"v_lshlrev_b32 v{T+8+4*j+q}, 16, v{T+2*j+q//2}" if q % 2 == 0 else f"v_and_b32 v{T+8+4*j+q}, 0xffff0000, v{T+2*j+q//2}")
    c0 = -2 * 0.7978845608028654 * LOG2E
    e(f"s_mov_b32 s45, {f2u(c0*0.044715)}"); e(f"v_mov_b32 v6, {f2u(c0)}")
    for i in range(3):
        for j in range(4):
            a = ACC + 4 * (i * 4 + j); t = T + 24
            for q in range(4): e(f"v_add_f32 v{a+q}, v{a+q}, v{T+8+4*j+q}")
            for q in range(4): e(f"v_mul_f32 v{t+q}, v{a+q}, v{a+q}")
            for q in range(4): e(f"v_fma_f32 v{t+q}, v{t+q}, s45, v6")
            for q in range(4): e(f"v_mul_f32 v{t+q}, v{t+q}, v{a+q}")
            for q in range(4): e(f"v_exp_f32 v{t+q}, v{t+q}")
            for q in range(4): e(f"v_add_f32 v{t+q}, 1.0, v{t+q}")
            for q in range(4): e(f"v_rcp_f32 v{t+q}, v{t+q}")
            for q in range(4): e(f"v_mul_f32 v{a+q}, v{a+q}, v{t+q}")
        for m in range(2):
            a = ACC + 4 * (i * 4 + 2 * m)
            for q in range(4): e(f"v_cvt_pk_bf16_f32 v{a+q}, v{a+2*q}, v{a+2*q+1}")
            e(f"buffer_store_dwordx4 {vr(a,4)}, v5, {sr(su,4)}, s43 offen offset:{64*m}")
        e(f"s_add_u32 s43, s43, {16*9216}")

def gemm_kernel(name, which):
    n_wg = {'B': 192, 'C': 216, 'D': 192}[which]
    kstart(name); guard(n_wg)
    e(f"s_load_dwordx2 s[4:5], s[0:1], {ARG['ws']}")
    if which == 'B': srd_arg(12, 'wo'); srd_arg(16, 'x')
    if which == 'C': srd_arg(12, 'w1'); srd_arg(16, 'b1')
    if which == 'D': srd_arg(12, 'w2'); srd_arg(24, 'b2'); srd_arg(20, 'out')
    wave_id(6, 7); e("s_waitcnt lgkmcnt(0)")
    e("s_and_b32 s30, s2, 7"); e(f"s_mul_i32 s30, s30, {n_wg//8}"); e("s_lshr_b32 s31, s2, 3"); e("s_add_u32 s30, s30, s31")
    sdivmod(31, 32, 30, 6, 256)
    e("s_and_b32 s33, s6, 1"); e("s_lshr_b32 s34, s6, 1"); e("s_mul_i32 s35, s33, 3")
    if which == 'B':
        srd_ws(8, 'o', 4); srd_ws(20, 'h', 4); e("s_lshl_b32 s36, s34, 1")
        X = Op('t', 96, 1152, 12, 40, "s35", 3, perm=True); Y = Op('k', 64, 8192, 8, 41, "s36", 2)
        e("s_mul_i32 s40, s32, 192"); e("s_lshl_b32 s41, s31, 19"); nk, ns = 64, 4
    if which == 'C':
        srd_ws(8, 'hn', 4); srd_ws(20, 'u', 4); e("s_lshl_b32 s36, s34, 2")
        X = Op('t', 96, 1152, 8, 40, "s35", 3); Y = Op('t', 128, 9216, 12, 41, "s36", 4)
        e("s_mul_i32 s40, s32, 192"); e("s_lshl_b32 s41, s31, 8"); nk, ns = 32, 4
    if which == 'D':
        srd_ws(8, 'u', 4); srd_ws(16, 'h', 4); e("s_lshl_b32 s36, s34, 1")
        X = Op('k', 96, 9216, 8, 40, "s35", 3); Y = Op('t', 64, 4096, 12, 41, "s36", 2, perm=True)
        e(f"s_mul_i32 s40, s32, {96*9216}"); e("s_lshl_b32 s41, s31, 7"); nk, ns = 72, int(os.environ.get("NS", 4))
    vb, stage = gemm_setup([X, Y], 8, 6, 2)
    ACC = 32; assert vb <= ACC
    na = X.nt * Y.nt; FB = ACC + 4 * na
    zero(ACC, 4 * na)
    if which == 'C': mf = [(ACC + 4 * (i * Y.nt + j), Y, j, X, i) for i in range(X.nt) for j in range(Y.nt)]
    else: mf = [(ACC + 4 * (i * Y.nt + j), X, i, Y, j) for i in range(X.nt) for j in range(Y.nt)]
    nbuf = 12
    gemm_loop([X, Y], mf, nk, ns, stage, FB, nbuf, 7, 38, 39)
    e("v_and_b32 v2, 15, v0"); e("v_bfe_u32 v3, v0, 4, 2")
    T = FB
    if which in 'BD':
        e("s_lshl_b32 s42, s31, 2"); e("s_add_u32 s42, s42, s36"); e("s_lshl_b32 s42, s42, 4")
        e("v_add_u32 v4, s42, v2"); e("v_mul_u32_u24 v5, 1152, v4"); e("v_lshl_add_u32 v5, v3, 3, v5")
        e("s_mul_i32 s43, s32, 192"); e("s_lshl_b32 s44, s35, 5"); e("s_add_u32 s43, s43, s44"); e(f"s_add_u32 s44, s43, {16*1152}")
        for i in range(3):
            for j in range(2): e(f"buffer_load_dwordx2 {vr(T+2*(i*2+j),2)}, v5, s[16:19], s{43+j} offen offset:{32*i}")
        if which == 'D':
            e("v_lshlrev_b32 v4, 1, v4")
            for j in range(2): e(f"buffer_load_ushort v{6+j}, v4, s[24:27], 0 offen offset:{32*j}")
        e("s_waitcnt vmcnt(0)")
        if which == 'D':
            for j in range(2): e(f"v_lshlrev_b32 v{6+j}, 16, v{6+j}")
        for i in range(3):
            for j in range(2):
                a = ACC + 4 * (i * 2 + j); t = T + 2 * (i * 2 + j)
                for q in range(4):
                    if which == 'D': e(f"v_add_f32 v{a+q}, v{a+q}, v{6+j}")
                    e(f"v_lshlrev_b32 v1, 16, v{t+q//2}" if q % 2 == 0 else f"v_and_b32 v1, 0xffff0000, v{t+q//2}")
                    e(f"v_add_f32 v{a+q}, v{a+q}, v1")
                e(f"v_cvt_pk_bf16_f32 v{a}, v{a}, v{a+1}"); e(f"v_cvt_pk_bf16_f32 v{a+1}, v{a+2}, v{a+3}")
                e(f"buffer_store_dwordx2 {vr(a,2)}, v5, s[20:23], s{43+j} offen offset:{32*i}")
    else:
        mlp1_epi(ACC, T, 31, 32, 35, 36, 16, 20)
    e("s_endpgm")
    nv = (FB + 4 * nbuf + 7) // 8 * 8
    return kdesc(name, nv, nv), n_wg, ns * stage
```

```python
from common import *
from simple import *
import os
PROF = int(os.environ.get('PROF', 0))
_st = [0]
def stamp():
    if PROF:
        e(f's_memtime s[{8+2*_st[0]}:{9+2*_st[0]}]'); _st[0] += 1
X = os.environ.get('X', '')
MI, SREG, WB = 0, 9216, 15360
WV_IMG, WO_IMG = WB, WB + 73728
LDS_A = WB + 147456
def wop(i):
    return 256 + 8 * i if i < 32 else 80 + 8 * (i - 32)
WQ = lambda j, t: wop(2 * j + t)
WK = lambda j, t: wop(18 + 2 * j + t)
WVA = lambda j: wop(36 + j)
WO0 = lambda i: wop(45 + i)
class DS:
    def __init__(s): s.n = 0; s.tag = {}; s.w = 0
    def op(s, ins, tag=None):
        e(ins); s.n += 1
        if tag is not None: s.tag[tag] = s.n
    def need(s, tag):
        r = s.tag[tag]
        if r > s.w:
            c = min(s.n - r, 15); e(f"s_waitcnt lgkmcnt({c})"); s.w = s.n - c
    def drain(s): e("s_waitcnt lgkmcnt(0)"); s.w = s.n
def smf(d, a, b): e(f"v_smfmac_f32_16x16x64_bf16 {vr(d,4)}, {vr(a,4)}, {R(b,8)}, v1")
def cvt(d, a, n):
    for i in range(n): e(f"v_cvt_pk_bf16_f32 v{d+i}, v{a+2*i}, v{a+2*i+1}")
SW, SWL, SH = 6, 7, 3
S_WQ, S_WK, S_WV, S_WO = 8, 12, 16, 20
S_XN, S_QF, S_KF, S_VF, S_FLG = 24, 28, 32, 36, 48
S_P1, S_MH, S_KVM = 52, 56, 60
TMO = 64; STEP = 65

def roles():
    e("s_getreg_b32 s70, hwreg(HW_REG_XCC_ID, 0, 4)"); e("s_and_b32 s70, s70, 7")
    e(f"s_cmp_lg_u32 s{SW}, 0"); e("s_cbranch_scc1 role_wait")
    e("s_lshl_b32 s71, s70, 2"); e("v_mov_b32 v2, s71"); e("v_mov_b32 v3, 1"); e("s_mov_b64 exec, 1")
    e("buffer_atomic_add v3, v2, s[72:75], 0 offen sc0"); e("s_waitcnt vmcnt(0)"); e("s_mov_b64 exec, -1")
    e("v_readfirstlane_b32 s71, v3"); e("s_lshl_b32 s77, s70, 5"); e("s_add_u32 s77, s77, s71"); e("s_cmp_ge_u32 s71, 32"); e("s_cselect_b32 s77, -1, s77")
    lab("role_pub")
    e("v_mov_b32 v2, 0"); e("v_mov_b32 v3, s77"); e("ds_write_b32 v2, v3"); e("s_waitcnt lgkmcnt(0)")
    lab("role_wait")
    e("s_barrier"); e("v_mov_b32 v2, 0"); e("ds_read_b32 v3, v2"); e("s_waitcnt lgkmcnt(0)")
    e(f"v_readfirstlane_b32 s{SH}, v3"); e("s_barrier")
    e(f"s_cmp_eq_u32 s{SH}, -1"); e("s_cbranch_scc0 role_ok"); e("s_endpgm"); lab("role_ok")

def worker():
    e("v_lshlrev_b32 v3, 7, v0"); e(f"s_mov_b32 s79, s{SH}")
    e(f"s_mul_i32 s67, s{SH}, 24576"); e("v_add_u32 v3, s67, v3")
    for i, srd in enumerate((S_WO,) if 'i' not in os.environ.get('X', '') else ()): e(f"buffer_load_dword v{200+i}, v3, {sr(srd,4)}, 0 offen")
    e(f"s_lshl_b32 s66, s{SW}, 1")
    X = Op('k', 128, 1152, S_XN, 67, 0, 8)
    Yq = Op('t', 128, 8192, S_WQ, 68, "s66", 2); Yk = Op('t', 128, 8192, S_WK, 69, "s66", 2, share=Yq); Yv = Op('t', 128, 8192, S_WV, 70, "s66", 2, share=Yq)
    ops = [X, Yq, Yk, Yv]
    vb, stage = gemm_setup(ops, 8, SW, 2); assert vb <= 30 and stage == 65536
    e("v_and_b32 v30, 63, v0"); e("v_lshlrev_b32 v30, 4, v30")
    lab("wk_task")
    HB = int(os.environ.get("HB", 3))
    e(f"s_and_b32 s71, s79, {(1<<HB)-1}"); e(f"s_bfe_u32 s72, s79, {(5-HB)<<16|5:#x}"); e(f"s_lshl_b32 s72, s72, {HB}"); e("s_add_u32 s71, s71, s72")
    e(f"s_bfe_u32 s72, s79, {(5-HB)<<16|HB:#x}"); e(f"s_lshr_b32 s67, s79, {10-HB}"); e(f"s_lshl_b32 s67, s67, {5-HB}"); e("s_add_u32 s72, s72, s67")
    e(f"s_mul_i32 s67, s72, {128*1152}"); e("s_lshl_b32 s68, s71, 8"); e("s_mov_b32 s69, s68"); e("s_mov_b32 s70, s68")
    zero(256, 192)
    acc = lambda m, t, T: 256 + 4 * ((m * 2 + t) * 8 + T)
    mf = []
    for T in range(8):
        for m, Y in enumerate((Yq, Yk, Yv)):
            for t in range(2): mf.append((acc(m, t, T), Y, t, X, T) if m < 2 else (acc(m, t, T), X, T, Y, t))
    gemm_loop(ops, mf, 9, 2, stage, 32, 18, SWL, 73, 74)
    e(f"s_lshl_b32 s75, s72, 7"); e("s_add_u32 s75, s75, s71"); e("s_lshl_b32 s75, s75, 13"); e(f"s_lshl_b32 s76, s{SWL}, 1"); e("s_add_u32 s75, s75, s76")
    for sg in range(1, 4): e(f"s_add_u32 s{75+sg}, s75, {sg*32*8192}")
    e("s_nop 7")
    if PROF: e("s_memtime s[90:91]")
    n = 0
    for m, srd in ((1, S_KF), (2, S_VF), (0, S_QF)):
        for sg in range(4):
            for f in range(2):
                a0, a1 = (acc(m, 0, 2 * sg + f), acc(m, 1, 2 * sg + f)) if m < 2 else (acc(m, f, 2 * sg), acc(m, f, 2 * sg + 1))
                t = 32 + 8 * (n % 16); n += 1
                for i in range(4): e(f"v_accvgpr_read_b32 v{t+i}, a{a0-256+i}"); e(f"v_accvgpr_read_b32 v{t+4+i}, a{a1-256+i}")
                cvt(t, t, 4)
                e(f"buffer_store_dwordx4 {vr(t,4)}, v30, {sr(srd,4)}, s{75+sg} offen offset:{f*1024} sc1")
    e("s_waitcnt vmcnt(0)"); e("s_barrier")
    e("s_lshl_b32 s75, s72, 5"); e("s_add_u32 s75, s75, s71"); e("s_lshl_b32 s75, s75, 7"); e("s_bitset1_b32 s75, 16")
    e(f"s_cmp_lg_u32 s{SW}, 0"); e("s_cbranch_scc1 wk_nof")
    e("v_mov_b32 v2, 0"); e("v_mov_b32 v3, 1"); e("s_mov_b64 exec, 1")
    e(f"buffer_store_dword v3, v2, {sr(S_FLG,4)}, s75 offen sc1"); e("s_mov_b64 exec, -1")
    if PROF:
        e("s_memtime s[92:93]"); srd_arg(80, 'dbg'); e("s_waitcnt lgkmcnt(0)"); e(f"s_cmp_lg_u32 s75, 65536"); e("s_cbranch_scc1 wk_nof")
        e(f"s_sub_u32 s90, s90, s44"); e(f"s_sub_u32 s92, s92, s44"); e("s_lshr_b32 s90, s90, 8"); e("s_lshr_b32 s92, s92, 8"); e("s_mul_i32 s90, s90, 1000"); e("s_add_u32 s90, s90, s92")
        e(f"v_mov_b32 v3, s90"); e(f"buffer_store_dword v3, v2, s[80:83], 0 offen offset:60")
    lab("wk_nof")
    e("s_add_u32 s79, s79, 224"); e("s_cmp_lt_u32 s79, 512"); e("s_cbranch_scc1 wk_task")
    phase2()

def pollv(off, cmp, nl=None):
    a, o = uid("pv"), uid("pvo")
    if nl: e(f"s_cmp_lg_u32 s{SW}, 0"); e(f"s_cbranch_scc1 {o}")
    lab(a); e(f"buffer_load_dword v195, v194, {sr(S_FLG,4)}, s{off} offen sc1"); e("s_waitcnt vmcnt(0)")
    e(cmp); e(f"s_cbranch_vccz {o}"); poll_tmo(a, o); lab(o)
    if nl: e("s_barrier")
def flag_store(off, val):
    e("v_mov_b32 v194, 0"); e(f"v_mov_b32 v195, {val}"); e("s_mov_b64 exec, 1")
    e(f"buffer_store_dword v195, v194, {sr(S_FLG,4)}, s{off} offen sc1"); e("s_mov_b64 exec, -1")
S_HP, S_HN, S_W1, S_U, S_B1, S_X, S_H = 8, 12, 16, 24, 52, 56, 76
def ln_role():
    e(f"s_and_b32 s86, s{SH}, 7"); e("s_lshl_b32 s86, s86, 2"); e(f"s_add_u32 s86, s86, s{SW}"); e("s_lshl_b32 s87, s73, 5"); e("s_add_u32 s86, s86, s87")
    e("v_and_b32 v1, 63, v0"); e("v_lshlrev_b32 v2, 4, v1"); e("v_lshlrev_b32 v3, 3, v1"); e("s_lshl_b32 s87, s73, 8"); e("s_add_u32 s87, s87, 4096")
    e("s_mov_b32 s88, -1"); e("s_mov_b32 s89, 0xffff")
    e("s_mul_i32 s90, s86, 18432"); e("s_mul_i32 s91, s86, 1152"); e("v_mov_b32 v4, 0"); e("v_mov_b32 v5, 0"); e("s_mov_b64 exec, s[88:89]")
    for r in range(3): e(f"buffer_load_dwordx2 {vr(8+2*r,2)}, v3, {sr(S_X,4)}, s91 offen offset:{384*r}")
    e("v_lshlrev_b32 v194, 2, v1"); pollv(87, "v_cmp_eq_u32 vcc, 0, v195", True)
    if PROF: e("s_memtime s[94:95]")
    for hg in range(8):
        for r in range(3): e(f"buffer_load_dwordx4 {vr(32+12*hg+4*r,4)}, v2, {sr(S_HP,4)}, s90 offen offset:{768*r} sc1")
        e("s_add_u32 s90, s90, 2304")
    for i in range(6): e(f"v_lshlrev_b32 v{16+2*i}, 16, v{8+i}"); e(f"v_and_b32 v{17+2*i}, 0xffff0000, v{8+i}")
    for hg in range(8):
        e(f"s_waitcnt vmcnt({21-3*hg})")
        for i in range(0, 12, 2): e(f"v_pk_add_f32 {vr(16+i,2)}, {vr(16+i,2)}, {vr(32+12*hg+i,2)}")
    for i in range(6): e(f"v_cvt_pk_bf16_f32 v{8+i}, v{16+2*i}, v{17+2*i}")
    for i in range(6): e(f"v_lshlrev_b32 v{16+2*i}, 16, v{8+i}"); e(f"v_and_b32 v{17+2*i}, 0xffff0000, v{8+i}")
    for i in range(12): e(f"v_add_f32 v4, v4, v{16+i}")
    def allred(v): e("s_mov_b64 exec, -1"); red16("v_add_f32", v, 6); xswap(16, "v_add_f32", v, 6); xswap(32, "v_add_f32", v, 6); e(f"v_mul_f32 v{v}, {f2u(1/576)}, v{v}"); e("s_mov_b64 exec, s[88:89]")
    if PROF: e("s_memtime s[96:97]")
    allred(4)
    for i in range(12): e(f"v_sub_f32 v{16+i}, v{16+i}, v4"); e(f"v_fmac_f32 v5, v{16+i}, v{16+i}")
    allred(5)
    e(f"v_add_f32 v4, {f2u(1e-5)}, v5"); e("v_rsq_f32 v4, v4"); e("s_nop 0")
    e("v_mul_f32 v5, v5, v4"); e("v_mul_f32 v5, v5, v4"); e(f"v_add_f32 v5, {f2u(1e-5)}, v5"); e("v_rsq_f32 v5, v5"); e("s_nop 0"); e("v_mul_f32 v4, v4, v5")
    for i in range(12): e(f"v_mul_f32 v{16+i}, v{16+i}, v4")
    for i in range(6): e(f"v_cvt_pk_bf16_f32 v{16+i}, v{16+2*i}, v{17+2*i}")
    for r in range(3): e(f"buffer_store_dwordx2 {vr(16+2*r,2)}, v3, {sr(S_HN,4)}, s91 offen offset:{384*r} sc1")
    e(f"s_lshl_b32 s92, s{SH}, 2"); e("s_lshl_b32 s93, s80, 11"); e("s_add_u32 s92, s92, s93"); e(f"s_add_u32 s92, s92, {32768-768}")
    e("v_lshlrev_b32 v194, 7, v1"); e("v_mov_b32 v195, 1"); e("s_waitcnt vmcnt(0)"); e("s_barrier"); e(f"s_cmp_lg_u32 s{SW}, 0"); e("s_cbranch_scc1 ln_nf")
    e("s_mov_b64 exec, 0xffff"); e(f"buffer_store_dword v195, v194, {sr(S_FLG,4)}, s92 offen sc1"); lab("ln_nf")
    if PROF: e("s_memtime s[100:101]"); e("s_waitcnt lgkmcnt(0)")
    e("s_mov_b64 exec, s[88:89]")
    for r in range(3): e(f"buffer_store_dwordx2 {vr(8+2*r,2)}, v3, {sr(S_H,4)}, s91 offen offset:{384*r}")
    e("s_mov_b64 exec, -1")
    if 'w' not in X:
        e(f"s_and_b32 s90, s{SH}, 7"); e("s_lshl_b32 s91, s73, 3"); e("s_add_u32 s90, s90, s91"); e("s_mul_i32 s90, s90, 36864"); e("v_lshlrev_b32 v2, 4, v0")
        for i in range(9): e(f"buffer_load_dwordx4 {vr(32+4*i,4)}, v2, {sr(S_WO,4)}, s90 offen"); e("s_add_u32 s90, s90, 4096")
        e("s_waitcnt vmcnt(0)")
    e("s_add_u32 s73, s73, 4")
def phase2():
    if PROF: e("s_memtime s[96:97]"); e("s_mov_b32 s98, s44")
    for s, n in ((S_W1, 'w1'), (S_B1, 'b1'), (S_X, 'x')): srd_arg(s, n)
    for s, n in ((S_HP, 'hp'), (S_HN, 'hn'), (S_U, 'u'), (S_H, 'h')): srd_ws(s, n, 4)
    e(f"s_mov_b32 s{TMO}, 400000"); e("s_waitcnt lgkmcnt(0)")
    sdivmod(66, 67, SH, 6, 256)
    e(f"s_and_b32 s68, s{SW}, 1"); e("s_mul_i32 s68, s68, 3"); e(f"s_lshr_b32 s69, s{SW}, 1"); e("s_lshl_b32 s69, s69, 2")
    e("s_and_b32 s72, s66, 7"); e("s_lshr_b32 s73, s66, 3")
    RED = 57344
    e(f"s_cmp_lt_u32 s{SH}, 192"); e("s_cbranch_scc1 p2_wo"); e(f"s_bfe_u32 s73, s{SH}, 0x20003"); lab("p2_wo")
    W = Op('t', 96, 1152, S_WO, 70, 0, 6, perm=True); gemm_setup([W], 8, SW, 2)
    e(f"s_mul_i32 s70, s72, {512*1152}"); e("s_mul_i32 s71, s67, 192"); e("s_add_u32 s70, s70, s71")
    for k in range(8): gemm_dma([W], k * 12288, SWL, 74)
    e(f"s_mul_i32 s71, s{SW}, 24576")
    for j in range(W.nrv): e(f"v_add_u32 v{W.rv+j}, s71, v{W.rv+j}")
    e("s_waitcnt vmcnt(0)"); e("s_barrier")
    for m in range(4):
        for nt in range(6):
            for ins in frag_reads(W, nt, m & 1, 64 + 4 * (m * 6 + nt), (m >> 1) * 12288): e(ins.replace(" v[", " a[", 1))
    e("v_and_b32 v2, 15, v0"); e("v_bfe_u32 v3, v0, 4, 2"); e("v_mul_u32_u24 v2, 400, v2"); e("v_lshl_add_u32 v2, v3, 4, v2")
    e(f"s_mul_i32 s71, s{SW}, 12800"); e(f"s_add_u32 s71, s71, {RED}"); e("v_add_u32 v196, s71, v2")
    e("s_mul_i32 s70, s72, 2304"); e("s_mul_i32 s71, s67, 384"); e("s_add_u32 s70, s70, s71")
    for r in range(3):
        e(f"v_add_u32 v2, {256*r}, v0"); vdivmod(3, 4, 2, 24, 768); e("v_lshlrev_b32 v4, 4, v4")
        e(f"v_mul_u32_u24 v5, 400, v3"); e(f"v_add_u32 v5, {RED}, v5"); e(f"v_add_u32 v{197+r}, v5, v4")
        e(f"v_mul_u32_u24 v5, 18432, v3"); e(f"v_add3_u32 v{200+r}, v5, v4, s70")
    e("s_waitcnt lgkmcnt(0)"); e("s_barrier")
    srd_arg(S_WO, 'w2'); e("s_waitcnt lgkmcnt(0)")
    Xo = Op('t', 96, 1152, S_HN, 70, "s68", 3); Y = Op('t', 128, 9216, S_W1, 71, "s69", 4)
    vb, stage = gemm_setup([Xo, Y], 204, SW, 2); assert vb <= 256 and 2 * stage == RED
    e("s_mul_i32 s70, s67, 192"); e("s_lshl_b32 s71, s66, 8"); zero(256, 48)
    mf = [(256 + 4 * (i * 4 + j), Y, j, Xo, i) for i in range(3) for j in range(4)]
    e("s_mov_b32 s80, 0"); e(f"s_and_b32 s81, s{SH}, 15"); e("s_lshl_b32 s81, s81, 7"); e("s_add_u32 s81, s81, 32768")
    e("s_lshl_b32 s82, s72, 2"); e(f"s_add_u32 s82, s82, s{SW}")
    e("s_mul_i32 s83, s72, 6"); e("s_add_u32 s83, s83, s67"); e("s_lshl_b32 s83, s83, 2"); e("s_add_u32 s83, s83, 4096")
    lab("p2_loop")
    e("s_cmp_eq_u32 s80, 0"); e("s_cbranch_scc1 p2_noy"); e(f"s_cmp_ge_u32 s{SH}, 216"); e("s_cbranch_scc1 p2_noy")
    for st in range(2): gemm_dma([Y], st * stage, SWL, 74)
    lab("p2_noy")
    e("s_cmp_eq_u32 s80, 16"); e("s_cbranch_scc1 p2_noat"); e(f"s_cmp_lt_u32 s{SH}, 192"); e("s_cbranch_scc1 p2_at"); ln_role(); e("s_branch p2_noat"); lab("p2_at")
    e("s_lshl_b32 s84, s80, 5"); e("s_add_u32 s84, s84, s82"); e("s_lshl_b32 s84, s84, 7"); e("s_bitset1_b32 s84, 16"); e("v_mov_b32 v194, 0")
    pollv(84, "v_cmp_eq_u32 vcc, 0, v195")
    e("s_lshl_b32 s84, s73, 5"); e("s_add_u32 s84, s84, s82"); e("s_lshl_b32 s85, s82, 7"); e("s_add_u32 s85, s85, 28672")
    attn_body(S_QF, S_KF, S_VF, S_KVM, 84, lambda: pollv(85, "v_cmp_ge_u32 vcc, s73, v195"))
    e("s_nop 0")
    for m in range(4):
        for tt in range(2):
            for nt in range(6):
                a = 104 + 4 * (6 * tt + nt)
                e(f"v_mfma_f32_16x16x32_bf16 {vr(a,4)}, {ar(64+4*(m*6+nt),4)}, {vr(72+16*tt+4*m,4)}, {vr(a,4) if m else 0}")
    e(f"s_mul_i32 s84, s73, {32*18432}"); e("s_lshl_b32 s85, s73, 8"); e("s_add_u32 s85, s85, s83"); e("s_nop 2")
    for tt in range(2):
        for nt in range(6): e(f"ds_write_b128 v196, {vr(104+4*(6*tt+nt),4)} offset:{tt*6400+nt*64}")
    e("s_waitcnt lgkmcnt(0)"); e("s_barrier")
    for r in range(3):
        for w in range(4): e(f"ds_read_b128 {vr(8+16*r+4*w,4)}, v{197+r} offset:{w*12800}")
    for r in range(3):
        b = 8 + 16 * r; e(f"s_waitcnt lgkmcnt({8-4*r})")
        for x, y in ((0, 4), (8, 12), (0, 8)):
            for i in (0, 2): e(f"v_pk_add_f32 {vr(b+x+i,2)}, {vr(b+x+i,2)}, {vr(b+y+i,2)}")
        e(f"buffer_store_dwordx4 {vr(b,4)}, v{200+r}, {sr(S_HP,4)}, s84 offen sc1")
    e("s_waitcnt vmcnt(0)"); e("s_barrier"); e("s_add_u32 s73, s73, 4")
    if PROF: e("s_memtime s[94:95]"); e("s_waitcnt lgkmcnt(0)")
    e(f"s_cmp_lg_u32 s{SW}, 0"); e("s_cbranch_scc1 p2_noat"); flag_store(85, 1)
    lab("p2_noat")
    e("s_cmp_eq_u32 s80, 0"); e("s_cbranch_scc1 p2_next"); e(f"s_cmp_ge_u32 s{SH}, 216"); e("s_cbranch_scc1 p2_next")
    e("v_and_b32 v194, 31, v0"); e("v_lshlrev_b32 v194, 2, v194"); pollv(81, "v_cmp_eq_u32 vcc, 0, v195", True); e("s_add_u32 s81, s81, 2048")
    if PROF: e("s_memtime s[96:97]"); e("s_waitcnt lgkmcnt(0)")
    for st in range(2): gemm_dma([Xo], st * stage, SWL, 74, "sc1")
    e("s_waitcnt vmcnt(0)"); e("s_barrier")
    for st in range(2): gemm_compute(mf, st * stage, 8, 14)
    e("s_barrier")
    lab("p2_next")
    e("s_add_u32 s80, s80, 1"); e("s_cmp_le_u32 s80, 16"); e("s_cbranch_scc1 p2_loop")
    e(f"s_cmp_lt_u32 s{SH}, 216"); e("s_cbranch_scc1 p2_epi")
    if PROF:
        srd_arg(8, 'dbg'); e("s_waitcnt lgkmcnt(0)"); e(f"s_cmp_lg_u32 s{SH}, 223"); e("s_cbranch_scc1 wpe2"); e("v_mov_b32 v2, 0")
        for i, r in enumerate((94, 96, 100)): e(f"s_sub_u32 s{r}, s{r}, s98"); e(f"v_mov_b32 v3, s{r}"); e(f"buffer_store_dword v3, v2, s[8:11], 0 offen offset:{48+4*i}")
        lab("wpe2")
    e("s_endpgm"); lab("p2_epi"); e("s_nop 7")
    for i in range(48): e(f"v_accvgpr_read_b32 v{32+i}, a{i}")
    e("v_and_b32 v2, 15, v0"); e("v_bfe_u32 v3, v0, 4, 2")
    if PROF: e("s_memtime s[90:91]")
    mlp1_epi(32, 80, 66, 67, 68, 69, S_B1, S_U)
    if PROF:
        e("s_waitcnt vmcnt(0)"); e("s_memtime s[92:93]"); srd_arg(8, 'dbg'); e("s_waitcnt lgkmcnt(0)"); e(f"s_cmp_lg_u32 s{SH}, 191"); e("s_cbranch_scc1 wpe"); e("v_mov_b32 v2, 0")
        for i, r in enumerate((96, 94, 90, 92)): e(f"s_sub_u32 s{r}, s{r}, s98"); e(f"v_mov_b32 v3, s{r}"); e(f"buffer_store_dword v3, v2, s[8:11], 0 offen offset:{32+4*i}")
        lab("wpe")
    e("s_endpgm")

def poll_tmo(again, out):
    e(f"s_cmp_eq_u32 s{TMO}, 0"); e(f"s_cbranch_scc1 {out}"); e(f"s_sub_u32 s{TMO}, s{TMO}, 1"); e(f"s_branch {again}")

_ts = [0]
def ts():
    if 't' in X: e("s_memtime s[88:89]"); e("s_waitcnt lgkmcnt(0)"); e(f"s_sub_u32 s88, s88, s44"); e(f"s_mul_i32 s{90+_ts[0]}, s88, 63"); _ts[0] += 1
def chain_prologue():
    ts()
    e("v_and_b32 v12, 63, v0"); e("v_lshrrev_b32 v13, 4, v12"); e("v_and_b32 v14, 15, v12")
    e(f"s_and_b32 s66, s{SW}, 1"); e(f"s_lshr_b32 s67, s{SW}, 1")
    e("s_lshl_b32 s68, s67, 5"); e("s_lshl_b32 s69, s66, 1"); e("s_add_u32 s68, s68, s69")
    e("v_lshrrev_b32 v15, 1, v13"); e("v_and_b32 v16, 1, v13"); e("v_lshl_add_u32 v15, v15, 3, v16"); e("v_add_u32 v15, s68, v15")
    e(f"s_lshl_b32 s69, s{SH}, 8")
    for p in range(2):
        e(f"v_add_u32 v16, {4*p}, v13"); e("v_lshlrev_b32 v16, 1, v16"); e("v_xor_b32 v16, v16, v14")
        e(f"v_add_u32 v17, {4*p}, v15"); e("v_lshlrev_b32 v17, 13, v17"); e(f"v_lshl_add_u32 v{20+p}, v16, 4, v17"); e(f"v_add_u32 v{20+p}, s69, v{20+p}")
    def rest():
        e("v_bfe_u32 v15, v12, 4, 1"); e("v_bfe_u32 v16, v12, 3, 1"); e("v_lshl_add_u32 v15, v15, 3, v16"); e("v_lshrrev_b32 v16, 5, v12")
        e("v_lshl_add_u32 v15, v16, 2, v15"); e("v_add_u32 v15, s68, v15"); e("v_lshlrev_b32 v15, 13, v15")
        e("v_and_b32 v16, 7, v12"); e("v_lshlrev_b32 v17, 1, v13"); e("v_xor_b32 v16, v16, v17")
        e("v_lshl_add_u32 v22, v16, 4, v15"); e("v_add_u32 v22, s69, v22")
        e("s_lshl_b32 s68, s67, 3"); e("s_lshl_b32 s70, s66, 1"); e("s_add_u32 s68, s68, s70")
        e(f"s_mul_i32 s70, s{SH}, 147456")
        for i in range(18):
            e(f"v_add_u32 v15, {64*i}, v12"); vdivmod(16, 17, 15, 72, 1152)
            e("v_bfe_u32 v18, v16, 1, 2"); e("v_lshlrev_b32 v18, 1, v18"); e("v_xor_b32 v17, v17, v18")
            e("v_bfe_u32 v18, v16, 2, 1"); e("v_lshlrev_b32 v15, 6, v18"); e("v_bfe_u32 v18, v16, 1, 1"); e("v_lshl_add_u32 v15, v18, 4, v15")
            e("v_bfe_u32 v18, v16, 3, 1"); e("v_lshl_add_u32 v15, v18, 2, v15"); e("v_and_b32 v18, 1, v16"); e("v_add3_u32 v15, v15, v18, s68")
            e("v_mul_u32_u24 v15, 1152, v15"); e(f"v_lshl_add_u32 v{24+i}, v17, 4, v15"); e(f"v_add_u32 v{24+i}, s70, v{24+i}")
        e("v_lshrrev_b32 v15, 2, v12"); e("v_and_b32 v16, 3, v12"); e("v_lshlrev_b32 v16, 3, v16")
        e("v_and_b32 v17, 7, v15"); e(f"s_lshl_b32 s68, s{SW}, 1")
        for t in range(2):
            e(f"s_add_u32 s71, s68, {t}"); e("v_xor_b32 v18, s71, v17"); e("v_lshl_add_u32 v18, v18, 5, v16")
            e(f"v_lshl_add_u32 v{42+t}, v15, 8, v18"); e(f"v_add_u32 v{42+t}, {WB}, v{42+t}")
        e("v_bfe_u32 v17, v15, 1, 2"); e(f"v_xor_b32 v17, s{SW}, v17"); e("v_lshl_add_u32 v17, v17, 5, v16")
        e("v_lshl_add_u32 v4, v15, 7, v17"); e(f"v_add_u32 v4, {WV_IMG}, v4")
        e("v_mul_u32_u24 v5, 1152, v15"); e("v_add_u32 v5, v5, v17"); e(f"v_add_u32 v5, {WO_IMG}, v5")
    def dma(v, srd, so, lds):
        e(f"s_mov_b32 s71, {so}"); e(f"s_add_u32 m0, s72, {lds}"); e("s_nop 0"); e(f"buffer_load_dwordx4 v{v}, {sr(srd,4)}, s71 offen lds")
    def qk_dma(srd, js):
        e(f"s_lshl_b32 s72, s{SW}, 12")
        for j in js:
            for g in range(4): dma(20 + (g & 1), srd, (64 * j + 16 * (g >> 1)) * 8192, WB + j * 16384 + g * 1024)
    def v_dma(half, js=range(9)):
        e(f"s_lshl_b32 s72, s{SW}, 11")
        for j in js:
            for gp in range(2): dma(22, S_WV, (64 * j + 16 * gp) * 8192 + 128 * half, WV_IMG + j * 8192 + gp * 1024)
    def o_dma(half):
        e(f"s_mul_i32 s72, s{SW}, 18432")
        for i in range(18): dma(24 + i, S_WO, 32 * half * 1152, WO_IMG + i * 1024)
    def arrive(n): e(f"s_waitcnt vmcnt({n})"); e("s_barrier")
    def done(): e("s_waitcnt lgkmcnt(0)"); e("s_barrier")
    def qk_rd(W, g):
        for t in range(2):
            e(f"v_add_u32 v11, {g*49152}, v{42+t}")
            for j in range(3):
                for m in range(4): e(f"ds_read_b64_tr_b16 {R(W(3*g+j,t)+2*m,2)}, v11 offset:{j*16384+m*4096}")
        done()
    def v_rd(dst):
        for j in range(9):
            for m in range(4): e(f"ds_read_b64_tr_b16 {R(dst(j)+2*m,2)}, v{4 if j<8 else 3} offset:{(j%8)*8192+m*2048}")
        done(); ts()
    def o_rd(dst):
        for j in range(9):
            for m in range(4): e(f"ds_read_b64_tr_b16 {R(dst(j)+2*m,2)}, v5 offset:{m*18432+j*128}")
        done(); ts()
    qk_dma(S_WQ, range(9)); rest(); e("v_add_u32 v3, 65536, v4")
    for g in range(3): arrive(24); qk_rd(WQ, g); qk_dma(S_WK, range(3 * g, 3 * g + 3))
    ts(); arrive(24); qk_rd(WK, 0); v_dma(0, range(6)); arrive(24); qk_rd(WK, 1); v_dma(0, range(6, 9)); arrive(18); qk_rd(WK, 2); o_dma(0); ts()
    arrive(18); v_rd(WVA); v_dma(1); arrive(18); o_rd(WO0); o_dma(1)
    e(f"s_mul_i32 s68, s{SW}, 18432"); e(f"s_add_u32 s68, s68, {WV_IMG}"); e("v_lshlrev_b32 v0, 4, v12"); e("v_add_u32 v6, s68, v0")
    e("v_add_u32 v7, 73728, v6")
    for img in range(2):
        arrive(18 - 18 * img); (v_rd, o_rd)[img](lambda j: 8 + 8 * j)
        for j in range(18): e(f"ds_write_b128 v{6+img}, {vr(8+4*j,4)} offset:{1024*j}")
        e("s_waitcnt lgkmcnt(0)")
    e("v_mov_b32 v4, v6"); e("v_lshrrev_b32 v12, 4, v0"); e("v_lshrrev_b32 v13, 4, v12"); e("v_and_b32 v14, 15, v12")
    e("v_mov_b32 v1, 0x44444444"); e("v_mov_b32 v15, 0xeeeeeeee"); e("v_cmp_le_u32 vcc, 8, v14"); e("s_nop 1"); e("v_cndmask_b32 v1, v1, v15, vcc")
    e("v_and_b32 v20, 1, v13"); e("v_lshlrev_b32 v15, 2, v20"); e("v_and_b32 v16, 7, v14"); e("v_sub_u32 v15, v16, v15")
    for r in range(2):
        e(f"v_mov_b32 v{2+r}, 0")
        for hh, val in ((0, 0x3f80), (1, 0x3f800000)):
            e(f"v_mov_b32 v17, {val:#x}"); e(f"v_cmp_eq_u32 vcc, {2*r+hh}, v15"); e("s_nop 1"); e(f"v_cndmask_b32 v{2+r}, v{2+r}, v17, vcc")
    e("v_lshlrev_b32 v17, 4, v16"); e("v_lshl_add_u32 v17, v13, 7, v17")
    e(f"s_lshl_b32 s68, s{SW}, 9"); e("v_add_u32 v7, s68, v17")
    e("v_lshrrev_b32 v18, 3, v14"); e("v_lshl_add_u32 v8, v18, 9, v17")
    e("v_lshl_add_u32 v5, v18, 11, v17"); e("v_lshl_add_u32 v6, v18, 3, v17")
    e("v_lshrrev_b32 v19, 1, v13"); e("v_lshl_add_u32 v19, v19, 3, v20"); e(f"s_lshl_b32 s68, s{SW}, 1"); e("v_add_u32 v19, s68, v19")
    e("v_lshlrev_b32 v9, 12, v19"); e("v_lshl_add_u32 v9, v16, 4, v9"); e("v_lshl_add_u32 v9, v18, 3, v9"); e(f"s_lshl_b32 s68, s{SH}, 7"); e("v_add_u32 v9, s68, v9")
    e(f"s_lshl_b32 s73, s{SW}, 5"); e(f"s_add_u32 s73, s73, s{SH}")
    e("v_lshrrev_b32 v19, 1, v13"); e("v_lshlrev_b32 v10, 2, v19"); e("v_lshl_add_u32 v10, v16, 4, v10"); e("v_lshl_add_u32 v10, v20, 3, v10")
    e("s_lshl_b32 s68, s73, 7"); e("v_add_u32 v10, s68, v10"); e("s_lshl_b32 s74, s73, 12"); swap67(39, 0)

def wait_flag(stb):
    a, o = uid("fl"), uid("flo")
    e(f"s_lshl_b32 s71, s{stb}, 5"); e(f"s_add_u32 s71, s71, s{SH}"); e("s_lshl_b32 s71, s71, 7"); e("s_bitset1_b32 s71, 16"); e("v_mov_b32 v28, 0")
    lab(a); e(f"buffer_load_dword v29, v28, {sr(S_FLG,4)}, s71 offen sc1"); e("s_waitcnt vmcnt(0)")
    e("v_cmp_ne_u32 vcc, 0, v29"); e(f"s_cbranch_vccnz {o}"); poll_tmo(a, o); lab(o)

def chain():
    chain_prologue()
    e(f"s_mov_b32 s{TMO}, 400000"); e(f"s_mov_b32 s{STEP}, 0")
    e("s_mov_b32 s75, 0"); e("s_mov_b32 s76, 9216"); e("s_mov_b32 s77, 18432")
    e("s_mov_b32 s78, 0")
    e(f"s_lshl_b32 s79, s{SH}, 13")
    e(f"s_mov_b32 s80, {f2u(128**-0.5*LOG2E)}"); e("s_mov_b32 s82, 0x00ff00ff"); e("s_mov_b32 s83, 0x00ff00ff")
    e(f"s_lshl_b32 s81, s{SH}, 7"); e("s_add_u32 s81, s81, 28672")
    e("s_mov_b32 s86, 0"); e(f"s_cmp_lg_u32 s{SW}, 3"); e("s_cbranch_scc1 nofl0"); wait_flag(86); lab("nofl0"); e("s_barrier")
    KX, VX, AL, ACC, WL = 12, 20, 28, 40, 64
    z2 = lambda r: e(f"v_mov_b64 {vr(r,2)}, 0")
    e(f"s_mul_i32 s84, s{SW}, 3072")
    if PROF:
        e("s_memtime s[40:41]")
        for i in range(12 * ('t' not in X)): e(f"s_mov_b32 s{90+i}, 0")
    lab("step"); stamp()
    e(f"s_add_u32 s87, s75, s84"); e("v_add_u32 v11, s84, v0")
    def mp_ld(b):
        for i in range(3): e(f"buffer_load_dwordx4 {vr(b[i],4)}, v39, {sr(S_MH,4)}, s87 offen offset:{1024*i} sc1")
    def mp_ck(b):
        e("s_waitcnt vmcnt(3)")
        p, q, r = b
        e(f"ds_write_b128 v11, {vr(p,4)}"); e(f"v_max3_u32 v36, v{p}, v{p+1}, v{p+2}"); e(f"v_max3_u32 v37, v{p+3}, v{q}, v{q+1}")
        e(f"ds_write_b128 v11, {vr(q,4)} offset:1024"); e(f"v_max3_u32 v38, v{q+2}, v{q+3}, v{r}"); e(f"v_max3_u32 v36, v36, v{r+1}, v{r+2}")
        e(f"ds_write_b128 v11, {vr(r,4)} offset:2048"); e(f"v_max3_u32 v37, v37, v38, v{r+3}")
        e("v_max_u32 v36, v36, v37"); e("v_cmp_eq_u32 vcc, -1, v36"); e("s_cbranch_vccz mpo")
    e(f"s_cmp_lg_u32 s{SW}, 3"); e("s_cbranch_scc1 mp0")
    for r in range(ACC, ACC + 24, 2): z2(r)
    e("s_branch mp3"); lab("mp0")
    mp_ld((12,16,20))
    for r in range(ACC, ACC + 24, 2): z2(r)
    lab("mp"); mp_ld((24,72,76)); mp_ck((12,16,20)); e("s_waitcnt lgkmcnt(0)"); mp_ld((12,16,20)); mp_ck((24,72,76)); e("s_waitcnt lgkmcnt(0)"); poll_tmo("mp", "mpo"); lab("mpo")
    lab("mp3"); stamp()
    e(f"s_lshl_b32 s87, s{SWL}, 1"); e("s_add_u32 s87, s87, s79"); e(f"s_add_u32 s88, s79, s{SWL}"); e("s_add_u32 s89, s88, 4096")
    e("s_waitcnt lgkmcnt(0)"); e("s_barrier")
    d = DS(); stamp()
    def prog(val):
        e(f"v_mov_b32 v11, {val}"); e("s_mov_b64 exec, 1"); e(f"buffer_store_dword v11, v0, {sr(S_FLG,4)}, s81 offen sc1"); e("s_mov_b64 exec, -1")
    def rdA(j): d.op(f"ds_read_b128 {vr(AL+4*(j%3),4)}, v0 offset:{MI+j*1024}", ('a', j))
    def rdW(dst, adr, i, tag):
        for m in range(2): d.op(f"ds_read_b128 {vr(dst+4*m,4)}, v{adr} offset:{i*2048+m*1024}", tag)
    rdV = lambda j: rdW(WL + 8 * (j % 2), 4, j, ('wv', j))
    for j in range(3): rdA(j)
    rdV(0)
    for i in range(2): e(f"buffer_load_dwordx4 {vr(KX+4*i,4)}, v0, {sr(S_KF,4)}, s87 offen offset:{1024*i} sc1")
    for i in range(2): e(f"buffer_load_dwordx4 {vr(VX+4*i,4)}, v0, {sr(S_VF,4)}, s{88+i} offen sc1")
    def vA(j): smf(56, AL + 4 * (j % 3), WVA(j))
    def vB(j): d.need(('wv', j)); smf(60, AL + 4 * (j % 3), WL + 8 * (j % 2))
    for j in range(9):
        d.need(('a', j))
        for t in range(2): smf(ACC + 4 * t, AL + 4 * (j % 3), WQ(j, t))
        for t in range(2): smf(ACC + 8 + 4 * t, AL + 4 * (j % 3), WK(j, t))
        if j == 0: e("s_waitcnt vmcnt(4)"); rdV(1); e(f"s_cmp_lg_u32 s{SW}, 3"); e("s_cbranch_scc1 noprog"); prog(f"s{STEP}"); lab("noprog")
        if j < 7:
            vA(j); vB(j); rdV(j + 2)
            if j + 3 < 9: rdA(j + 3)
    stamp()
    tr = lambda dd, a: e(f"v_mfma_f32_16x16x16_bf16 {vr(dd,4)}, {vr(a,2)}, v[2:3], 0")
    vA(7); vB(7); e("v_add_u32 v11, 73728, v4"); e("s_nop 3")
    WLS = (72, 64, 20)
    rdO = lambda i: rdW(WLS[i % 3], 11, i, ('wo', i))
    cvt(28, 40, 4); rdO(0); tr(40, 28); tr(44, 30)
    cvt(28, 48, 4); e("s_nop 1"); tr(48, 28); tr(52, 30)
    vA(8)
    cvt(28, 40, 4); e("s_nop 2"); cvt(40, 48, 4); e("s_waitcnt vmcnt(2)")
    for n, a in ((1, KX), (2, KX + 4), (0, 40)): e(f"v_mfma_f32_16x16x32_bf16 {vr(44+4*n,4)}, {vr(a,4)}, v[28:31], 0")
    vB(8); e(f"buffer_store_dwordx4 v[40:43], v0, {sr(S_KVM,4)}, s87 offen sc1"); rdO(1); e("s_nop 2")
    for n in (1, 2, 0): d.op(f"ds_write_b128 v7, {vr(44+4*n,4)} offset:{SREG+2048*n}")
    stamp()
    e("v_mov_b32 v32, 0x3f803f80"); e("v_mov_b32 v33, 0x3f803f80"); e("v_mov_b64 v[34:35], v[32:33]"); e("v_mov_b32 v36, 0x3f003f00"); e("v_mov_b32 v37, 0x3f003f00")
    cvt(40, 56, 4)
    d.drain(); e("s_barrier"); stamp()
    SX = (44, 48, 52, 56); SM = (12, 14, 16, 18)
    for w in range(4):
        d.op(f"ds_read_b128 {vr(SX[w],4)}, v5 offset:{SREG+2048+512*w}"); d.op(f"ds_read_b64 {vr(SM[w],2)}, v6 offset:{SREG+512*w}", ('s', w))
    e(f"buffer_store_dwordx4 v[40:43], v0, {sr(S_KVM,4)}, s87 offen offset:1024 sc1")
    e(f"s_cmp_eq_u32 s{STEP}, 63"); e("s_cbranch_scc1 chain_end")
    z2(60); z2(62)
    pk = lambda op, dd, a, b: e(f"v_pk_{op}_f32 {vr(dd,2)}, {vr(a,2)}, {vr(b,2)}")
    d.need(('s', 1)); pk("add", 44, 44, 48); pk("add", 46, 46, 50); pk("add", 12, 12, 14)
    d.need(('s', 3)); pk("add", 52, 52, 56); pk("add", 54, 54, 58); pk("add", 16, 16, 18)
    pk("add", 44, 44, 52); pk("add", 46, 46, 54); pk("add", 48, 12, 16)
    e("v_max3_f32 v38, v44, v45, v46"); e("v_max3_f32 v39, v47, v48, v49"); e("v_max_f32 v38, v38, v39"); z2(52); z2(54)
    e("v_max_f32_dpp v38, v38, v38 row_ror:8 row_mask:0xf bank_mask:0xf"); e("v_mov_b32 v39, v38"); z2(56); z2(58)
    e("v_permlane32_swap_b32 v38, v39"); e("v_max_f32 v38, v38, v39"); e("v_mov_b32 v39, v38"); e("s_nop 1")
    e("v_permlane16_swap_b32 v38, v39"); e("v_max_f32 v38, v38, v39"); e("v_mul_f32 v38, s80, v38")
    for r in range(44, 50): e(f"v_fma_f32 v{r}, v{r}, s80, -v38")
    for r in range(44, 50): e(f"v_exp_f32 v{r}, v{r}")
    cvt(12, 44, 2); e("v_cvt_pk_bf16_f32 v16, v48, v49"); e("s_waitcnt vmcnt(2)")
    for dd, a in ((14, 12), (15, 13), (17, 16)): e(f"v_mov_b32_dpp v{dd}, v{a} row_ror:8 row_mask:0xf bank_mask:0xf")
    e("s_nop 0")
    for dd, a in ((28, 32), (44, VX), (48, VX + 4)): e(f"v_mfma_f32_16x16x32_bf16 {vr(dd,4)}, {vr(a,4)}, v[12:15], 0")
    for dd, a in ((28, 36), (44, 40), (48, 42)): e(f"v_mfma_f32_16x16x16_bf16 {vr(dd,4)}, {vr(a,2)}, v[16:17], {vr(dd,4)}")
    rdO(2); stamp()
    OA = [52, 56, 60, 12, 16, 36, 40, 44, 48]
    for r in (12, 14, 16, 18): z2(r)
    e("v_rcp_f32 v28, v28"); z2(36); e("v_mov_b32 v29, v28")
    for r in range(44, 52, 2): pk("mul", r, r, 28)
    cvt(32, 44, 4)
    e("s_mov_b64 exec, s[82:83]"); d.op("ds_write_b128 v7, v[32:35]"); e("s_mov_b64 exec, -1")
    for r in range(38, 52, 2): z2(r)
    d.drain(); e("s_barrier")
    for k in range(2): d.op(f"ds_read_b128 {vr(AL+4*k,4)}, v8 offset:{1024*k}", ('o', k))
    def fold(i):
        a, b = OA[i], OA[i + 1] if i < 8 else 28
        ins = []
        if i == 8: ins += [f"v_mov_b64 {vr(b,2)}, {vr(a,2)}", f"v_mov_b64 {vr(b+2,2)}, {vr(a+2,2)}", "s_nop 0"]
        ins += [f"v_permlane32_swap_b32 v{a+q}, v{b+q}" for q in range(4)]
        ins += [f"v_pk_add_f32 {vr(a+q,2)}, {vr(a+q,2)}, {vr(b+q,2)}" for q in (0, 2)]
        ins += [f"v_cvt_pk_bf16_f32 v{a}, v{a}, v{a+1}", f"v_cvt_pk_bf16_f32 v{a+1}, v{a+2}, v{a+3}"]
        if i == 8: ins += ["s_mov_b32 exec_hi, 0"]
        ins += [f"buffer_store_dwordx2 {vr(a,2)}, v9, {sr(S_P1,4)}, s{66+i//2} offen"]
        if i == 8: ins += ["s_mov_b64 exec, -1"]
        return ins
    for i in range(5): e(f"s_add_u32 s{66+i}, s78, {i*65536}")
    d.need(('o', 0)); stamp()
    for i in range(3): smf(OA[i], AL, WO0(i))
    d.need(('o', 1))
    pend = []
    def fill(n):
        for _ in range(n):
            if pend: e(pend.pop(0))
    for i in range(9):
        d.need(('wo', i)); smf(OA[i], AL + 4, WLS[i % 3])
        if i + 3 < 9: rdO(i + 3); smf(OA[i + 3], AL, WO0(i + 3))
        if i in (3, 5, 7): pend += fold(i - 3)
        fill(3)
    fill(99); pend += fold(6) + fold(8); fill(99)
    stamp()
    e("s_cmp_lt_u32 s73, 72"); e("s_cbranch_scc1 red_go"); swap67(39, 0); e(f"s_cmp_lg_u32 s{SW}, 3"); e("s_cbranch_scc1 red_done")
    e(f"s_add_u32 s86, s{STEP}, 1"); e("s_and_b32 s87, s86, 3"); e("s_cbranch_scc1 nofl"); e("s_lshr_b32 s86, s86, 2"); wait_flag(86); lab("nofl")
    e("s_waitcnt vmcnt(0)"); e("s_branch red_done"); lab("red_go")
    e("s_add_u32 s87, s78, s74")
    def rp_ld(b):
        for i in range(4): e(f"buffer_load_dwordx4 {vr(b+4*i,4)}, v0, {sr(S_P1,4)}, s87 offen offset:{1024*i} sc1")
    def rp_ck(b):
        for i in range(4):
            e(f"s_waitcnt vmcnt({7-i})"); e(f"v_mfma_f32_16x16x32_bf16 v[72:75], {vr(b+4*i,4)}, v[64:67], {'v[72:75]' if i else 0}")
        e("s_nop 7"); e("v_permlane32_swap_b32 v72, v74"); e("v_permlane32_swap_b32 v73, v75"); e("v_add_f32 v72, v72, v74"); e("v_add_f32 v73, v73, v75")
        e("v_cmp_u_f32 vcc, v72, v73"); e("v_cvt_pk_bf16_f32 v76, v72, v73"); e("s_cbranch_vccz rpo")
    for r in range(68, 72): e(f"v_mov_b32 v{r}, -1")
    e("s_mov_b64 exec, s[82:83]"); e(f"buffer_store_dword v68, v10, {sr(S_MH,4)}, s77 offen"); e("s_mov_b64 exec, -1")
    e("v_and_b32 v76, 0x30, v0"); e("v_mov_b32 v64, 0x3f80"); e("v_mov_b32 v65, 0"); e("v_lshlrev_b64 v[64:65], v76, v[64:65]"); e("v_bfe_i32 v76, v0, 6, 1")
    e("v_and_b32 v66, v64, v76"); e("v_and_b32 v67, v65, v76"); e("v_xor_b32 v64, v64, v66"); e("v_xor_b32 v65, v65, v67"); swap67(39, 0)
    if 'b' in X: e("s_waitcnt vmcnt(0)")
    if 'c' in X: stamp()
    rp_ld(12)
    lab("rp"); rp_ld(44); rp_ck(12); rp_ld(12); rp_ck(44); poll_tmo("rp", "rpo"); lab("rpo"); stamp()
    e("s_mov_b64 exec, s[82:83]"); e(f"buffer_store_dword v76, v10, {sr(S_MH,4)}, s76 offen"); e("s_mov_b64 exec, -1"); e("s_waitcnt vmcnt(1)")
    for i in range(4): e(f"buffer_store_dwordx4 v[68:71], v0, {sr(S_P1,4)}, s87 offen offset:{1024*i}")
    lab("red_done"); e("s_barrier"); lab("red_done2"); stamp()
    if PROF:
        e("s_waitcnt lgkmcnt(0)")
        for i in range((_st[0]-1) * ('t' not in X)): e(f"s_sub_u32 s87, s{10+2*i}, s{8+2*i}"); e(f"s_add_u32 s{90+i}, s{90+i}, s87")
    e(f"s_add_u32 s{STEP}, s{STEP}, 1"); e(f"s_xor_b32 s78, s78, {72*8192}"); e(f"s_add_u32 s79, s79, {32*8192}")
    e("s_mov_b32 s87, s75"); e("s_mov_b32 s75, s76"); e("s_mov_b32 s76, s77"); e("s_mov_b32 s77, s87")
    e("s_branch step")
    lab("chain_end"); e("s_waitcnt vmcnt(0)"); e("s_barrier"); prog(64)
    if PROF:
        e("s_memtime s[42:43]"); srd_arg(8, 'dbg'); e("s_waitcnt lgkmcnt(0)")
        e("s_sub_u32 s100, s40, s44"); e("s_sub_u32 s101, s42, s40")
        e(f"s_cmp_lg_u32 s{SH}, 0"); e("s_cbranch_scc1 prof_end"); e(f"s_mul_i32 s87, s{SW}, 48"); e("s_add_u32 s87, s87, 64"); e("v_mov_b32 v2, 0")
        for i in range(12): e(f"v_mov_b32 v3, s{90+i}"); e(f"buffer_store_dword v3, v2, s[8:11], s87 offen offset:{4*i}")
        lab("prof_end")
    e("s_endpgm")

def k_main():
    kstart("main_kernel"); guard(256)
    if PROF: e("s_memtime s[44:45]")
    e(f"s_load_dwordx2 s[4:5], s[0:1], {ARG['ws']}")
    for s, n in ((S_WQ, 'wq'), (S_WK, 'wk'), (S_WV, 'wv'), (S_WO, 'wo'), (72, 'dbg')): srd_arg(s, n)
    wave_id(SW, SWL); e("s_waitcnt lgkmcnt(0)")
    for s, n in ((S_XN, 'xn'), (S_QF, 'qf'), (S_KF, 'kf'), (S_VF, 'vf'), (S_FLG, 'flg'), (S_P1, 'p1'), (S_MH, 'mh'), (S_KVM, 'kvm')): srd_ws(s, n, 4)
    roles()
    e(f"s_cmp_ge_u32 s{SH}, 224"); e("s_cbranch_scc1 is_chain")
    worker()
    lab("is_chain"); e(f"s_and_b32 s{SH}, s{SH}, 31")
    chain()
    return kdesc("main_kernel", 512, 256)
```

```python
from common import *
LOG2E = 1.4426950408889634
import struct, os
def f2u(x): return "%#x" % struct.unpack("<I", struct.pack("<f", x))[0]
def guard(n):
    ex = uid("go"); e(f"s_cmp_lt_u32 s2, {n}"); e(f"s_cbranch_scc1 {ex}"); e("s_endpgm"); lab(ex)
def wave_id(sw, swl):
    e("v_lshrrev_b32 v1, 6, v0"); e("s_nop 0"); e(f"v_readfirstlane_b32 s{sw}, v1"); e(f"s_lshl_b32 s{swl}, s{sw}, 10")
def red16(op, v, t):
    for n in (8, 4, 2, 1):
        e("s_nop 1"); e(f"{op}_dpp v{v}, v{v}, v{v} row_ror:{n} row_mask:0xf bank_mask:0xf")
def xswap(kind, op, v, t):
    e(f"v_mov_b32 v{t}, v{v}"); e("s_nop 1"); e(f"v_permlane{kind}_swap_b32 v{v}, v{t}"); e("s_nop 0"); e(f"{op} v{v}, v{v}, v{t}")

def swap67(d, x):
    e(f"v_lshrrev_b32 v{d}, 1, v{x}"); e(f"v_xor_b32 v{d}, v{d}, v{x}"); e(f"v_bfe_i32 v{d}, v{d}, 6, 1"); e(f"v_and_b32 v{d}, 0xc0, v{d}"); e(f"v_xor_b32 v{d}, v{d}, v{x}")
def ln_body(ssrc, sdst, double, touch=None):
    e("v_lshrrev_b32 v1, 5, v0"); e("s_lshl_b32 s3, s2, 3"); e("v_add_u32 v1, s3, v1")
    e("v_mul_u32_u24 v1, 1152, v1"); e("v_and_b32 v2, 31, v0"); e("v_lshl_add_u32 v1, v2, 2, v1")
    for i in range(9): e(f"buffer_load_dword v{10+i}, v1, {sr(ssrc,4)}, 0 offen offset:{128*i}")
    e(f"s_waitcnt vmcnt({touch()})")
    for i in range(9):
        e(f"v_lshlrev_b32 v{20+2*i}, 16, v{10+i}"); e(f"v_and_b32 v{21+2*i}, 0xffff0000, v{10+i}")
    e("v_add_f32 v3, v20, v21")
    for i in range(2, 18): e(f"v_add_f32 v3, v3, v{20+i}")
    red16("v_add_f32", 3, 4); xswap(16, "v_add_f32", 3, 4)
    e(f"v_mul_f32 v3, {f2u(1/576)}, v3")
    for i in range(18): e(f"v_sub_f32 v{20+i}, v{20+i}, v3")
    e("v_mul_f32 v3, v20, v20")
    for i in range(1, 18): e(f"v_fmac_f32 v3, v{20+i}, v{20+i}")
    red16("v_add_f32", 3, 4); xswap(16, "v_add_f32", 3, 4)
    e(f"v_mul_f32 v3, {f2u(1/576)}, v3"); e(f"v_add_f32 v4, {f2u(1e-5)}, v3"); e("v_rsq_f32 v4, v4"); e("s_nop 0")
    if double:
        e("v_mul_f32 v3, v3, v4"); e("v_mul_f32 v3, v3, v4"); e(f"v_add_f32 v3, {f2u(1e-5)}, v3")
        e("v_rsq_f32 v3, v3"); e("s_nop 0"); e("v_mul_f32 v4, v4, v3")
    for i in range(18): e(f"v_mul_f32 v{20+i}, v{20+i}, v4")
    for i in range(9):
        e(f"v_cvt_pk_bf16_f32 v{10+i}, v{20+2*i}, v{21+2*i}")
        e(f"buffer_store_dword v{10+i}, v1, {sr(sdst,4)}, 0 offen offset:{128*i}")

def k_init():
    kstart("init_kernel"); guard(256)
    e(f"s_load_dwordx2 s[4:5], s[0:1], {ARG['ws']}"); srd_arg(8, 'x'); srd_arg(12, 'mem0'); e("s_waitcnt lgkmcnt(0)")
    srd_ws(16, 'xn', 4); srd_ws(20, 'p1', 4); srd_ws(24, 'mh', 4); srd_ws(28, 'flg', 4); srd_ws(32, 'mh', 4)
    e("s_mov_b32 s34, 9216")
    def touch():
        if 'i' not in os.environ.get('X', ''): return 0
        for i, n in enumerate(('wq', 'wk', 'wv', 'wo')): srd_arg(36 + 4 * i, n)
        e("v_mul_u32_u24 v5, 72, v40"); e("s_waitcnt lgkmcnt(0)")
        for i in range(4): e(f"buffer_load_dword v{6+i}, v5, {sr(36+4*i,4)}, 0 offen")
        return 4
    e("s_lshl_b32 s3, s2, 8"); e("v_add_u32 v40, s3, v0"); e("v_lshlrev_b32 v41, 4, v40")
    e("v_and_b32 v42, 7, v40"); e("v_mul_u32_u24 v42, 1152, v42"); e("v_lshrrev_b32 v43, 3, v40"); e("v_lshl_add_u32 v42, v43, 4, v42")
    e("buffer_load_dwordx4 v[44:47], v42, s[12:15], 0 offen")
    for i in range(4): e(f"v_mov_b32 v{48+i}, -1"); e(f"v_mov_b32 v{52+i}, 0")
    e("s_mov_b32 s6, 1048576"); e("s_mov_b32 s7, 9216")
    e("buffer_store_dwordx4 v[48:51], v41, s[20:23], 0 offen"); e("buffer_store_dwordx4 v[48:51], v41, s[20:23], s6 offen")
    e("buffer_store_dwordx4 v[48:51], v41, s[24:27], s7 offen"); e("buffer_store_dwordx4 v[52:55], v41, s[28:31], 0 offen")
    ln_body(8, 16, False, touch)
    swap67(42, 41); e("buffer_store_dwordx4 v[44:47], v42, s[32:35], 0 offen")
    e("s_endpgm")
    return kdesc("init_kernel", 56, 56)

def k_ln2():
    kstart("ln2_kernel"); guard(256)
    e(f"s_load_dwordx2 s[4:5], s[0:1], {ARG['ws']}"); e("s_waitcnt lgkmcnt(0)")
    srd_ws(8, 'h', 4); srd_ws(16, 'hn', 4)
    ln_body(8, 16, True); e("s_endpgm")
    return kdesc("ln2_kernel", 40, 40)

def attn_body(sq, sk, sv, skm, stask, mid, aux="sc1"):
    Q, K, V, KM, VM, S, O = 8, 40, 72, 104, 120, 136, 8
    e("v_and_b32 v1, 63, v0"); e("v_lshlrev_b32 v2, 4, v1"); e(f"s_lshl_b32 s40, s{stask}, 13"); e("s_add_u32 s41, s40, 4096")
    for b, s in ((K, sk), (Q, sq), (V, sv)):
        for i in range(8): e(f"buffer_load_dwordx4 {vr(b+4*i,4)}, v2, {sr(s,4)}, s{40+i//4} offen offset:{(i%4)*1024} {aux}")
    e("v_and_b32 v3, 15, v1"); e("v_lshrrev_b32 v4, 4, v1"); e("v_lshlrev_b32 v5, 2, v4"); e("v_sub_u32 v5, v3, v5")
    tiles = [(0, 'm'), (0, 0), (1, 'm'), (1, 0), (1, 1)]
    def smm(mem):
        for ec in range(4):
            for n, (tt, kt) in enumerate(tiles):
                if (kt == 'm') != mem: continue
                a = KM + 4 * ec if kt == 'm' else K + 4 * (2 * ec + kt)
                e(f"v_mfma_f32_16x16x32_bf16 {vr(S+4*n,4)}, {vr(a,4)}, {vr(Q+4*(2*ec+tt),4)}, {vr(S+4*n,4) if ec else 0}")
    e("s_waitcnt vmcnt(8)"); smm(False); mid()
    for b, o in ((KM, 0), (VM, 1024)):
        for i in range(4): e(f"buffer_load_dwordx4 {vr(b+4*i,4)}, v2, {sr(skm,4)}, s{40+i//2} offen offset:{(i%2)*2048+o} {aux}")
    e("s_waitcnt vmcnt(4)"); smm(True)
    e("s_nop 7"); e(f"v_mov_b32 v7, {f2u(-1e30)}")
    for i in range(4):
        e(f"v_cmp_le_i32 vcc, {i}, v5"); e("s_nop 1")
        for n in (1, 4): e(f"v_cndmask_b32 v{S+4*n+i}, v7, v{S+4*n+i}, vcc")
    e(f"s_mov_b32 s44, {f2u(128**-0.5*LOG2E)}")
    P = 160
    for tt, rs in ((0, list(range(S, S+8))), (1, list(range(S+8, S+20)))):
        m, t, l = 156, 157, 158
        e(f"v_max_f32 v{m}, v{rs[0]}, v{rs[1]}")
        for i in range(2, len(rs), 2): e(f"v_max3_f32 v{m}, v{m}, v{rs[i]}, v{rs[i+1]}")
        xswap(32, "v_max_f32", m, t); xswap(16, "v_max_f32", m, t)
        e(f"v_mul_f32 v{m}, s44, v{m}")
        for r in rs: e(f"v_fma_f32 v{r}, v{r}, s44, -v{m}")
        for r in rs: e(f"v_exp_f32 v{r}, v{r}")
        e(f"v_add_f32 v{l}, v{rs[0]}, v{rs[1]}"); e(f"v_add_f32 v{l}, v{l}, v{rs[2]}"); e(f"v_add_f32 v{l}, v{l}, v{rs[3]}")
        e(f"v_mul_f32 v{l}, 0.5, v{l}")
        for r in rs[4:]: e(f"v_add_f32 v{l}, v{l}, v{r}")
        xswap(32, "v_add_f32", l, t); xswap(16, "v_add_f32", l, t)
        e(f"v_rcp_f32 v{l}, v{l}"); e("s_nop 0")
        for r in rs: e(f"v_mul_f32 v{r}, v{r}, v{l}")
        p = P + 8 * tt
        e(f"v_cvt_pk_bf16_f32 v{p+4}, v{rs[0]}, v{rs[1]}"); e(f"v_cvt_pk_bf16_f32 v{p+5}, v{rs[2]}, v{rs[3]}")
        for i in range(4):
            if 4 + 2 * i < len(rs): e(f"v_cvt_pk_bf16_f32 v{p+i}, v{rs[4+2*i]}, v{rs[5+2*i]}")
            else: e(f"v_mov_b32 v{p+i}, 0")
    e("s_waitcnt vmcnt(0)"); e("s_nop 1")
    for tt in range(2):
        for et in range(8):
            o = O + 4 * (8 * tt + et)
            e(f"v_mfma_f32_16x16x32_bf16 {vr(o,4)}, {vr(V+4*et,4)}, {vr(P+8*tt,4)}, 0")
        for et in range(8):
            o = O + 4 * (8 * tt + et)
            e(f"v_mfma_f32_16x16x16_bf16 {vr(o,4)}, {vr(VM+4*(et%4)+2*(et//4),2)}, {vr(P+8*tt+4,2)}, {vr(o,4)}")
    e("s_nop 7")
    for tt in range(2):
        for m in range(4):
            o = O + 4 * (8 * tt + 2 * m); d = 72 + 16 * tt + 4 * m
            for i in range(4): e(f"v_cvt_pk_bf16_f32 v{d+i}, v{o+2*i}, v{o+2*i+1}")

def mlp1_epi(ACC, T, sft, sdt, sdw, sfw, sb, su):
    e(f"s_lshl_b32 s42, s{sft}, 3"); e(f"s_add_u32 s42, s42, s{sfw}"); e("s_lshl_b32 s42, s42, 5")
    e("v_lshlrev_b32 v4, 3, v3")
    for j in range(4): e(f"buffer_load_dwordx2 {vr(T+2*j,2)}, v4, {sr(sb,4)}, s42 offen offset:{32*j}")
    e(f"s_mul_i32 s43, s{sdt}, 6"); e(f"s_add_u32 s43, s43, s{sdw}"); e(f"s_mul_i32 s43, s43, {16*9216}"); e("s_add_u32 s43, s43, s42")
    e("v_mul_u32_u24 v5, 9216, v2"); e("v_lshl_add_u32 v5, v3, 4, v5")
    e("s_waitcnt vmcnt(0)")
    for j in range(4):
        for q in range(4):
            e(f"v_lshlrev_b32 v{T+8+4*j+q}, 16, v{T+2*j+q//2}" if q % 2 == 0 else f"v_and_b32 v{T+8+4*j+q}, 0xffff0000, v{T+2*j+q//2}")
    c0 = -2 * 0.7978845608028654 * LOG2E
    e(f"s_mov_b32 s45, {f2u(c0*0.044715)}"); e(f"v_mov_b32 v6, {f2u(c0)}")
    for i in range(3):
        for j in range(4):
            a = ACC + 4 * (i * 4 + j); t = T + 24
            for q in range(4): e(f"v_add_f32 v{a+q}, v{a+q}, v{T+8+4*j+q}")
            for q in range(4): e(f"v_mul_f32 v{t+q}, v{a+q}, v{a+q}")
            for q in range(4): e(f"v_fma_f32 v{t+q}, v{t+q}, s45, v6")
            for q in range(4): e(f"v_mul_f32 v{t+q}, v{t+q}, v{a+q}")
            for q in range(4): e(f"v_exp_f32 v{t+q}, v{t+q}")
            for q in range(4): e(f"v_add_f32 v{t+q}, 1.0, v{t+q}")
            for q in range(4): e(f"v_rcp_f32 v{t+q}, v{t+q}")
            for q in range(4): e(f"v_mul_f32 v{a+q}, v{a+q}, v{t+q}")
        for m in range(2):
            a = ACC + 4 * (i * 4 + 2 * m)
            for q in range(4): e(f"v_cvt_pk_bf16_f32 v{a+q}, v{a+2*q}, v{a+2*q+1}")
            e(f"buffer_store_dwordx4 {vr(a,4)}, v5, {sr(su,4)}, s43 offen offset:{64*m}")
        e(f"s_add_u32 s43, s43, {16*9216}")

def gemm_kernel(name, which):
    n_wg = {'B': 192, 'C': 216, 'D': 192}[which]
    kstart(name); guard(n_wg)
    e(f"s_load_dwordx2 s[4:5], s[0:1], {ARG['ws']}")
    if which == 'B': srd_arg(12, 'wo'); srd_arg(16, 'x')
    if which == 'C': srd_arg(12, 'w1'); srd_arg(16, 'b1')
    if which == 'D': srd_arg(12, 'w2'); srd_arg(24, 'b2'); srd_arg(20, 'out')
    wave_id(6, 7); e("s_waitcnt lgkmcnt(0)")
    e("s_and_b32 s30, s2, 7"); e(f"s_mul_i32 s30, s30, {n_wg//8}"); e("s_lshr_b32 s31, s2, 3"); e("s_add_u32 s30, s30, s31")
    sdivmod(31, 32, 30, 6, 256)
    e("s_and_b32 s33, s6, 1"); e("s_lshr_b32 s34, s6, 1"); e("s_mul_i32 s35, s33, 3")
    if which == 'B':
        srd_ws(8, 'o', 4); srd_ws(20, 'h', 4); e("s_lshl_b32 s36, s34, 1")
        X = Op('t', 96, 1152, 12, 40, "s35", 3, perm=True); Y = Op('k', 64, 8192, 8, 41, "s36", 2)
        e("s_mul_i32 s40, s32, 192"); e("s_lshl_b32 s41, s31, 19"); nk, ns = 64, 4
    if which == 'C':
        srd_ws(8, 'hn', 4); srd_ws(20, 'u', 4); e("s_lshl_b32 s36, s34, 2")
        X = Op('t', 96, 1152, 8, 40, "s35", 3); Y = Op('t', 128, 9216, 12, 41, "s36", 4)
        e("s_mul_i32 s40, s32, 192"); e("s_lshl_b32 s41, s31, 8"); nk, ns = 32, 4
    if which == 'D':
        srd_ws(8, 'u', 4); srd_ws(16, 'h', 4); e("s_lshl_b32 s36, s34, 1")
        X = Op('k', 96, 9216, 8, 40, "s35", 3); Y = Op('t', 64, 4096, 12, 41, "s36", 2, perm=True)
        e(f"s_mul_i32 s40, s32, {96*9216}"); e("s_lshl_b32 s41, s31, 7"); nk, ns = 72, int(os.environ.get("NS", 4))
    vb, stage = gemm_setup([X, Y], 8, 6, 2)
    ACC = 32; assert vb <= ACC
    na = X.nt * Y.nt; FB = ACC + 4 * na
    zero(ACC, 4 * na)
    if which == 'C': mf = [(ACC + 4 * (i * Y.nt + j), Y, j, X, i) for i in range(X.nt) for j in range(Y.nt)]
    else: mf = [(ACC + 4 * (i * Y.nt + j), X, i, Y, j) for i in range(X.nt) for j in range(Y.nt)]
    nbuf = 12
    gemm_loop([X, Y], mf, nk, ns, stage, FB, nbuf, 7, 38, 39)
    e("v_and_b32 v2, 15, v0"); e("v_bfe_u32 v3, v0, 4, 2")
    T = FB
    if which in 'BD':
        e("s_lshl_b32 s42, s31, 2"); e("s_add_u32 s42, s42, s36"); e("s_lshl_b32 s42, s42, 4")
        e("v_add_u32 v4, s42, v2"); e("v_mul_u32_u24 v5, 1152, v4"); e("v_lshl_add_u32 v5, v3, 3, v5")
        e("s_mul_i32 s43, s32, 192"); e("s_lshl_b32 s44, s35, 5"); e("s_add_u32 s43, s43, s44"); e(f"s_add_u32 s44, s43, {16*1152}")
        for i in range(3):
            for j in range(2): e(f"buffer_load_dwordx2 {vr(T+2*(i*2+j),2)}, v5, s[16:19], s{43+j} offen offset:{32*i}")
        if which == 'D':
            e("v_lshlrev_b32 v4, 1, v4")
            for j in range(2): e(f"buffer_load_ushort v{6+j}, v4, s[24:27], 0 offen offset:{32*j}")
        e("s_waitcnt vmcnt(0)")
        if which == 'D':
            for j in range(2): e(f"v_lshlrev_b32 v{6+j}, 16, v{6+j}")
        for i in range(3):
            for j in range(2):
                a = ACC + 4 * (i * 2 + j); t = T + 2 * (i * 2 + j)
                for q in range(4):
                    if which == 'D': e(f"v_add_f32 v{a+q}, v{a+q}, v{6+j}")
                    e(f"v_lshlrev_b32 v1, 16, v{t+q//2}" if q % 2 == 0 else f"v_and_b32 v1, 0xffff0000, v{t+q//2}")
                    e(f"v_add_f32 v{a+q}, v{a+q}, v1")
                e(f"v_cvt_pk_bf16_f32 v{a}, v{a}, v{a+1}"); e(f"v_cvt_pk_bf16_f32 v{a+1}, v{a+2}, v{a+3}")
                e(f"buffer_store_dwordx2 {vr(a,2)}, v5, s[20:23], s{43+j} offen offset:{32*i}")
    else:
        mlp1_epi(ACC, T, 31, 32, 35, 36, 16, 20)
    e("s_endpgm")
    nv = (FB + 4 * nbuf + 7) // 8 * 8
    return kdesc(name, nv, nv), n_wg, ns * stage
```

```python
from common import *
from simple import *
import os
PROF = int(os.environ.get('PROF', 0))
_st = [0]
def stamp():
    if PROF:
        e(f's_memtime s[{8+2*_st[0]}:{9+2*_st[0]}]'); _st[0] += 1
X = os.environ.get('X', '')
MI, SREG, WB = 0, 9216, 15360
WV_IMG, WO_IMG = WB, WB + 73728
LDS_A = WB + 147456
def wop(i):
    return 256 + 8 * i if i < 32 else 80 + 8 * (i - 32)
WQ = lambda j, t: wop(2 * j + t)
WK = lambda j, t: wop(18 + 2 * j + t)
WVA = lambda j: wop(36 + j)
WO0 = lambda i: wop(45 + i)
class DS:
    def __init__(s): s.n = 0; s.tag = {}; s.w = 0
    def op(s, ins, tag=None):
        e(ins); s.n += 1
        if tag is not None: s.tag[tag] = s.n
    def need(s, tag):
        r = s.tag[tag]
        if r > s.w:
            c = min(s.n - r, 15); e(f"s_waitcnt lgkmcnt({c})"); s.w = s.n - c
    def drain(s): e("s_waitcnt lgkmcnt(0)"); s.w = s.n
def smf(d, a, b): e(f"v_smfmac_f32_16x16x64_bf16 {vr(d,4)}, {vr(a,4)}, {R(b,8)}, v1")
def cvt(d, a, n):
    for i in range(n): e(f"v_cvt_pk_bf16_f32 v{d+i}, v{a+2*i}, v{a+2*i+1}")
SW, SWL, SH = 6, 7, 3
S_WQ, S_WK, S_WV, S_WO = 8, 12, 16, 20
S_XN, S_QF, S_KF, S_VF, S_FLG = 24, 28, 32, 36, 48
S_P1, S_MH, S_KVM = 52, 56, 60
TMO = 64; STEP = 65

def roles():
    e("s_getreg_b32 s70, hwreg(HW_REG_XCC_ID, 0, 4)"); e("s_and_b32 s70, s70, 7")
    e(f"s_cmp_lg_u32 s{SW}, 0"); e("s_cbranch_scc1 role_wait")
    e("s_lshl_b32 s71, s70, 2"); e("v_mov_b32 v2, s71"); e("v_mov_b32 v3, 1"); e("s_mov_b64 exec, 1")
    e("buffer_atomic_add v3, v2, s[72:75], 0 offen sc0"); e("s_waitcnt vmcnt(0)"); e("s_mov_b64 exec, -1")
    e("v_readfirstlane_b32 s71, v3"); e("s_lshl_b32 s77, s70, 5"); e("s_add_u32 s77, s77, s71"); e("s_cmp_ge_u32 s71, 32"); e("s_cselect_b32 s77, -1, s77")
    lab("role_pub")
    e("v_mov_b32 v2, 0"); e("v_mov_b32 v3, s77"); e("ds_write_b32 v2, v3"); e("s_waitcnt lgkmcnt(0)")
    lab("role_wait")
    e("s_barrier"); e("v_mov_b32 v2, 0"); e("ds_read_b32 v3, v2"); e("s_waitcnt lgkmcnt(0)")
    e(f"v_readfirstlane_b32 s{SH}, v3"); e("s_barrier")
    e(f"s_cmp_eq_u32 s{SH}, -1"); e("s_cbranch_scc0 role_ok"); e("s_endpgm"); lab("role_ok")

def worker():
    e("v_lshlrev_b32 v3, 7, v0"); e(f"s_mov_b32 s79, s{SH}")
    e(f"s_mul_i32 s67, s{SH}, 24576"); e("v_add_u32 v3, s67, v3")
    for i, srd in enumerate((S_WO,) if 'i' not in os.environ.get('X', '') else ()): e(f"buffer_load_dword v{200+i}, v3, {sr(srd,4)}, 0 offen")
    e(f"s_lshl_b32 s66, s{SW}, 1")
    X = Op('k', 128, 1152, S_XN, 67, 0, 8)
    Yq = Op('t', 128, 8192, S_WQ, 68, "s66", 2); Yk = Op('t', 128, 8192, S_WK, 69, "s66", 2, share=Yq); Yv = Op('t', 128, 8192, S_WV, 70, "s66", 2, share=Yq)
    ops = [X, Yq, Yk, Yv]
    vb, stage = gemm_setup(ops, 8, SW, 2); assert vb <= 30 and stage == 65536
    e("v_and_b32 v30, 63, v0"); e("v_lshlrev_b32 v30, 4, v30")
    lab("wk_task")
    HB = int(os.environ.get("HB", 3))
    e(f"s_and_b32 s71, s79, {(1<<HB)-1}"); e(f"s_bfe_u32 s72, s79, {(5-HB)<<16|5:#x}"); e(f"s_lshl_b32 s72, s72, {HB}"); e("s_add_u32 s71, s71, s72")
    e(f"s_bfe_u32 s72, s79, {(5-HB)<<16|HB:#x}"); e(f"s_lshr_b32 s67, s79, {10-HB}"); e(f"s_lshl_b32 s67, s67, {5-HB}"); e("s_add_u32 s72, s72, s67")
    e(f"s_mul_i32 s67, s72, {128*1152}"); e("s_lshl_b32 s68, s71, 8"); e("s_mov_b32 s69, s68"); e("s_mov_b32 s70, s68")
    zero(256, 192)
    acc = lambda m, t, T: 256 + 4 * ((m * 2 + t) * 8 + T)
    mf = []
    for T in range(8):
        for m, Y in enumerate((Yq, Yk, Yv)):
            for t in range(2): mf.append((acc(m, t, T), Y, t, X, T) if m < 2 else (acc(m, t, T), X, T, Y, t))
    gemm_loop(ops, mf, 9, 2, stage, 32, 18, SWL, 73, 74)
    e(f"s_lshl_b32 s75, s72, 7"); e("s_add_u32 s75, s75, s71"); e("s_lshl_b32 s75, s75, 13"); e(f"s_lshl_b32 s76, s{SWL}, 1"); e("s_add_u32 s75, s75, s76")
    for sg in range(1, 4): e(f"s_add_u32 s{75+sg}, s75, {sg*32*8192}")
    e("s_nop 7")
    if PROF: e("s_memtime s[90:91]")
    n = 0
    for m, srd in ((1, S_KF), (2, S_VF), (0, S_QF)):
        for sg in range(4):
            for f in range(2):
                a0, a1 = (acc(m, 0, 2 * sg + f), acc(m, 1, 2 * sg + f)) if m < 2 else (acc(m, f, 2 * sg), acc(m, f, 2 * sg + 1))
                t = 32 + 8 * (n % 16); n += 1
                for i in range(4): e(f"v_accvgpr_read_b32 v{t+i}, a{a0-256+i}"); e(f"v_accvgpr_read_b32 v{t+4+i}, a{a1-256+i}")
                cvt(t, t, 4)
                e(f"buffer_store_dwordx4 {vr(t,4)}, v30, {sr(srd,4)}, s{75+sg} offen offset:{f*1024} sc1")
    e("s_waitcnt vmcnt(0)"); e("s_barrier")
    e("s_lshl_b32 s75, s72, 5"); e("s_add_u32 s75, s75, s71"); e("s_lshl_b32 s75, s75, 7"); e("s_bitset1_b32 s75, 16")
    e(f"s_cmp_lg_u32 s{SW}, 0"); e("s_cbranch_scc1 wk_nof")
    e("v_mov_b32 v2, 0"); e("v_mov_b32 v3, 1"); e("s_mov_b64 exec, 1")
    e(f"buffer_store_dword v3, v2, {sr(S_FLG,4)}, s75 offen sc1"); e("s_mov_b64 exec, -1")
    if PROF:
        e("s_memtime s[92:93]"); srd_arg(80, 'dbg'); e("s_waitcnt lgkmcnt(0)"); e(f"s_cmp_lg_u32 s75, 65536"); e("s_cbranch_scc1 wk_nof")
        e(f"s_sub_u32 s90, s90, s44"); e(f"s_sub_u32 s92, s92, s44"); e("s_lshr_b32 s90, s90, 8"); e("s_lshr_b32 s92, s92, 8"); e("s_mul_i32 s90, s90, 1000"); e("s_add_u32 s90, s90, s92")
        e(f"v_mov_b32 v3, s90"); e(f"buffer_store_dword v3, v2, s[80:83], 0 offen offset:60")
    lab("wk_nof")
    e("s_add_u32 s79, s79, 224"); e("s_cmp_lt_u32 s79, 512"); e("s_cbranch_scc1 wk_task")
    phase2()

def pollv(off, cmp, nl=None):
    a, o = uid("pv"), uid("pvo")
    if nl: e(f"s_cmp_lg_u32 s{SW}, 0"); e(f"s_cbranch_scc1 {o}")
    lab(a); e(f"buffer_load_dword v195, v194, {sr(S_FLG,4)}, s{off} offen sc1"); e("s_waitcnt vmcnt(0)")
    e(cmp); e(f"s_cbranch_vccz {o}"); poll_tmo(a, o); lab(o)
    if nl: e("s_barrier")
def flag_store(off, val):
    e("v_mov_b32 v194, 0"); e(f"v_mov_b32 v195, {val}"); e("s_mov_b64 exec, 1")
    e(f"buffer_store_dword v195, v194, {sr(S_FLG,4)}, s{off} offen sc1"); e("s_mov_b64 exec, -1")
S_HP, S_HN, S_W1, S_U, S_B1, S_X, S_H = 8, 12, 16, 24, 52, 56, 76
def ln_role():
    e(f"s_and_b32 s86, s{SH}, 7"); e("s_lshl_b32 s86, s86, 2"); e(f"s_add_u32 s86, s86, s{SW}"); e("s_lshl_b32 s87, s73, 5"); e("s_add_u32 s86, s86, s87")
    e("v_and_b32 v1, 63, v0"); e("v_lshlrev_b32 v2, 4, v1"); e("v_lshlrev_b32 v3, 3, v1"); e("s_lshl_b32 s87, s73, 8"); e("s_add_u32 s87, s87, 4096")
    e("s_mov_b32 s88, -1"); e("s_mov_b32 s89, 0xffff")
    e("s_mul_i32 s90, s86, 18432"); e("s_mul_i32 s91, s86, 1152"); e("v_mov_b32 v4, 0"); e("v_mov_b32 v5, 0"); e("s_mov_b64 exec, s[88:89]")
    for r in range(3): e(f"buffer_load_dwordx2 {vr(8+2*r,2)}, v3, {sr(S_X,4)}, s91 offen offset:{384*r}")
    e("v_lshlrev_b32 v194, 2, v1"); pollv(87, "v_cmp_eq_u32 vcc, 0, v195", True)
    if PROF: e("s_memtime s[94:95]")
    for hg in range(8):
        for r in range(3): e(f"buffer_load_dwordx4 {vr(32+12*hg+4*r,4)}, v2, {sr(S_HP,4)}, s90 offen offset:{768*r} sc1")
        e("s_add_u32 s90, s90, 2304")
    for i in range(6): e(f"v_lshlrev_b32 v{16+2*i}, 16, v{8+i}"); e(f"v_and_b32 v{17+2*i}, 0xffff0000, v{8+i}")
    for hg in range(8):
        e(f"s_waitcnt vmcnt({21-3*hg})")
        for i in range(0, 12, 2): e(f"v_pk_add_f32 {vr(16+i,2)}, {vr(16+i,2)}, {vr(32+12*hg+i,2)}")
    for i in range(6): e(f"v_cvt_pk_bf16_f32 v{8+i}, v{16+2*i}, v{17+2*i}")
    for i in range(6): e(f"v_lshlrev_b32 v{16+2*i}, 16, v{8+i}"); e(f"v_and_b32 v{17+2*i}, 0xffff0000, v{8+i}")
    for i in range(12): e(f"v_add_f32 v4, v4, v{16+i}")
    def allred(v): e("s_mov_b64 exec, -1"); red16("v_add_f32", v, 6); xswap(16, "v_add_f32", v, 6); xswap(32, "v_add_f32", v, 6); e(f"v_mul_f32 v{v}, {f2u(1/576)}, v{v}"); e("s_mov_b64 exec, s[88:89]")
    if PROF: e("s_memtime s[96:97]")
    allred(4)
    for i in range(12): e(f"v_sub_f32 v{16+i}, v{16+i}, v4"); e(f"v_fmac_f32 v5, v{16+i}, v{16+i}")
    allred(5)
    e(f"v_add_f32 v4, {f2u(1e-5)}, v5"); e("v_rsq_f32 v4, v4"); e("s_nop 0")
    e("v_mul_f32 v5, v5, v4"); e("v_mul_f32 v5, v5, v4"); e(f"v_add_f32 v5, {f2u(1e-5)}, v5"); e("v_rsq_f32 v5, v5"); e("s_nop 0"); e("v_mul_f32 v4, v4, v5")
    for i in range(12): e(f"v_mul_f32 v{16+i}, v{16+i}, v4")
    for i in range(6): e(f"v_cvt_pk_bf16_f32 v{16+i}, v{16+2*i}, v{17+2*i}")
    for r in range(3): e(f"buffer_store_dwordx2 {vr(16+2*r,2)}, v3, {sr(S_HN,4)}, s91 offen offset:{384*r} sc1")
    e(f"s_lshl_b32 s92, s{SH}, 2"); e("s_lshl_b32 s93, s80, 11"); e("s_add_u32 s92, s92, s93"); e(f"s_add_u32 s92, s92, {32768-768}")
    e("v_lshlrev_b32 v194, 7, v1"); e("v_mov_b32 v195, 1"); e("s_waitcnt vmcnt(0)"); e("s_barrier"); e(f"s_cmp_lg_u32 s{SW}, 0"); e("s_cbranch_scc1 ln_nf")
    e("s_mov_b64 exec, 0xffff"); e(f"buffer_store_dword v195, v194, {sr(S_FLG,4)}, s92 offen sc1"); lab("ln_nf")
    if PROF: e("s_memtime s[100:101]"); e("s_waitcnt lgkmcnt(0)")
    e("s_mov_b64 exec, s[88:89]")
    for r in range(3): e(f"buffer_store_dwordx2 {vr(8+2*r,2)}, v3, {sr(S_H,4)}, s91 offen offset:{384*r}")
    e("s_mov_b64 exec, -1")
    e(f"s_and_b32 s90, s{SH}, 7"); e("s_lshl_b32 s91, s73, 3"); e("s_add_u32 s90, s90, s91"); e("s_mul_i32 s91, s90, 2304"); e("s_mul_i32 s90, s90, 36864"); e("v_lshlrev_b32 v2, 4, v0")
    for i in range(9): e(f"buffer_load_dwordx4 {vr(32+4*i,4)}, v2, {sr(S_WO,4)}, s90 offen"); e("s_add_u32 s90, s90, 4096")
    e("v_lshrrev_b32 v3, 4, v0"); e("v_mul_u32_u24 v3, 1179648, v3"); e("v_and_b32 v2, 0xf0, v2"); e("v_add_u32 v2, v2, v3"); srd_ws(40, 'w2t', 4)
    for i in range(9): e("s_waitcnt vmcnt(8)"); e(f"buffer_store_dwordx4 {vr(32+4*i,4)}, v2, s[40:43], s91 offen offset:{256*i}")
    e("s_add_u32 s73, s73, 4")
def phase2():
    if PROF: e("s_memtime s[96:97]"); e("s_mov_b32 s98, s44")
    for s, n in ((S_W1, 'w1'), (S_B1, 'b1'), (S_X, 'x')): srd_arg(s, n)
    for s, n in ((S_HP, 'hp'), (S_HN, 'hn'), (S_U, 'u'), (S_H, 'h')): srd_ws(s, n, 4)
    e(f"s_mov_b32 s{TMO}, 400000"); e("s_waitcnt lgkmcnt(0)")
    sdivmod(66, 67, SH, 6, 256)
    e(f"s_and_b32 s68, s{SW}, 1"); e("s_mul_i32 s68, s68, 3"); e(f"s_lshr_b32 s69, s{SW}, 1"); e("s_lshl_b32 s69, s69, 2")
    e("s_and_b32 s72, s66, 7"); e("s_lshr_b32 s73, s66, 3")
    RED = 57344
    e(f"s_cmp_lt_u32 s{SH}, 192"); e("s_cbranch_scc1 p2_wo"); e(f"s_bfe_u32 s73, s{SH}, 0x20003"); lab("p2_wo")
    W = Op('t', 96, 1152, S_WO, 70, 0, 6, perm=True); gemm_setup([W], 8, SW, 2)
    e(f"s_mul_i32 s70, s72, {512*1152}"); e("s_mul_i32 s71, s67, 192"); e("s_add_u32 s70, s70, s71")
    for k in range(8): gemm_dma([W], k * 12288, SWL, 74)
    e(f"s_mul_i32 s71, s{SW}, 24576")
    for j in range(W.nrv): e(f"v_add_u32 v{W.rv+j}, s71, v{W.rv+j}")
    e("s_waitcnt vmcnt(0)"); e("s_barrier")
    for m in range(4):
        for nt in range(6):
            for ins in frag_reads(W, nt, m & 1, 64 + 4 * (m * 6 + nt), (m >> 1) * 12288): e(ins.replace(" v[", " a[", 1))
    e("v_and_b32 v2, 15, v0"); e("v_bfe_u32 v3, v0, 4, 2"); e("v_mul_u32_u24 v2, 400, v2"); e("v_lshl_add_u32 v2, v3, 4, v2")
    e(f"s_mul_i32 s71, s{SW}, 12800"); e(f"s_add_u32 s71, s71, {RED}"); e("v_add_u32 v196, s71, v2")
    e("s_mul_i32 s70, s72, 2304"); e("s_mul_i32 s71, s67, 384"); e("s_add_u32 s70, s70, s71")
    for r in range(3):
        e(f"v_add_u32 v2, {256*r}, v0"); vdivmod(3, 4, 2, 24, 768); e("v_lshlrev_b32 v4, 4, v4")
        e(f"v_mul_u32_u24 v5, 400, v3"); e(f"v_add_u32 v5, {RED}, v5"); e(f"v_add_u32 v{197+r}, v5, v4")
        e(f"v_mul_u32_u24 v5, 18432, v3"); e(f"v_add3_u32 v{200+r}, v5, v4, s70")
    e("s_waitcnt lgkmcnt(0)"); e("s_barrier")
    srd_arg(S_WO, 'w2'); e("s_waitcnt lgkmcnt(0)")
    Xo = Op('t', 96, 1152, S_HN, 70, "s68", 3); Y = Op('t', 128, 9216, S_W1, 71, "s69", 4)
    vb, stage = gemm_setup([Xo, Y], 204, SW, 2); assert vb <= 256 and 2 * stage == RED
    e("s_mul_i32 s70, s67, 192"); e("s_lshl_b32 s71, s66, 8"); zero(256, 48)
    mf = [(256 + 4 * (i * 4 + j), Y, j, Xo, i) for i in range(3) for j in range(4)]
    e("s_mov_b32 s80, 0"); e(f"s_and_b32 s81, s{SH}, 15"); e("s_lshl_b32 s81, s81, 7"); e("s_add_u32 s81, s81, 32768")
    e("s_lshl_b32 s82, s72, 2"); e(f"s_add_u32 s82, s82, s{SW}")
    e("s_mul_i32 s83, s72, 6"); e("s_add_u32 s83, s83, s67"); e("s_lshl_b32 s83, s83, 2"); e("s_add_u32 s83, s83, 4096")
    lab("p2_loop")
    e("s_cmp_eq_u32 s80, 0"); e("s_cbranch_scc1 p2_noy"); e(f"s_cmp_ge_u32 s{SH}, 216"); e("s_cbranch_scc1 p2_noy")
    for st in range(2): gemm_dma([Y], st * stage, SWL, 74)
    lab("p2_noy")
    e("s_cmp_eq_u32 s80, 16"); e("s_cbranch_scc1 p2_noat"); e(f"s_cmp_lt_u32 s{SH}, 192"); e("s_cbranch_scc1 p2_at"); ln_role(); e("s_branch p2_noat"); lab("p2_at")
    e("s_lshl_b32 s84, s80, 5"); e("s_add_u32 s84, s84, s82"); e("s_lshl_b32 s84, s84, 7"); e("s_bitset1_b32 s84, 16"); e("v_mov_b32 v194, 0")
    pollv(84, "v_cmp_eq_u32 vcc, 0, v195")
    e("s_lshl_b32 s84, s73, 5"); e("s_add_u32 s84, s84, s82"); e("s_lshl_b32 s85, s82, 7"); e("s_add_u32 s85, s85, 28672")
    attn_body(S_QF, S_KF, S_VF, S_KVM, 84, lambda: pollv(85, "v_cmp_ge_u32 vcc, s73, v195"))
    e("s_nop 0")
    for m in range(4):
        for tt in range(2):
            for nt in range(6):
                a = 104 + 4 * (6 * tt + nt)
                e(f"v_mfma_f32_16x16x32_bf16 {vr(a,4)}, {ar(64+4*(m*6+nt),4)}, {vr(72+16*tt+4*m,4)}, {vr(a,4) if m else 0}")
    e(f"s_mul_i32 s84, s73, {32*18432}"); e("s_lshl_b32 s85, s73, 8"); e("s_add_u32 s85, s85, s83"); e("s_nop 2")
    for tt in range(2):
        for nt in range(6): e(f"ds_write_b128 v196, {vr(104+4*(6*tt+nt),4)} offset:{tt*6400+nt*64}")
    e("s_waitcnt lgkmcnt(0)"); e("s_barrier")
    for r in range(3):
        for w in range(4): e(f"ds_read_b128 {vr(8+16*r+4*w,4)}, v{197+r} offset:{w*12800}")
    for r in range(3):
        b = 8 + 16 * r; e(f"s_waitcnt lgkmcnt({8-4*r})")
        for x, y in ((0, 4), (8, 12), (0, 8)):
            for i in (0, 2): e(f"v_pk_add_f32 {vr(b+x+i,2)}, {vr(b+x+i,2)}, {vr(b+y+i,2)}")
        e(f"buffer_store_dwordx4 {vr(b,4)}, v{200+r}, {sr(S_HP,4)}, s84 offen sc1")
    e("s_waitcnt vmcnt(0)"); e("s_barrier"); e("s_add_u32 s73, s73, 4")
    if PROF: e("s_memtime s[94:95]"); e("s_waitcnt lgkmcnt(0)")
    e(f"s_cmp_lg_u32 s{SW}, 0"); e("s_cbranch_scc1 p2_noat"); flag_store(85, 1)
    lab("p2_noat")
    e("s_cmp_eq_u32 s80, 0"); e("s_cbranch_scc1 p2_next"); e(f"s_cmp_ge_u32 s{SH}, 216"); e("s_cbranch_scc1 p2_next")
    e("v_and_b32 v194, 31, v0"); e("v_lshlrev_b32 v194, 2, v194"); pollv(81, "v_cmp_eq_u32 vcc, 0, v195", True); e("s_add_u32 s81, s81, 2048")
    if PROF: e("s_memtime s[96:97]"); e("s_waitcnt lgkmcnt(0)")
    for st in range(2): gemm_dma([Xo], st * stage, SWL, 74, "sc1")
    e("s_waitcnt vmcnt(0)"); e("s_barrier")
    for st in range(2): gemm_compute(mf, st * stage, 8, 14)
    e("s_barrier")
    lab("p2_next")
    e("s_add_u32 s80, s80, 1"); e("s_cmp_le_u32 s80, 16"); e("s_cbranch_scc1 p2_loop")
    e(f"s_cmp_lt_u32 s{SH}, 216"); e("s_cbranch_scc1 p2_epi")
    if PROF:
        srd_arg(8, 'dbg'); e("s_waitcnt lgkmcnt(0)"); e(f"s_cmp_lg_u32 s{SH}, 223"); e("s_cbranch_scc1 wpe2"); e("v_mov_b32 v2, 0")
        for i, r in enumerate((94, 96, 100)): e(f"s_sub_u32 s{r}, s{r}, s98"); e(f"v_mov_b32 v3, s{r}"); e(f"buffer_store_dword v3, v2, s[8:11], 0 offen offset:{48+4*i}")
        lab("wpe2")
    e("s_endpgm"); lab("p2_epi"); e("s_nop 7")
    for i in range(48): e(f"v_accvgpr_read_b32 v{32+i}, a{i}")
    e("v_and_b32 v2, 15, v0"); e("v_bfe_u32 v3, v0, 4, 2")
    if PROF: e("s_memtime s[90:91]")
    mlp1_epi(32, 80, 66, 67, 68, 69, S_B1, S_U)
    if PROF:
        e("s_waitcnt vmcnt(0)"); e("s_memtime s[92:93]"); srd_arg(8, 'dbg'); e("s_waitcnt lgkmcnt(0)"); e(f"s_cmp_lg_u32 s{SH}, 191"); e("s_cbranch_scc1 wpe"); e("v_mov_b32 v2, 0")
        for i, r in enumerate((96, 94, 90, 92)): e(f"s_sub_u32 s{r}, s{r}, s98"); e(f"v_mov_b32 v3, s{r}"); e(f"buffer_store_dword v3, v2, s[8:11], 0 offen offset:{32+4*i}")
        lab("wpe")
    e("s_endpgm")

def poll_tmo(again, out):
    e(f"s_cmp_eq_u32 s{TMO}, 0"); e(f"s_cbranch_scc1 {out}"); e(f"s_sub_u32 s{TMO}, s{TMO}, 1"); e(f"s_branch {again}")

_ts = [0]
def ts():
    if 't' in X: e("s_memtime s[88:89]"); e("s_waitcnt lgkmcnt(0)"); e(f"s_sub_u32 s88, s88, s44"); e(f"s_mul_i32 s{90+_ts[0]}, s88, 63"); _ts[0] += 1
def chain_prologue():
    ts()
    e("v_and_b32 v12, 63, v0"); e("v_lshrrev_b32 v13, 4, v12"); e("v_and_b32 v14, 15, v12")
    e(f"s_and_b32 s66, s{SW}, 1"); e(f"s_lshr_b32 s67, s{SW}, 1")
    e("s_lshl_b32 s68, s67, 5"); e("s_lshl_b32 s69, s66, 1"); e("s_add_u32 s68, s68, s69")
    e("v_lshrrev_b32 v15, 1, v13"); e("v_and_b32 v16, 1, v13"); e("v_lshl_add_u32 v15, v15, 3, v16"); e("v_add_u32 v15, s68, v15")
    e(f"s_lshl_b32 s69, s{SH}, 8")
    for p in range(2):
        e(f"v_add_u32 v16, {4*p}, v13"); e("v_lshlrev_b32 v16, 1, v16"); e("v_xor_b32 v16, v16, v14")
        e(f"v_add_u32 v17, {4*p}, v15"); e("v_lshlrev_b32 v17, 13, v17"); e(f"v_lshl_add_u32 v{20+p}, v16, 4, v17"); e(f"v_add_u32 v{20+p}, s69, v{20+p}")
    def rest():
        e("v_bfe_u32 v15, v12, 4, 1"); e("v_bfe_u32 v16, v12, 3, 1"); e("v_lshl_add_u32 v15, v15, 3, v16"); e("v_lshrrev_b32 v16, 5, v12")
        e("v_lshl_add_u32 v15, v16, 2, v15"); e("v_add_u32 v15, s68, v15"); e("v_lshlrev_b32 v15, 13, v15")
        e("v_and_b32 v16, 7, v12"); e("v_lshlrev_b32 v17, 1, v13"); e("v_xor_b32 v16, v16, v17")
        e("v_lshl_add_u32 v22, v16, 4, v15"); e("v_add_u32 v22, s69, v22")
        e("s_lshl_b32 s68, s67, 3"); e("s_lshl_b32 s70, s66, 1"); e("s_add_u32 s68, s68, s70")
        e(f"s_mul_i32 s70, s{SH}, 147456")
        for i in range(18):
            e(f"v_add_u32 v15, {64*i}, v12"); vdivmod(16, 17, 15, 72, 1152)
            e("v_bfe_u32 v18, v16, 1, 2"); e("v_lshlrev_b32 v18, 1, v18"); e("v_xor_b32 v17, v17, v18")
            e("v_bfe_u32 v18, v16, 2, 1"); e("v_lshlrev_b32 v15, 6, v18"); e("v_bfe_u32 v18, v16, 1, 1"); e("v_lshl_add_u32 v15, v18, 4, v15")
            e("v_bfe_u32 v18, v16, 3, 1"); e("v_lshl_add_u32 v15, v18, 2, v15"); e("v_and_b32 v18, 1, v16"); e("v_add3_u32 v15, v15, v18, s68")
            e("v_mul_u32_u24 v15, 1152, v15"); e(f"v_lshl_add_u32 v{24+i}, v17, 4, v15"); e(f"v_add_u32 v{24+i}, s70, v{24+i}")
        e("v_lshrrev_b32 v15, 2, v12"); e("v_and_b32 v16, 3, v12"); e("v_lshlrev_b32 v16, 3, v16")
        e("v_and_b32 v17, 7, v15"); e(f"s_lshl_b32 s68, s{SW}, 1")
        for t in range(2):
            e(f"s_add_u32 s71, s68, {t}"); e("v_xor_b32 v18, s71, v17"); e("v_lshl_add_u32 v18, v18, 5, v16")
            e(f"v_lshl_add_u32 v{42+t}, v15, 8, v18"); e(f"v_add_u32 v{42+t}, {WB}, v{42+t}")
        e("v_bfe_u32 v17, v15, 1, 2"); e(f"v_xor_b32 v17, s{SW}, v17"); e("v_lshl_add_u32 v17, v17, 5, v16")
        e("v_lshl_add_u32 v4, v15, 7, v17"); e(f"v_add_u32 v4, {WV_IMG}, v4")
        e("v_mul_u32_u24 v5, 1152, v15"); e("v_add_u32 v5, v5, v17"); e(f"v_add_u32 v5, {WO_IMG}, v5")
    def dma(v, srd, so, lds):
        e(f"s_mov_b32 s71, {so}"); e(f"s_add_u32 m0, s72, {lds}"); e("s_nop 0"); e(f"buffer_load_dwordx4 v{v}, {sr(srd,4)}, s71 offen lds")
    def qk_dma(srd, js):
        e(f"s_lshl_b32 s72, s{SW}, 12")
        for j in js:
            for g in range(4): dma(20 + (g & 1), srd, (64 * j + 16 * (g >> 1)) * 8192, WB + j * 16384 + g * 1024)
    def v_dma(half, js=range(9)):
        e(f"s_lshl_b32 s72, s{SW}, 11")
        for j in js:
            for gp in range(2): dma(22, S_WV, (64 * j + 16 * gp) * 8192 + 128 * half, WV_IMG + j * 8192 + gp * 1024)
    def o_dma(half):
        e(f"s_mul_i32 s72, s{SW}, 18432")
        for i in range(18): dma(24 + i, S_WO, 32 * half * 1152, WO_IMG + i * 1024)
    def arrive(n): e(f"s_waitcnt vmcnt({n})"); e("s_barrier")
    def done(): e("s_waitcnt lgkmcnt(0)"); e("s_barrier")
    def qk_rd(W, g):
        for t in range(2):
            e(f"v_add_u32 v11, {g*49152}, v{42+t}")
            for j in range(3):
                for m in range(4): e(f"ds_read_b64_tr_b16 {R(W(3*g+j,t)+2*m,2)}, v11 offset:{j*16384+m*4096}")
        done()
    def v_rd(dst):
        for j in range(9):
            for m in range(4): e(f"ds_read_b64_tr_b16 {R(dst(j)+2*m,2)}, v{4 if j<8 else 3} offset:{(j%8)*8192+m*2048}")
        done(); ts()
    def o_rd(dst):
        for j in range(9):
            for m in range(4): e(f"ds_read_b64_tr_b16 {R(dst(j)+2*m,2)}, v5 offset:{m*18432+j*128}")
        done(); ts()
    qk_dma(S_WQ, range(9)); rest(); e("v_add_u32 v3, 65536, v4")
    for g in range(3): arrive(24); qk_rd(WQ, g); qk_dma(S_WK, range(3 * g, 3 * g + 3))
    ts(); arrive(24); qk_rd(WK, 0); v_dma(0, range(6)); arrive(24); qk_rd(WK, 1); v_dma(0, range(6, 9)); arrive(18); qk_rd(WK, 2); o_dma(0); ts()
    arrive(18); v_rd(WVA); v_dma(1); arrive(18); o_rd(WO0); o_dma(1)
    e(f"s_mul_i32 s68, s{SW}, 18432"); e(f"s_add_u32 s68, s68, {WV_IMG}"); e("v_lshlrev_b32 v0, 4, v12"); e("v_add_u32 v6, s68, v0")
    e("v_add_u32 v7, 73728, v6")
    for img in range(2):
        arrive(18 - 18 * img); (v_rd, o_rd)[img](lambda j: 8 + 8 * j)
        for j in range(18): e(f"ds_write_b128 v{6+img}, {vr(8+4*j,4)} offset:{1024*j}")
        e("s_waitcnt lgkmcnt(0)")
    e("v_mov_b32 v4, v6"); e("v_lshrrev_b32 v12, 4, v0"); e("v_lshrrev_b32 v13, 4, v12"); e("v_and_b32 v14, 15, v12")
    e("v_mov_b32 v1, 0x44444444"); e("v_mov_b32 v15, 0xeeeeeeee"); e("v_cmp_le_u32 vcc, 8, v14"); e("s_nop 1"); e("v_cndmask_b32 v1, v1, v15, vcc")
    e("v_and_b32 v20, 1, v13"); e("v_lshlrev_b32 v15, 2, v20"); e("v_and_b32 v16, 7, v14"); e("v_sub_u32 v15, v16, v15")
    for r in range(2):
        e(f"v_mov_b32 v{2+r}, 0")
        for hh, val in ((0, 0x3f80), (1, 0x3f800000)):
            e(f"v_mov_b32 v17, {val:#x}"); e(f"v_cmp_eq_u32 vcc, {2*r+hh}, v15"); e("s_nop 1"); e(f"v_cndmask_b32 v{2+r}, v{2+r}, v17, vcc")
    e("v_lshlrev_b32 v17, 4, v16"); e("v_lshl_add_u32 v17, v13, 7, v17")
    e(f"s_lshl_b32 s68, s{SW}, 9"); e("v_add_u32 v7, s68, v17")
    e("v_lshrrev_b32 v18, 3, v14"); e("v_lshl_add_u32 v8, v18, 9, v17")
    e("v_lshl_add_u32 v5, v18, 11, v17"); e("v_lshl_add_u32 v6, v18, 3, v17")
    e("v_lshrrev_b32 v19, 1, v13"); e("v_lshl_add_u32 v19, v19, 3, v20"); e(f"s_lshl_b32 s68, s{SW}, 1"); e("v_add_u32 v19, s68, v19")
    e("v_lshlrev_b32 v9, 12, v19"); e("v_lshl_add_u32 v9, v16, 4, v9"); e("v_lshl_add_u32 v9, v18, 3, v9"); e(f"s_lshl_b32 s68, s{SH}, 7"); e("v_add_u32 v9, s68, v9")
    e(f"s_lshl_b32 s73, s{SW}, 5"); e(f"s_add_u32 s73, s73, s{SH}")
    e("v_lshrrev_b32 v19, 1, v13"); e("v_lshlrev_b32 v10, 2, v19"); e("v_lshl_add_u32 v10, v16, 4, v10"); e("v_lshl_add_u32 v10, v20, 3, v10")
    e("s_lshl_b32 s68, s73, 7"); e("v_add_u32 v10, s68, v10"); e("s_lshl_b32 s74, s73, 12"); swap67(39, 0)

def wait_flag(stb):
    a, o = uid("fl"), uid("flo")
    e(f"s_lshl_b32 s71, s{stb}, 5"); e(f"s_add_u32 s71, s71, s{SH}"); e("s_lshl_b32 s71, s71, 7"); e("s_bitset1_b32 s71, 16"); e("v_mov_b32 v28, 0")
    lab(a); e(f"buffer_load_dword v29, v28, {sr(S_FLG,4)}, s71 offen sc1"); e("s_waitcnt vmcnt(0)")
    e("v_cmp_ne_u32 vcc, 0, v29"); e(f"s_cbranch_vccnz {o}"); poll_tmo(a, o); lab(o)

def chain():
    chain_prologue()
    e(f"s_mov_b32 s{TMO}, 400000"); e(f"s_mov_b32 s{STEP}, 0")
    e("s_mov_b32 s75, 0"); e("s_mov_b32 s76, 9216"); e("s_mov_b32 s77, 18432")
    e("s_mov_b32 s78, 0")
    e(f"s_lshl_b32 s79, s{SH}, 13")
    e(f"s_mov_b32 s80, {f2u(128**-0.5*LOG2E)}"); e("s_mov_b32 s82, 0x00ff00ff"); e("s_mov_b32 s83, 0x00ff00ff")
    e(f"s_lshl_b32 s81, s{SH}, 7"); e("s_add_u32 s81, s81, 28672")
    e("s_mov_b32 s86, 0"); e(f"s_cmp_lg_u32 s{SW}, 3"); e("s_cbranch_scc1 nofl0"); wait_flag(86); lab("nofl0"); e("s_barrier")
    KX, VX, AL, ACC, WL = 12, 20, 28, 40, 64
    z2 = lambda r: e(f"v_mov_b64 {vr(r,2)}, 0")
    e(f"s_mul_i32 s84, s{SW}, 3072")
    if PROF:
        e("s_memtime s[40:41]")
        for i in range(12 * ('t' not in X)): e(f"s_mov_b32 s{90+i}, 0")
    lab("step"); stamp()
    e(f"s_add_u32 s87, s75, s84"); e("v_add_u32 v11, s84, v0")
    def mp_ld(b):
        for i in range(3): e(f"buffer_load_dwordx4 {vr(b[i],4)}, v39, {sr(S_MH,4)}, s87 offen offset:{1024*i} sc1")
    def mp_ck(b):
        e("s_waitcnt vmcnt(3)")
        p, q, r = b
        e(f"ds_write_b128 v11, {vr(p,4)}"); e(f"v_max3_u32 v36, v{p}, v{p+1}, v{p+2}"); e(f"v_max3_u32 v37, v{p+3}, v{q}, v{q+1}")
        e(f"ds_write_b128 v11, {vr(q,4)} offset:1024"); e(f"v_max3_u32 v38, v{q+2}, v{q+3}, v{r}"); e(f"v_max3_u32 v36, v36, v{r+1}, v{r+2}")
        e(f"ds_write_b128 v11, {vr(r,4)} offset:2048"); e(f"v_max3_u32 v37, v37, v38, v{r+3}")
        e("v_max_u32 v36, v36, v37"); e("v_cmp_eq_u32 vcc, -1, v36"); e("s_cbranch_vccz mpo")
    e(f"s_cmp_lg_u32 s{SW}, 3"); e("s_cbranch_scc1 mp0")
    for r in range(ACC, ACC + 24, 2): z2(r)
    e("s_branch mp3"); lab("mp0")
    mp_ld((12,16,20))
    for r in range(ACC, ACC + 24, 2): z2(r)
    lab("mp"); mp_ld((24,72,76)); mp_ck((12,16,20)); e("s_waitcnt lgkmcnt(0)"); mp_ld((12,16,20)); mp_ck((24,72,76)); e("s_waitcnt lgkmcnt(0)"); poll_tmo("mp", "mpo"); lab("mpo")
    lab("mp3"); stamp()
    e(f"s_lshl_b32 s87, s{SWL}, 1"); e("s_add_u32 s87, s87, s79"); e(f"s_add_u32 s88, s79, s{SWL}"); e("s_add_u32 s89, s88, 4096")
    e("s_waitcnt lgkmcnt(0)"); e("s_barrier")
    d = DS(); stamp()
    def prog(val):
        e(f"v_mov_b32 v11, {val}"); e("s_mov_b64 exec, 1"); e(f"buffer_store_dword v11, v0, {sr(S_FLG,4)}, s81 offen sc1"); e("s_mov_b64 exec, -1")
    def rdA(j): d.op(f"ds_read_b128 {vr(AL+4*(j%3),4)}, v0 offset:{MI+j*1024}", ('a', j))
    def rdW(dst, adr, i, tag):
        for m in range(2): d.op(f"ds_read_b128 {vr(dst+4*m,4)}, v{adr} offset:{i*2048+m*1024}", tag)
    rdV = lambda j: rdW(WL + 8 * (j % 2), 4, j, ('wv', j))
    for j in range(3): rdA(j)
    rdV(0)
    for i in range(2): e(f"buffer_load_dwordx4 {vr(KX+4*i,4)}, v0, {sr(S_KF,4)}, s87 offen offset:{1024*i} sc1")
    for i in range(2): e(f"buffer_load_dwordx4 {vr(VX+4*i,4)}, v0, {sr(S_VF,4)}, s{88+i} offen sc1")
    def vA(j): smf(56, AL + 4 * (j % 3), WVA(j))
    def vB(j): d.need(('wv', j)); smf(60, AL + 4 * (j % 3), WL + 8 * (j % 2))
    for j in range(9):
        d.need(('a', j))
        for t in range(2): smf(ACC + 4 * t, AL + 4 * (j % 3), WQ(j, t))
        for t in range(2): smf(ACC + 8 + 4 * t, AL + 4 * (j % 3), WK(j, t))
        if j == 0: e("s_waitcnt vmcnt(4)"); rdV(1); e(f"s_cmp_lg_u32 s{SW}, 3"); e("s_cbranch_scc1 noprog"); prog(f"s{STEP}"); lab("noprog")
        if j < 7:
            vA(j); vB(j); rdV(j + 2)
            if j + 3 < 9: rdA(j + 3)
    stamp()
    tr = lambda dd, a: e(f"v_mfma_f32_16x16x16_bf16 {vr(dd,4)}, {vr(a,2)}, v[2:3], 0")
    vA(7); vB(7); e("v_add_u32 v11, 73728, v4"); e("s_nop 3")
    WLS = (72, 64, 20)
    rdO = lambda i: rdW(WLS[i % 3], 11, i, ('wo', i))
    cvt(28, 40, 4); rdO(0); tr(40, 28); tr(44, 30)
    cvt(28, 48, 4); e("s_nop 1"); tr(48, 28); tr(52, 30)
    vA(8)
    cvt(28, 40, 4); e("s_nop 2"); cvt(40, 48, 4); e("s_waitcnt vmcnt(2)")
    for n, a in ((1, KX), (2, KX + 4), (0, 40)): e(f"v_mfma_f32_16x16x32_bf16 {vr(44+4*n,4)}, {vr(a,4)}, v[28:31], 0")
    vB(8); e(f"buffer_store_dwordx4 v[40:43], v0, {sr(S_KVM,4)}, s87 offen sc1"); rdO(1); e("s_nop 2")
    for n in (1, 2, 0): d.op(f"ds_write_b128 v7, {vr(44+4*n,4)} offset:{SREG+2048*n}")
    stamp()
    e("v_mov_b32 v32, 0x3f803f80"); e("v_mov_b32 v33, 0x3f803f80"); e("v_mov_b64 v[34:35], v[32:33]"); e("v_mov_b32 v36, 0x3f003f00"); e("v_mov_b32 v37, 0x3f003f00")
    cvt(40, 56, 4)
    d.drain(); e("s_barrier"); stamp()
    SX = (44, 48, 52, 56); SM = (12, 14, 16, 18)
    for w in range(4):
        d.op(f"ds_read_b128 {vr(SX[w],4)}, v5 offset:{SREG+2048+512*w}"); d.op(f"ds_read_b64 {vr(SM[w],2)}, v6 offset:{SREG+512*w}", ('s', w))
    e(f"buffer_store_dwordx4 v[40:43], v0, {sr(S_KVM,4)}, s87 offen offset:1024 sc1")
    e(f"s_cmp_eq_u32 s{STEP}, 63"); e("s_cbranch_scc1 chain_end")
    z2(60); z2(62)
    pk = lambda op, dd, a, b: e(f"v_pk_{op}_f32 {vr(dd,2)}, {vr(a,2)}, {vr(b,2)}")
    d.need(('s', 1)); pk("add", 44, 44, 48); pk("add", 46, 46, 50); pk("add", 12, 12, 14)
    d.need(('s', 3)); pk("add", 52, 52, 56); pk("add", 54, 54, 58); pk("add", 16, 16, 18)
    pk("add", 44, 44, 52); pk("add", 46, 46, 54); pk("add", 48, 12, 16)
    e("v_max3_f32 v38, v44, v45, v46"); e("v_max3_f32 v39, v47, v48, v49"); e("v_max_f32 v38, v38, v39"); z2(52); z2(54)
    e("v_max_f32_dpp v38, v38, v38 row_ror:8 row_mask:0xf bank_mask:0xf"); e("v_mov_b32 v39, v38"); z2(56); z2(58)
    e("v_permlane32_swap_b32 v38, v39"); e("v_max_f32 v38, v38, v39"); e("v_mov_b32 v39, v38"); e("s_nop 1")
    e("v_permlane16_swap_b32 v38, v39"); e("v_max_f32 v38, v38, v39"); e("v_mul_f32 v38, s80, v38")
    for r in range(44, 50): e(f"v_fma_f32 v{r}, v{r}, s80, -v38")
    for r in range(44, 50): e(f"v_exp_f32 v{r}, v{r}")
    cvt(12, 44, 2); e("v_cvt_pk_bf16_f32 v16, v48, v49"); e("s_waitcnt vmcnt(2)")
    for dd, a in ((14, 12), (15, 13), (17, 16)): e(f"v_mov_b32_dpp v{dd}, v{a} row_ror:8 row_mask:0xf bank_mask:0xf")
    e("s_nop 0")
    for dd, a in ((28, 32), (44, VX), (48, VX + 4)): e(f"v_mfma_f32_16x16x32_bf16 {vr(dd,4)}, {vr(a,4)}, v[12:15], 0")
    for dd, a in ((28, 36), (44, 40), (48, 42)): e(f"v_mfma_f32_16x16x16_bf16 {vr(dd,4)}, {vr(a,2)}, v[16:17], {vr(dd,4)}")
    rdO(2); stamp()
    OA = [52, 56, 60, 12, 16, 36, 40, 44, 48]
    for r in (12, 14, 16, 18): z2(r)
    e("v_rcp_f32 v28, v28"); z2(36); e("v_mov_b32 v29, v28")
    for r in range(44, 52, 2): pk("mul", r, r, 28)
    cvt(32, 44, 4)
    e("s_mov_b64 exec, s[82:83]"); d.op("ds_write_b128 v7, v[32:35]"); e("s_mov_b64 exec, -1")
    for r in range(38, 52, 2): z2(r)
    d.drain(); e("s_barrier")
    for k in range(2): d.op(f"ds_read_b128 {vr(AL+4*k,4)}, v8 offset:{1024*k}", ('o', k))
    def fold(i):
        a, b = OA[i], OA[i + 1] if i < 8 else 28
        ins = []
        if i == 8: ins += [f"v_mov_b64 {vr(b,2)}, {vr(a,2)}", f"v_mov_b64 {vr(b+2,2)}, {vr(a+2,2)}", "s_nop 0"]
        ins += [f"v_permlane32_swap_b32 v{a+q}, v{b+q}" for q in range(4)]
        ins += [f"v_pk_add_f32 {vr(a+q,2)}, {vr(a+q,2)}, {vr(b+q,2)}" for q in (0, 2)]
        ins += [f"v_cvt_pk_bf16_f32 v{a}, v{a}, v{a+1}", f"v_cvt_pk_bf16_f32 v{a+1}, v{a+2}, v{a+3}"]
        if i == 8: ins += ["s_mov_b32 exec_hi, 0"]
        ins += [f"buffer_store_dwordx2 {vr(a,2)}, v9, {sr(S_P1,4)}, s{66+i//2} offen"]
        if i == 8: ins += ["s_mov_b64 exec, -1"]
        return ins
    for i in range(5): e(f"s_add_u32 s{66+i}, s78, {i*65536}")
    d.need(('o', 0)); stamp()
    for i in range(3): smf(OA[i], AL, WO0(i))
    d.need(('o', 1))
    pend = []
    def fill(n):
        for _ in range(n):
            if pend: e(pend.pop(0))
    for i in range(9):
        d.need(('wo', i)); smf(OA[i], AL + 4, WLS[i % 3])
        if i + 3 < 9: rdO(i + 3); smf(OA[i + 3], AL, WO0(i + 3))
        if i in (3, 5, 7): pend += fold(i - 3)
        fill(3)
    fill(99); pend += fold(6) + fold(8); fill(99)
    stamp()
    e("s_cmp_lt_u32 s73, 72"); e("s_cbranch_scc1 red_go"); swap67(39, 0); e(f"s_cmp_lg_u32 s{SW}, 3"); e("s_cbranch_scc1 red_done")
    e(f"s_add_u32 s86, s{STEP}, 1"); e("s_and_b32 s87, s86, 3"); e("s_cbranch_scc1 nofl"); e("s_lshr_b32 s86, s86, 2"); wait_flag(86); lab("nofl")
    e("s_waitcnt vmcnt(0)"); e("s_branch red_done"); lab("red_go")
    e("s_add_u32 s87, s78, s74")
    def rp_ld(b):
        for i in range(4): e(f"buffer_load_dwordx4 {vr(b+4*i,4)}, v0, {sr(S_P1,4)}, s87 offen offset:{1024*i} sc1")
    def rp_ck(b):
        for i in range(4):
            e(f"s_waitcnt vmcnt({7-i})"); e(f"v_mfma_f32_16x16x32_bf16 v[72:75], {vr(b+4*i,4)}, v[64:67], {'v[72:75]' if i else 0}")
        e("s_nop 7"); e("v_permlane32_swap_b32 v72, v74"); e("v_permlane32_swap_b32 v73, v75"); e("v_add_f32 v72, v72, v74"); e("v_add_f32 v73, v73, v75")
        e("v_cmp_u_f32 vcc, v72, v73"); e("v_cvt_pk_bf16_f32 v76, v72, v73"); e("s_cbranch_vccz rpo")
    for r in range(68, 72): e(f"v_mov_b32 v{r}, -1")
    e("s_mov_b64 exec, s[82:83]"); e(f"buffer_store_dword v68, v10, {sr(S_MH,4)}, s77 offen"); e("s_mov_b64 exec, -1")
    e("v_and_b32 v76, 0x30, v0"); e("v_mov_b32 v64, 0x3f80"); e("v_mov_b32 v65, 0"); e("v_lshlrev_b64 v[64:65], v76, v[64:65]"); e("v_bfe_i32 v76, v0, 6, 1")
    e("v_and_b32 v66, v64, v76"); e("v_and_b32 v67, v65, v76"); e("v_xor_b32 v64, v64, v66"); e("v_xor_b32 v65, v65, v67"); swap67(39, 0)
    if 'b' in X: e("s_waitcnt vmcnt(0)")
    if 'c' in X: stamp()
    rp_ld(12)
    lab("rp"); rp_ld(44); rp_ck(12); rp_ld(12); rp_ck(44); poll_tmo("rp", "rpo"); lab("rpo"); stamp()
    e("s_mov_b64 exec, s[82:83]"); e(f"buffer_store_dword v76, v10, {sr(S_MH,4)}, s76 offen"); e("s_mov_b64 exec, -1"); e("s_waitcnt vmcnt(1)")
    for i in range(4): e(f"buffer_store_dwordx4 v[68:71], v0, {sr(S_P1,4)}, s87 offen offset:{1024*i}")
    lab("red_done"); e("s_barrier"); lab("red_done2"); stamp()
    if PROF:
        e("s_waitcnt lgkmcnt(0)")
        for i in range((_st[0]-1) * ('t' not in X)): e(f"s_sub_u32 s87, s{10+2*i}, s{8+2*i}"); e(f"s_add_u32 s{90+i}, s{90+i}, s87")
    e(f"s_add_u32 s{STEP}, s{STEP}, 1"); e(f"s_xor_b32 s78, s78, {72*8192}"); e(f"s_add_u32 s79, s79, {32*8192}")
    e("s_mov_b32 s87, s75"); e("s_mov_b32 s75, s76"); e("s_mov_b32 s76, s77"); e("s_mov_b32 s77, s87")
    e("s_branch step")
    lab("chain_end"); e("s_waitcnt vmcnt(0)"); e("s_barrier"); prog(64)
    if PROF:
        e("s_memtime s[42:43]"); srd_arg(8, 'dbg'); e("s_waitcnt lgkmcnt(0)")
        e("s_sub_u32 s100, s40, s44"); e("s_sub_u32 s101, s42, s40")
        e(f"s_cmp_lg_u32 s{SH}, 0"); e("s_cbranch_scc1 prof_end"); e(f"s_mul_i32 s87, s{SW}, 48"); e("s_add_u32 s87, s87, 64"); e("v_mov_b32 v2, 0")
        for i in range(12): e(f"v_mov_b32 v3, s{90+i}"); e(f"buffer_store_dword v3, v2, s[8:11], s87 offen offset:{4*i}")
        lab("prof_end")
    e("s_endpgm")

def k_main():
    kstart("main_kernel"); guard(256)
    if PROF: e("s_memtime s[44:45]")
    e(f"s_load_dwordx2 s[4:5], s[0:1], {ARG['ws']}")
    for s, n in ((S_WQ, 'wq'), (S_WK, 'wk'), (S_WV, 'wv'), (S_WO, 'wo'), (72, 'dbg')): srd_arg(s, n)
    wave_id(SW, SWL); e("s_waitcnt lgkmcnt(0)")
    for s, n in ((S_XN, 'xn'), (S_QF, 'qf'), (S_KF, 'kf'), (S_VF, 'vf'), (S_FLG, 'flg'), (S_P1, 'p1'), (S_MH, 'mh'), (S_KVM, 'kvm')): srd_ws(s, n, 4)
    roles()
    e(f"s_cmp_ge_u32 s{SH}, 224"); e("s_cbranch_scc1 is_chain")
    worker()
    lab("is_chain"); e(f"s_and_b32 s{SH}, s{SH}, 31")
    chain()
    return kdesc("main_kernel", 512, 256)
```

```python
import os
L = []
def e(s): L.append("    " + s)
def lab(s): L.append(s + ":")
_uid = [0]
def uid(p):
    _uid[0] += 1
    return f"{p}_{_uid[0]}"
def vr(b, n=1): return f"v{b}" if n == 1 else f"v[{b}:{b+n-1}]"
def ar(b, n=1): return f"a{b}" if n == 1 else f"a[{b}:{b+n-1}]"
def R(b, n=1):
    return vr(b, n) if b < 256 else ar(b - 256, n)
def sr(b, n=1): return f"s{b}" if n == 1 else f"s[{b}:{b+n-1}]"

ARG = dict(x=0, mem0=8, wq=16, wk=24, wv=32, wo=40, w1=64, b1=72, w2=80, b2=88, out=96, dbg=104, ws=112)
SZ = dict(x=2359296, mem0=9216, wq=4718592, wk=4718592, wv=4718592, wo=4718592, w1=18874368, b1=9216,
          w2=18874368, b2=4096, out=2359296, dbg=256)
WS = {}
_o = 0
def wsreg(n, sz):
    global _o
    WS[n] = (_o, sz); _o += (sz + 4095) // 4096 * 4096
wsreg('xn', 2359296)
wsreg('p1', 2 * 72 * 8192)
wsreg('mh', 3 * 9216)
wsreg('flg', 262144)
wsreg('qf', 16777216); wsreg('kf', 16777216); wsreg('vf', 16777216)
wsreg('kvm', 68 * 32 * 8192)
wsreg('hp', 2048 * 18432)
wsreg('h', 2359296); wsreg('hn', 2359296)
wsreg('u', 576 * 4608 * 2); wsreg('w2t', 18874368); wsreg('pt', 18874368)

def srd_arg(d, name):
    e(f"s_load_dwordx2 {sr(d,2)}, s[0:1], {ARG[name]}")
    e(f"s_mov_b32 s{d+2}, {SZ[name]}"); e(f"s_mov_b32 s{d+3}, 0x00020000")
def srd_ws(d, name, wsb):
    o, sz = WS[name]
    e(f"s_add_u32 s{d}, s{wsb}, {o}"); e(f"s_addc_u32 s{d+1}, s{wsb+1}, 0")
    e(f"s_mov_b32 s{d+2}, {sz}"); e(f"s_mov_b32 s{d+3}, 0x00020000")

def kstart(name):
    L.append(f".globl {name}\n.p2align 8\n.type {name},@function\n{name}:")
def kdesc(name, nv, acc, ns=102):
    return (f".p2align 6\n.amdhsa_kernel {name}\n  .amdhsa_next_free_vgpr {nv}\n  .amdhsa_next_free_sgpr {ns}\n"
            f"  .amdhsa_accum_offset {acc}\n  .amdhsa_group_segment_fixed_size 0\n  .amdhsa_kernarg_size 120\n"
            f"  .amdhsa_user_sgpr_count 2\n  .amdhsa_user_sgpr_kernarg_segment_ptr 1\n"
            f"  .amdhsa_system_sgpr_workgroup_id_x 1\n.end_amdhsa_kernel")

def vdivmod(q, r, x, c, maxx):
    if c & (c - 1) == 0:
        e(f"v_lshrrev_b32 v{q}, {c.bit_length()-1}, v{x}"); e(f"v_and_b32 v{r}, {c-1}, v{x}"); return
    m = (1 << 16) // c + 1
    assert all((i * m) >> 16 == i // c for i in range(maxx)), (c, maxx)
    e(f"v_mul_u32_u24 v{q}, {m}, v{x}"); e(f"v_lshrrev_b32 v{q}, 16, v{q}")
    e(f"v_mul_u32_u24 v{r}, {c}, v{q}"); e(f"v_sub_u32 v{r}, v{x}, v{r}")
def sdivmod(q, r, x, c, maxx):
    if c & (c - 1) == 0:
        e(f"s_lshr_b32 s{q}, s{x}, {c.bit_length()-1}"); e(f"s_and_b32 s{r}, s{x}, {c-1}"); return
    m = (1 << 16) // c + 1
    assert all((i * m) >> 16 == i // c for i in range(maxx)), (c, maxx)
    e(f"s_mul_i32 s{q}, s{x}, {m}"); e(f"s_lshr_b32 s{q}, s{q}, 16")
    e(f"s_mul_i32 s{r}, s{q}, {c}"); e(f"s_sub_u32 s{r}, s{x}, s{r}")

def swz(RB):
    m = RB % 256
    if m == 0: return 7, lambda k: (k & 3) | ((k >> 3) & 1) << 2
    if m == 128: return 3, lambda k: ((k >> 1) & 1) | ((k >> 3) & 1) << 1
    assert m in (64, 192)
    return 1, lambda k: (k >> 3) & 1
def emit_f(dst, k, RB, tmp, perm=False):
    m = RB % 256
    e(f"v_bfe_u32 v{dst}, v{k}, {2 if perm else 3}, 1")
    if m == 0:
        e(f"v_and_b32 v{tmp}, 3, v{k}"); e(f"v_lshl_or_b32 v{dst}, v{dst}, 2, v{tmp}")
    elif m == 128:
        e(f"v_bfe_u32 v{tmp}, v{k}, 1, 1"); e(f"v_lshl_or_b32 v{dst}, v{dst}, 1, v{tmp}")

class Op:
    def __init__(s, kind, n, stride, srd, soff, t0, nt, share=None, perm=False, adv=None):
        s.perm = perm; s.adv = adv or (128 if kind == 'k' else 64 * stride)
        s.kind, s.n, s.stride, s.srd, s.soff, s.t0, s.nt, s.share = kind, n, stride, srd, soff, t0, nt, share
        s.bytes = n * 128
        s.ni = s.bytes // 1024 // 4
        assert s.bytes % 4096 == 0

def gemm_setup(ops, vb, swave, T):
    lane, t1, t2, t3, t4, t5 = T, T+1, T+2, T+3, T+4, T+5
    e(f"v_and_b32 v{lane}, 63, v0")
    off = 0
    for o in ops:
        o.lds = off; off += o.bytes
        if o.share:
            o.dv, o.rv, o.nrv = o.share.dv, o.share.rv, o.share.nrv; continue
        if o.kind == 'k':
            o.dv = vb; vb += 1
            e(f"v_lshrrev_b32 v{t1}, 3, v0")
            e(f"v_bfe_u32 v{t2}, v{t1}, 1, 3"); e(f"v_and_b32 v{t3}, 7, v0"); e(f"v_xor_b32 v{t2}, v{t2}, v{t3}")
            e(f"v_mul_u32_u24 v{t1}, {o.stride}, v{t1}"); e(f"v_lshl_add_u32 v{o.dv}, v{t2}, 4, v{t1}")
            o.rv = vb; o.nrv = 2; vb += 2
            e(f"v_and_b32 v{t1}, 15, v0"); e(f"v_bfe_u32 v{t2}, v0, 4, 2"); e(f"v_bfe_u32 v{t3}, v0, 1, 3")
            e(f"v_xor_b32 v{t2}, v{t2}, v{t3}"); e(f"v_lshlrev_b32 v{t1}, 7, v{t1}")
            e(f"v_lshl_add_u32 v{o.rv}, v{t2}, 4, v{t1}")
            if not isinstance(o.t0, int):
                e(f"v_mov_b32 v{t1}, {o.t0}"); e(f"v_lshl_add_u32 v{o.rv}, v{t1}, 11, v{o.rv}")
            e(f"v_xor_b32 v{o.rv+1}, 64, v{o.rv}")
        else:
            RB = 2 * o.n; cpr = RB // 16
            o.dv = vb; vb += o.ni
            for i in range(o.ni):
                e(f"v_add_u32 v{t1}, {256*i}, v0")
                vdivmod(t2, t3, t1, cpr, 256 * o.ni)
                emit_f(t4, t2, RB, t5, o.perm)
                e(f"v_lshlrev_b32 v{t4}, 1, v{t4}"); e(f"v_xor_b32 v{t3}, v{t3}, v{t4}")
                e(f"v_mul_u32_u24 v{t2}, {o.stride}, v{t2}"); e(f"v_lshl_add_u32 v{o.dv+i}, v{t3}, 4, v{t2}")
            mask, _ = swz(RB)
            o.nrv = min(mask + 1, o.nt); o.rv = vb; vb += o.nrv
            e(f"v_bfe_u32 v{t1}, v0, 4, 2"); e(f"v_bfe_u32 v{t2}, v0, 2, 2")
            e(f"v_lshl_add_u32 v{t1}, v{t1}, {2 if o.perm else 3}, v{t2}")
            emit_f(t4, t1, RB, t5, o.perm)
            e(f"v_mul_u32_u24 v{t1}, {RB}, v{t1}"); e(f"v_and_b32 v{t2}, 3, v0")
            e(f"v_lshl_add_u32 v{t1}, v{t2}, 3, v{t1}")
            for j in range(o.nrv):
                if isinstance(o.t0, int): e(f"v_mov_b32 v{t2}, {o.t0 + j}")
                else: e(f"v_mov_b32 v{t2}, {o.t0}"); e(f"v_add_u32 v{t2}, {j}, v{t2}")
                e(f"v_xor_b32 v{t2}, v{t2}, v{t4}"); e(f"v_lshl_add_u32 v{o.rv+j}, v{t2}, 5, v{t1}")
    return vb, off

def gemm_dma(ops, stage_off, swl, stmp, aux=""):
    for o in ops:
        for i in range(o.ni):
            c = o.lds + i * 4096
            if isinstance(stage_off, int): e(f"s_add_u32 m0, s{swl}, {stage_off + c}")
            else: e(f"s_add_u32 s{stmp}, {stage_off}, {c}"); e(f"s_add_u32 m0, s{swl}, s{stmp}")
            if o.kind == 'k':
                e(f"s_add_u32 s{stmp}, s{o.soff}, {i*32*o.stride}")
                e(f"buffer_load_dwordx4 v{o.dv}, {sr(o.srd,4)}, s{stmp} offen {aux} lds")
            else:
                e("s_nop 0")
                e(f"buffer_load_dwordx4 v{o.dv+i}, {sr(o.srd,4)}, s{o.soff} offen {aux} lds")
        e(f"s_add_u32 s{o.soff}, s{o.soff}, {o.adv}")

def frag_reads(o, T, kk, dst, base):
    t0 = o.t0 if isinstance(o.t0, int) else 0
    if o.kind == 'k':
        return [f"ds_read_b128 {vr(dst,4)}, v{o.rv+kk} offset:{base + o.lds + (t0+T)*2048}"]
    RB = 2 * o.n
    j = T % o.nrv; hi = (T - j) * 32
    return [f"ds_read_b64_tr_b16 {vr(dst+2*hh,2)}, v{o.rv+j} offset:{base + o.lds + (32*kk+(16 if o.perm else 4)*hh)*RB + hi}" for hh in range(2)]

def gemm_compute(mf, base, fb, nbuf, extra=None):
    seq = [(kk,) + m for kk in range(2) for m in mf]
    need = []; last = {}
    for i, (kk, acc, a, ta, b, tb) in enumerate(seq):
        for key in ((a, ta, kk), (b, tb, kk)):
            if key not in last: need.append(key)
            last[key] = i
    free = list(range(nbuf)); slot = {}; done_at = {}; issued = 0; ni = 0
    def issue_some(maxn):
        nonlocal ni, issued
        n = 0
        while ni < len(need) and free and n < maxn:
            key = need[ni]; ni += 1; s = free.pop(0); slot[key] = s
            for ins in frag_reads(key[0], key[1], key[2], fb + 4 * s, base): e(ins); issued += 1
            done_at[key] = issued; n += 1
    waited = 0
    extra = list(extra or [])
    for i, (kk, acc, a, ta, b, tb) in enumerate(seq):
        ka, kb = (a, ta, kk), (b, tb, kk)
        while ka not in slot or kb not in slot: issue_some(1)
        if i == 0: issue_some(4)
        req = max(done_at[ka], done_at[kb])
        if req > waited:
            c = min(issued - req, 15); e(f"s_waitcnt lgkmcnt({c})"); waited = issued - c
        e(f"v_mfma_f32_16x16x32_bf16 {R(acc,4)}, {vr(fb+4*slot[ka],4)}, {vr(fb+4*slot[kb],4)}, {R(acc,4)}")
        for key in {ka, kb}:
            if last[key] == i: free.append(slot[key])
        issue_some(1)
        if extra and i % int(os.environ.get('EV', 4)) == 0:
            for x in extra.pop(0): e(x)
    for xs in extra:
        for x in xs: e(x)

def capture(fn):
    n = len(L); fn(); out = [x.strip() for x in L[n:]]; del L[n:]; return out

def gemm_loop(ops, mf, nk, ns, stage, fb, nbuf, swl, stmp, scnt, aux="", role=None):
    npd = sum(o.ni for o in ops)
    rvs = sorted({o.rv + j for o in ops for j in range(o.nrv)})
    big = ns * stage > 65536
    for p in range((ns - 1) * (role != 'c')): gemm_dma(ops, p * stage, swl, stmp, aux)
    def step(s, issue, pend):
        if role != 'c': e(f"s_waitcnt vmcnt({pend*npd})")
        e("s_barrier")
        if role == 'p':
            if issue: gemm_dma(ops, ((s + ns - 1) % ns) * stage, swl, stmp, aux)
            return
        ex = []
        if issue and not role:
            ins = capture(lambda: gemm_dma(ops, ((s + ns - 1) % ns) * stage, swl, stmp, aux))
            cur = []
            for x in ins:
                cur.append(x)
                if x.startswith("buffer_load"): ex.append(cur); cur = []
            ex[-1] += cur
        gemm_compute(mf, 0 if big else s * stage, fb, nbuf, ex)
        if big:
            d = stage if s < ns - 1 else -(ns - 1) * stage
            for r in rvs: e(f"v_add_u32 v{r}, {d & 0xffffffff:#x}, v{r}")
    nmain = nk - (ns - 1)
    nloop = nmain // ns if scnt is not None else 0
    k = 0
    if nloop > 1:
        lp = uid("kl"); e(f"s_mov_b32 s{scnt}, {nloop}"); lab(lp)
        for s in range(ns): step(s, True, ns - 2)
        e(f"s_sub_u32 s{scnt}, s{scnt}, 1"); e(f"s_cmp_lg_u32 s{scnt}, 0"); e(f"s_cbranch_scc1 {lp}")
        k = nloop * ns
    while k < nk:
        step(k % ns, k < nmain, min(ns - 2, nk - 1 - k)); k += 1
    if big and nk % ns:
        for r in rvs: e(f"v_add_u32 v{r}, {(-(nk % ns) * stage) & 0xffffffff:#x}, v{r}")
def zero(b, n):
    for i in range(n):
        e(f"v_mov_b32 v{b+i}, 0" if b + i < 256 else f"v_accvgpr_write_b32 a{b+i-256}, 0")
```

```python
from common import *
LOG2E = 1.4426950408889634
import struct, os
def f2u(x): return "%#x" % struct.unpack("<I", struct.pack("<f", x))[0]
def guard(n):
    ex = uid("go"); e(f"s_cmp_lt_u32 s2, {n}"); e(f"s_cbranch_scc1 {ex}"); e("s_endpgm"); lab(ex)
def wave_id(sw, swl):
    e("v_lshrrev_b32 v1, 6, v0"); e("s_nop 0"); e(f"v_readfirstlane_b32 s{sw}, v1"); e(f"s_lshl_b32 s{swl}, s{sw}, 10")
def red16(op, v, t):
    for n in (8, 4, 2, 1):
        e("s_nop 1"); e(f"{op}_dpp v{v}, v{v}, v{v} row_ror:{n} row_mask:0xf bank_mask:0xf")
def xswap(kind, op, v, t):
    e(f"v_mov_b32 v{t}, v{v}"); e("s_nop 1"); e(f"v_permlane{kind}_swap_b32 v{v}, v{t}"); e("s_nop 0"); e(f"{op} v{v}, v{v}, v{t}")

def swap67(d, x):
    e(f"v_lshrrev_b32 v{d}, 1, v{x}"); e(f"v_xor_b32 v{d}, v{d}, v{x}"); e(f"v_bfe_i32 v{d}, v{d}, 6, 1"); e(f"v_and_b32 v{d}, 0xc0, v{d}"); e(f"v_xor_b32 v{d}, v{d}, v{x}")
def ln_body(ssrc, sdst, double, touch=None):
    e("v_lshrrev_b32 v1, 5, v0"); e("s_lshl_b32 s3, s2, 3"); e("v_add_u32 v1, s3, v1")
    e("v_mul_u32_u24 v1, 1152, v1"); e("v_and_b32 v2, 31, v0"); e("v_lshl_add_u32 v1, v2, 2, v1")
    for i in range(9): e(f"buffer_load_dword v{10+i}, v1, {sr(ssrc,4)}, 0 offen offset:{128*i}")
    e(f"s_waitcnt vmcnt({touch()})")
    for i in range(9):
        e(f"v_lshlrev_b32 v{20+2*i}, 16, v{10+i}"); e(f"v_and_b32 v{21+2*i}, 0xffff0000, v{10+i}")
    e("v_add_f32 v3, v20, v21")
    for i in range(2, 18): e(f"v_add_f32 v3, v3, v{20+i}")
    red16("v_add_f32", 3, 4); xswap(16, "v_add_f32", 3, 4)
    e(f"v_mul_f32 v3, {f2u(1/576)}, v3")
    for i in range(18): e(f"v_sub_f32 v{20+i}, v{20+i}, v3")
    e("v_mul_f32 v3, v20, v20")
    for i in range(1, 18): e(f"v_fmac_f32 v3, v{20+i}, v{20+i}")
    red16("v_add_f32", 3, 4); xswap(16, "v_add_f32", 3, 4)
    e(f"v_mul_f32 v3, {f2u(1/576)}, v3"); e(f"v_add_f32 v4, {f2u(1e-5)}, v3"); e("v_rsq_f32 v4, v4"); e("s_nop 0")
    if double:
        e("v_mul_f32 v3, v3, v4"); e("v_mul_f32 v3, v3, v4"); e(f"v_add_f32 v3, {f2u(1e-5)}, v3")
        e("v_rsq_f32 v3, v3"); e("s_nop 0"); e("v_mul_f32 v4, v4, v3")
    for i in range(18): e(f"v_mul_f32 v{20+i}, v{20+i}, v4")
    for i in range(9):
        e(f"v_cvt_pk_bf16_f32 v{10+i}, v{20+2*i}, v{21+2*i}")
        e(f"buffer_store_dword v{10+i}, v1, {sr(sdst,4)}, 0 offen offset:{128*i}")

def k_init():
    kstart("init_kernel"); guard(256)
    e(f"s_load_dwordx2 s[4:5], s[0:1], {ARG['ws']}"); srd_arg(8, 'x'); srd_arg(12, 'mem0'); e("s_waitcnt lgkmcnt(0)")
    srd_ws(16, 'xn', 4); srd_ws(20, 'p1', 4); srd_ws(24, 'mh', 4); srd_ws(28, 'flg', 4); srd_ws(32, 'mh', 4)
    e("s_mov_b32 s34, 9216")
    def touch():
        if 'i' not in os.environ.get('X', ''): return 0
        for i, n in enumerate(('wq', 'wk', 'wv', 'wo')): srd_arg(36 + 4 * i, n)
        e("v_mul_u32_u24 v5, 72, v40"); e("s_waitcnt lgkmcnt(0)")
        for i in range(4): e(f"buffer_load_dword v{6+i}, v5, {sr(36+4*i,4)}, 0 offen")
        return 4
    e("s_lshl_b32 s3, s2, 8"); e("v_add_u32 v40, s3, v0"); e("v_lshlrev_b32 v41, 4, v40")
    e("v_and_b32 v42, 7, v40"); e("v_mul_u32_u24 v42, 1152, v42"); e("v_lshrrev_b32 v43, 3, v40"); e("v_lshl_add_u32 v42, v43, 4, v42")
    e("buffer_load_dwordx4 v[44:47], v42, s[12:15], 0 offen")
    for i in range(4): e(f"v_mov_b32 v{48+i}, -1"); e(f"v_mov_b32 v{52+i}, 0")
    e("s_mov_b32 s6, 1048576"); e("s_mov_b32 s7, 9216")
    e("buffer_store_dwordx4 v[48:51], v41, s[20:23], 0 offen"); e("buffer_store_dwordx4 v[48:51], v41, s[20:23], s6 offen")
    e("buffer_store_dwordx4 v[48:51], v41, s[24:27], s7 offen"); e("buffer_store_dwordx4 v[52:55], v41, s[28:31], 0 offen")
    ln_body(8, 16, False, touch)
    swap67(42, 41); e("buffer_store_dwordx4 v[44:47], v42, s[32:35], 0 offen")
    e("s_endpgm")
    return kdesc("init_kernel", 56, 56)

def k_ln2():
    kstart("ln2_kernel"); guard(256)
    e(f"s_load_dwordx2 s[4:5], s[0:1], {ARG['ws']}"); e("s_waitcnt lgkmcnt(0)")
    srd_ws(8, 'h', 4); srd_ws(16, 'hn', 4)
    ln_body(8, 16, True); e("s_endpgm")
    return kdesc("ln2_kernel", 40, 40)

def attn_body(sq, sk, sv, skm, stask, mid, aux="sc1"):
    Q, K, V, KM, VM, S, O = 8, 40, 72, 104, 120, 136, 8
    e("v_and_b32 v1, 63, v0"); e("v_lshlrev_b32 v2, 4, v1"); e(f"s_lshl_b32 s40, s{stask}, 13"); e("s_add_u32 s41, s40, 4096")
    for b, s in ((K, sk), (Q, sq), (V, sv)):
        for i in range(8): e(f"buffer_load_dwordx4 {vr(b+4*i,4)}, v2, {sr(s,4)}, s{40+i//4} offen offset:{(i%4)*1024} {aux}")
    e("v_and_b32 v3, 15, v1"); e("v_lshrrev_b32 v4, 4, v1"); e("v_lshlrev_b32 v5, 2, v4"); e("v_sub_u32 v5, v3, v5")
    tiles = [(0, 'm'), (0, 0), (1, 'm'), (1, 0), (1, 1)]
    def smm(mem):
        for ec in range(4):
            for n, (tt, kt) in enumerate(tiles):
                if (kt == 'm') != mem: continue
                a = KM + 4 * ec if kt == 'm' else K + 4 * (2 * ec + kt)
                e(f"v_mfma_f32_16x16x32_bf16 {vr(S+4*n,4)}, {vr(a,4)}, {vr(Q+4*(2*ec+tt),4)}, {vr(S+4*n,4) if ec else 0}")
    e("s_waitcnt vmcnt(8)"); smm(False); mid()
    for b, o in ((KM, 0), (VM, 1024)):
        for i in range(4): e(f"buffer_load_dwordx4 {vr(b+4*i,4)}, v2, {sr(skm,4)}, s{40+i//2} offen offset:{(i%2)*2048+o} {aux}")
    e("s_waitcnt vmcnt(4)"); smm(True)
    e("s_nop 7"); e(f"v_mov_b32 v7, {f2u(-1e30)}")
    for i in range(4):
        e(f"v_cmp_le_i32 vcc, {i}, v5"); e("s_nop 1")
        for n in (1, 4): e(f"v_cndmask_b32 v{S+4*n+i}, v7, v{S+4*n+i}, vcc")
    e(f"s_mov_b32 s44, {f2u(128**-0.5*LOG2E)}")
    P = 160
    for tt, rs in ((0, list(range(S, S+8))), (1, list(range(S+8, S+20)))):
        m, t, l = 156, 157, 158
        e(f"v_max_f32 v{m}, v{rs[0]}, v{rs[1]}")
        for i in range(2, len(rs), 2): e(f"v_max3_f32 v{m}, v{m}, v{rs[i]}, v{rs[i+1]}")
        xswap(32, "v_max_f32", m, t); xswap(16, "v_max_f32", m, t)
        e(f"v_mul_f32 v{m}, s44, v{m}")
        for r in rs: e(f"v_fma_f32 v{r}, v{r}, s44, -v{m}")
        for r in rs: e(f"v_exp_f32 v{r}, v{r}")
        e(f"v_add_f32 v{l}, v{rs[0]}, v{rs[1]}"); e(f"v_add_f32 v{l}, v{l}, v{rs[2]}"); e(f"v_add_f32 v{l}, v{l}, v{rs[3]}")
        e(f"v_mul_f32 v{l}, 0.5, v{l}")
        for r in rs[4:]: e(f"v_add_f32 v{l}, v{l}, v{r}")
        xswap(32, "v_add_f32", l, t); xswap(16, "v_add_f32", l, t)
        e(f"v_rcp_f32 v{l}, v{l}"); e("s_nop 0")
        for r in rs: e(f"v_mul_f32 v{r}, v{r}, v{l}")
        p = P + 8 * tt
        e(f"v_cvt_pk_bf16_f32 v{p+4}, v{rs[0]}, v{rs[1]}"); e(f"v_cvt_pk_bf16_f32 v{p+5}, v{rs[2]}, v{rs[3]}")
        for i in range(4):
            if 4 + 2 * i < len(rs): e(f"v_cvt_pk_bf16_f32 v{p+i}, v{rs[4+2*i]}, v{rs[5+2*i]}")
            else: e(f"v_mov_b32 v{p+i}, 0")
    e("s_waitcnt vmcnt(0)"); e("s_nop 1")
    for tt in range(2):
        for et in range(8):
            o = O + 4 * (8 * tt + et)
            e(f"v_mfma_f32_16x16x32_bf16 {vr(o,4)}, {vr(V+4*et,4)}, {vr(P+8*tt,4)}, 0")
        for et in range(8):
            o = O + 4 * (8 * tt + et)
            e(f"v_mfma_f32_16x16x16_bf16 {vr(o,4)}, {vr(VM+4*(et%4)+2*(et//4),2)}, {vr(P+8*tt+4,2)}, {vr(o,4)}")
    e("s_nop 7")
    for tt in range(2):
        for m in range(4):
            o = O + 4 * (8 * tt + 2 * m); d = 72 + 16 * tt + 4 * m
            for i in range(4): e(f"v_cvt_pk_bf16_f32 v{d+i}, v{o+2*i}, v{o+2*i+1}")

def mlp1_epi(ACC, T, sft, sdt, sdw, sfw, sb, su):
    e(f"s_lshl_b32 s42, s{sft}, 3"); e(f"s_add_u32 s42, s42, s{sfw}"); e("s_lshl_b32 s42, s42, 5")
    e("v_lshlrev_b32 v4, 3, v3")
    for j in range(4): e(f"buffer_load_dwordx2 {vr(T+2*j,2)}, v4, {sr(sb,4)}, s42 offen offset:{32*j}")
    e(f"s_lshr_b32 s43, s{sdt}, 1"); e(f"s_mul_i32 s43, s43, 72"); e("s_lshr_b32 s45, s42, 7"); e("s_add_u32 s43, s43, s45"); e("s_lshl_b32 s43, s43, 1"); e(f"s_and_b32 s45, s{sdt}, 1"); e("s_add_u32 s43, s43, s45"); e("s_mul_i32 s43, s43, 6"); e(f"s_add_u32 s43, s43, s{sdw}"); e("s_lshl_b32 s43, s43, 11")
    e("v_lshlrev_b32 v5, 7, v2"); e("v_lshl_add_u32 v5, v3, 4, v5")
    e("s_waitcnt vmcnt(0)")
    for j in range(4):
        for q in range(4):
            e(f"v_lshlrev_b32 v{T+8+4*j+q}, 16, v{T+2*j+q//2}" if q % 2 == 0 else f"v_and_b32 v{T+8+4*j+q}, 0xffff0000, v{T+2*j+q//2}")
    c0 = -2 * 0.7978845608028654 * LOG2E
    e(f"s_mov_b32 s45, {f2u(c0*0.044715)}"); e(f"v_mov_b32 v6, {f2u(c0)}")
    for i in range(3):
        for j in range(4):
            a = ACC + 4 * (i * 4 + j); t = T + 24
            for q in range(4): e(f"v_add_f32 v{a+q}, v{a+q}, v{T+8+4*j+q}")
            for q in range(4): e(f"v_mul_f32 v{t+q}, v{a+q}, v{a+q}")
            for q in range(4): e(f"v_fma_f32 v{t+q}, v{t+q}, s45, v6")
            for q in range(4): e(f"v_mul_f32 v{t+q}, v{t+q}, v{a+q}")
            for q in range(4): e(f"v_exp_f32 v{t+q}, v{t+q}")
            for q in range(4): e(f"v_add_f32 v{t+q}, 1.0, v{t+q}")
            for q in range(4): e(f"v_rcp_f32 v{t+q}, v{t+q}")
            for q in range(4): e(f"v_mul_f32 v{a+q}, v{a+q}, v{t+q}")
        for m in range(2):
            a = ACC + 4 * (i * 4 + 2 * m)
            for q in range(4): e(f"v_cvt_pk_bf16_f32 v{a+q}, v{a+2*q}, v{a+2*q+1}")
            e(f"buffer_store_dwordx4 {vr(a,4)}, v5, {sr(su,4)}, s43 offen offset:{64*m}")
        e("s_add_u32 s43, s43, 2048")

def k_mlp2():
    kstart("mlp2_kernel"); guard(192)
    P = os.environ.get("PROF")
    if P: e("s_memtime s[50:51]"); srd_arg(60, 'dbg')
    e(f"s_load_dwordx2 s[4:5], s[0:1], {ARG['ws']}"); wave_id(6, 7); e("s_lshr_b32 s46, s6, 2"); e("s_and_b32 s6, s6, 3"); e("s_lshl_b32 s7, s6, 10"); e("v_and_b32 v0, 255, v0"); e("s_waitcnt lgkmcnt(0)")
    srd_ws(8, 'u', 4); srd_ws(12, 'w2t', 4); srd_ws(16, 'pt', 4)
    e("s_and_b32 s30, s2, 7"); e("s_mul_i32 s30, s30, 24"); e("s_lshr_b32 s31, s2, 3"); e("s_add_u32 s30, s30, s31")
    sdivmod(33, 34, 30, 48, 256); sdivmod(31, 32, 34, 3, 64)
    e("s_and_b32 s35, s6, 1"); e("s_mul_i32 s35, s35, 6"); e("s_lshr_b32 s36, s6, 1"); e("s_lshl_b32 s36, s36, 2")
    X = Op('k', 192, 128, 8, 40, "s35", 6, adv=24576); Y = Op('t', 128, 256, 12, 41, "s36", 4, perm=True)
    e("s_lshl_b32 s40, s32, 2"); e("s_add_u32 s40, s40, s33"); e(f"s_mul_i32 s40, s40, {18*24576}")
    e("s_lshl_b32 s41, s31, 2"); e("s_add_u32 s41, s41, s33"); e(f"s_mul_i32 s41, s41, {18*16384}")
    vb, stage = gemm_setup([X, Y], 8, 6, 2); assert vb <= 32 and stage == 40960
    e("s_cmp_eq_u32 s46, 0"); e("s_cbranch_scc1 m2c"); gemm_loop([X, Y], None, 18, 4, stage, 128, 16, 7, 38, 39, role='p'); e("s_endpgm"); lab("m2c")
    zero(32, 96)
    mf = [(32 + 4 * (j * 6 + i), X, i, Y, j) for i in range(6) for j in range(4)]
    n0 = len(L)
    gemm_loop([X, Y], mf, 18, 4, stage, 128, 16, 7, 38, None if P else 39, role='c')
    if P:
        bs = [i for i in range(n0, len(L)) if "s_barrier" in L[i]]
        for k, r in ((9, 54), (0, 52)): L.insert(bs[k], f"    s_memtime s[{r}:{r+1}]\n    s_waitcnt lgkmcnt(0)")
        e("s_memtime s[56:57]")
    e("s_lshl_b32 s42, s30, 2"); e("s_add_u32 s42, s42, s6"); e("s_mul_i32 s42, s42, 12288"); e("v_and_b32 v2, 63, v0"); e("v_lshlrev_b32 v2, 4, v2"); e("s_nop 7")
    for f in range(12):
        for q in range(4): e(f"v_cvt_pk_bf16_f32 v{32+8*f+q}, v{32+8*f+2*q}, v{33+8*f+2*q}")
        e(f"buffer_store_dwordx4 {vr(32+8*f,4)}, v2, s[16:19], s42 offen offset:{(f%4)*1024}")
        if f % 4 == 3: e("s_add_u32 s42, s42, 4096")
    if P:
        e("s_waitcnt vmcnt(0)"); e("s_memtime s[58:59]"); e("s_waitcnt lgkmcnt(0)"); e("s_cmp_lg_u32 s2, 100"); e("s_cbranch_scc1 m2e"); e("v_mov_b32 v2, 0")
        for i in range(4): e(f"s_sub_u32 s3, s{52+2*i}, s50"); e("v_mov_b32 v3, s3"); e(f"buffer_store_dword v3, v2, s[60:63], 0 offen offset:{4*i}")
        lab("m2e")
    e("s_endpgm")
    return kdesc("mlp2_kernel", 192, 192)

def k_fin():
    kstart("fin_kernel"); guard(576)
    e(f"s_load_dwordx2 s[4:5], s[0:1], {ARG['ws']}"); srd_arg(24, 'b2'); srd_arg(20, 'out'); wave_id(6, 7); e("s_waitcnt lgkmcnt(0)")
    srd_ws(8, 'pt', 4); srd_ws(16, 'h', 4)
    e("s_lshl_b32 s29, s2, 2"); e("s_add_u32 s29, s29, s6"); e("s_lshl_b32 s42, s29, 10")
    e("v_and_b32 v1, 63, v0"); e("v_lshlrev_b32 v1, 4, v1")
    for sp in range(4): e(f"buffer_load_dwordx4 {vr(16+4*sp,4)}, v1, s[8:11], s42 offen"); e(f"s_add_u32 s42, s42, {48*4*12288}")
    sdivmod(30, 35, 29, 3, 2304); e("s_lshr_b32 s34, s30, 4"); sdivmod(31, 32, 34, 3, 64)
    e("s_lshl_b32 s31, s31, 3"); e("s_bfe_u32 s33, s30, 0x10003"); e("s_lshl_b32 s33, s33, 2"); e("s_add_u32 s31, s31, s33"); e("s_and_b32 s33, s30, 3"); e("s_add_u32 s31, s31, s33"); e("s_lshl_b32 s31, s31, 4")
    e("s_lshl_b32 s32, s32, 1"); e("s_bfe_u32 s33, s30, 0x10002"); e("s_add_u32 s32, s32, s33"); e("s_mul_i32 s32, s32, 3"); e("s_add_u32 s32, s32, s35"); e("s_lshl_b32 s43, s32, 6")
    e("v_and_b32 v2, 15, v0"); e("v_bfe_u32 v3, v0, 4, 2"); e("v_add_u32 v4, s31, v2"); e("v_mul_u32_u24 v5, 1152, v4"); e("v_lshl_add_u32 v5, v3, 3, v5"); e("v_lshlrev_b32 v4, 1, v4")
    for i in range(2): e(f"buffer_load_dwordx2 {vr(32+2*i,2)}, v5, s[16:19], s43 offen offset:{32*i}")
    e("buffer_load_ushort v6, v4, s[24:27], 0 offen"); e("s_waitcnt vmcnt(0)"); e("v_lshlrev_b32 v6, 16, v6")
    for sp in range(5):
        for q in range(8):
            e(f"v_lshlrev_b32 v{40+q}, 16, v{16+4*sp+q//2}" if q % 2 == 0 else f"v_and_b32 v{40+q}, 0xffff0000, v{16+4*sp+q//2}")
        for q in range(8): e(f"v_add_f32 v{8+q}, v{8+q if sp else 6}, v{40+q}")
    for q in range(4): e(f"v_cvt_pk_bf16_f32 v{8+q}, v{8+2*q}, v{9+2*q}")
    for i in range(2): e(f"buffer_store_dwordx2 {vr(8+2*i,2)}, v5, s[20:23], s43 offen offset:{32*i}")
    e("s_endpgm")
    return kdesc("fin_kernel", 64, 64)
```

```python
from common import *
from simple import *
import os
PROF = int(os.environ.get('PROF', 0))
_st = [0]
def stamp():
    if PROF:
        e(f's_memtime s[{8+2*_st[0]}:{9+2*_st[0]}]'); _st[0] += 1
X = os.environ.get('X', '')
KA = '' if 'k' in X else 'nt sc1' if 'n' in X else 'sc0 sc1' if 'm' in X else 'sc1'
RP = int(os.environ.get('RP', 16))
MI, SREG, WB = 0, 9216, 15360
WV_IMG, WO_IMG = WB, WB + 73728
LDS_A = WB + 147456
def wop(i):
    return 256 + 8 * i if i < 32 else 80 + 8 * (i - 32)
WQ = lambda j, t: wop(2 * j + t)
WK = lambda j, t: wop(18 + 2 * j + t)
WVA = lambda j: wop(36 + j)
WO0 = lambda i: wop(45 + i)
class DS:
    def __init__(s): s.n = 0; s.tag = {}; s.w = 0
    def op(s, ins, tag=None):
        e(ins); s.n += 1
        if tag is not None: s.tag[tag] = s.n
    def need(s, tag):
        r = s.tag[tag]
        if r > s.w:
            c = min(s.n - r, 15); e(f"s_waitcnt lgkmcnt({c})"); s.w = s.n - c
    def drain(s): e("s_waitcnt lgkmcnt(0)"); s.w = s.n
def smf(d, a, b): e(f"v_smfmac_f32_16x16x64_bf16 {vr(d,4)}, {vr(a,4)}, {R(b,8)}, v1")
def cvt(d, a, n):
    for i in range(n): e(f"v_cvt_pk_bf16_f32 v{d+i}, v{a+2*i}, v{a+2*i+1}")
SW, SWL, SH = 6, 7, 3
S_WQ, S_WK, S_WV, S_WO = 8, 12, 16, 20
S_XN, S_QF, S_KF, S_VF, S_FLG = 24, 28, 32, 36, 48
S_P1, S_MH, S_KVM = 52, 56, 60
TMO = 64; STEP = 65

def roles():
    e("s_getreg_b32 s70, hwreg(HW_REG_XCC_ID, 0, 4)"); e("s_and_b32 s70, s70, 7")
    e(f"s_cmp_lg_u32 s{SW}, 0"); e("s_cbranch_scc1 role_wait")
    e("s_lshl_b32 s71, s70, 2"); e("v_mov_b32 v2, s71"); e("v_mov_b32 v3, 1"); e("s_mov_b64 exec, 1")
    e("buffer_atomic_add v3, v2, s[72:75], 0 offen sc0"); e("s_waitcnt vmcnt(0)"); e("s_mov_b64 exec, -1")
    e("v_readfirstlane_b32 s71, v3"); e("s_lshl_b32 s77, s70, 5"); e("s_add_u32 s77, s77, s71"); e("s_cmp_ge_u32 s71, 32"); e("s_cselect_b32 s77, -1, s77")
    lab("role_pub")
    e("v_mov_b32 v2, 0"); e("v_mov_b32 v3, s77"); e("ds_write_b32 v2, v3"); e("s_waitcnt lgkmcnt(0)")
    lab("role_wait")
    e("s_barrier"); e("v_mov_b32 v2, 0"); e("ds_read_b32 v3, v2"); e("s_waitcnt lgkmcnt(0)")
    e(f"v_readfirstlane_b32 s{SH}, v3"); e("s_barrier")
    e(f"s_cmp_eq_u32 s{SH}, -1"); e("s_cbranch_scc0 role_ok"); e("s_endpgm"); lab("role_ok")

def worker():
    e("v_lshlrev_b32 v3, 7, v0"); e(f"s_mov_b32 s79, s{SH}")
    e(f"s_mul_i32 s67, s{SH}, 24576"); e("v_add_u32 v3, s67, v3")
    for i, srd in enumerate((S_WO,) if 'i' not in os.environ.get('X', '') else ()): e(f"buffer_load_dword v{200+i}, v3, {sr(srd,4)}, 0 offen")
    e(f"s_lshl_b32 s66, s{SW}, 1")
    X = Op('k', 128, 1152, S_XN, 67, 0, 8)
    Yq = Op('t', 128, 8192, S_WQ, 68, "s66", 2); Yk = Op('t', 128, 8192, S_WK, 69, "s66", 2, share=Yq); Yv = Op('t', 128, 8192, S_WV, 70, "s66", 2, share=Yq)
    ops = [X, Yq, Yk, Yv]
    vb, stage = gemm_setup(ops, 8, SW, 2); assert vb <= 30 and stage == 65536
    e("v_and_b32 v30, 63, v0"); e("v_lshlrev_b32 v30, 4, v30")
    lab("wk_task")
    HB = int(os.environ.get("HB", 3))
    e(f"s_and_b32 s71, s79, {(1<<HB)-1}"); e(f"s_bfe_u32 s72, s79, {(5-HB)<<16|5:#x}"); e(f"s_lshl_b32 s72, s72, {HB}"); e("s_add_u32 s71, s71, s72")
    e(f"s_bfe_u32 s72, s79, {(5-HB)<<16|HB:#x}"); e(f"s_lshr_b32 s67, s79, {10-HB}"); e(f"s_lshl_b32 s67, s67, {5-HB}"); e("s_add_u32 s72, s72, s67")
    e(f"s_mul_i32 s67, s72, {128*1152}"); e("s_lshl_b32 s68, s71, 8"); e("s_mov_b32 s69, s68"); e("s_mov_b32 s70, s68")
    zero(256, 192)
    acc = lambda m, t, T: 256 + 4 * ((m * 2 + t) * 8 + T)
    mf = []
    for T in range(8):
        for m, Y in enumerate((Yq, Yk, Yv)):
            for t in range(2): mf.append((acc(m, t, T), Y, t, X, T) if m < 2 else (acc(m, t, T), X, T, Y, t))
    gemm_loop(ops, mf, 9, 2, stage, 32, 18, SWL, 73, 74)
    e(f"s_lshl_b32 s75, s72, 7"); e("s_add_u32 s75, s75, s71"); e("s_lshl_b32 s75, s75, 13"); e(f"s_lshl_b32 s76, s{SWL}, 1"); e("s_add_u32 s75, s75, s76")
    for sg in range(1, 4): e(f"s_add_u32 s{75+sg}, s75, {sg*32*8192}")
    e("s_nop 7")
    if PROF: e("s_memtime s[90:91]")
    n = 0
    for m, srd in ((1, S_KF), (2, S_VF), (0, S_QF)):
        for sg in range(4):
            for f in range(2):
                a0, a1 = (acc(m, 0, 2 * sg + f), acc(m, 1, 2 * sg + f)) if m < 2 else (acc(m, f, 2 * sg), acc(m, f, 2 * sg + 1))
                t = 32 + 8 * (n % 16); n += 1
                for i in range(4): e(f"v_accvgpr_read_b32 v{t+i}, a{a0-256+i}"); e(f"v_accvgpr_read_b32 v{t+4+i}, a{a1-256+i}")
                cvt(t, t, 4)
                e(f"buffer_store_dwordx4 {vr(t,4)}, v30, {sr(srd,4)}, s{75+sg} offen offset:{f*1024} sc1")
    e("s_waitcnt vmcnt(0)"); e("s_barrier")
    e("s_lshl_b32 s75, s72, 5"); e("s_add_u32 s75, s75, s71"); e("s_lshl_b32 s75, s75, 7"); e("s_bitset1_b32 s75, 16")
    e(f"s_cmp_lg_u32 s{SW}, 0"); e("s_cbranch_scc1 wk_nof")
    e("v_mov_b32 v2, 0"); e("v_mov_b32 v3, 1"); e("s_mov_b64 exec, 1")
    e(f"buffer_store_dword v3, v2, {sr(S_FLG,4)}, s75 offen sc1"); e("s_mov_b64 exec, -1")
    if PROF:
        e("s_memtime s[92:93]"); srd_arg(80, 'dbg'); e("s_waitcnt lgkmcnt(0)"); e(f"s_cmp_lg_u32 s75, 65536"); e("s_cbranch_scc1 wk_nof")
        e(f"s_sub_u32 s90, s90, s44"); e(f"s_sub_u32 s92, s92, s44"); e("s_lshr_b32 s90, s90, 8"); e("s_lshr_b32 s92, s92, 8"); e("s_mul_i32 s90, s90, 1000"); e("s_add_u32 s90, s90, s92")
        e(f"v_mov_b32 v3, s90"); e(f"buffer_store_dword v3, v2, s[80:83], 0 offen offset:60")
    lab("wk_nof")
    e("s_add_u32 s79, s79, 224"); e("s_cmp_lt_u32 s79, 512"); e("s_cbranch_scc1 wk_task")
    phase2()

def pollv(off, cmp, nl=None):
    a, o = uid("pv"), uid("pvo")
    if nl: e(f"s_cmp_lg_u32 s{SW}, 0"); e(f"s_cbranch_scc1 {o}")
    lab(a); e(f"buffer_load_dword v195, v194, {sr(S_FLG,4)}, s{off} offen sc1"); e("s_waitcnt vmcnt(0)")
    e(cmp); e(f"s_cbranch_vccz {o}"); poll_tmo(a, o); lab(o)
    if nl: e("s_barrier")
def flag_store(off, val):
    e("v_mov_b32 v194, 0"); e(f"v_mov_b32 v195, {val}"); e("s_mov_b64 exec, 1")
    e(f"buffer_store_dword v195, v194, {sr(S_FLG,4)}, s{off} offen sc1"); e("s_mov_b64 exec, -1")
S_HP, S_HN, S_W1, S_U, S_B1, S_X, S_H = 8, 12, 16, 24, 52, 56, 76
def ln_role():
    e(f"s_and_b32 s86, s{SH}, 7"); e("s_lshl_b32 s86, s86, 2"); e(f"s_add_u32 s86, s86, s{SW}"); e("s_lshl_b32 s87, s73, 5"); e("s_add_u32 s86, s86, s87")
    e("v_and_b32 v1, 63, v0"); e("v_lshlrev_b32 v2, 4, v1"); e("v_lshlrev_b32 v3, 3, v1"); e("s_lshl_b32 s87, s73, 8"); e("s_add_u32 s87, s87, 4096")
    e("s_mov_b32 s88, -1"); e("s_mov_b32 s89, 0xffff")
    e("s_mul_i32 s90, s86, 18432"); e("s_mul_i32 s91, s86, 1152"); e("v_mov_b32 v4, 0"); e("v_mov_b32 v5, 0"); e("s_mov_b64 exec, s[88:89]")
    for r in range(3): e(f"buffer_load_dwordx2 {vr(8+2*r,2)}, v3, {sr(S_X,4)}, s91 offen offset:{384*r}")
    e("v_lshlrev_b32 v194, 2, v1"); pollv(87, "v_cmp_eq_u32 vcc, 0, v195", True)
    if PROF: e("s_memtime s[94:95]")
    for hg in range(8):
        for r in range(3): e(f"buffer_load_dwordx4 {vr(32+12*hg+4*r,4)}, v2, {sr(S_HP,4)}, s90 offen offset:{768*r} sc1")
        e("s_add_u32 s90, s90, 2304")
    for i in range(6): e(f"v_lshlrev_b32 v{16+2*i}, 16, v{8+i}"); e(f"v_and_b32 v{17+2*i}, 0xffff0000, v{8+i}")
    for hg in range(8):
        e(f"s_waitcnt vmcnt({21-3*hg})")
        for i in range(0, 12, 2): e(f"v_pk_add_f32 {vr(16+i,2)}, {vr(16+i,2)}, {vr(32+12*hg+i,2)}")
    for i in range(6): e(f"v_cvt_pk_bf16_f32 v{8+i}, v{16+2*i}, v{17+2*i}")
    for i in range(6): e(f"v_lshlrev_b32 v{16+2*i}, 16, v{8+i}"); e(f"v_and_b32 v{17+2*i}, 0xffff0000, v{8+i}")
    for i in range(12): e(f"v_add_f32 v4, v4, v{16+i}")
    def allred(v): e("s_mov_b64 exec, -1"); red16("v_add_f32", v, 6); xswap(16, "v_add_f32", v, 6); xswap(32, "v_add_f32", v, 6); e(f"v_mul_f32 v{v}, {f2u(1/576)}, v{v}"); e("s_mov_b64 exec, s[88:89]")
    if PROF: e("s_memtime s[96:97]")
    allred(4)
    for i in range(12): e(f"v_sub_f32 v{16+i}, v{16+i}, v4"); e(f"v_fmac_f32 v5, v{16+i}, v{16+i}")
    allred(5)
    e(f"v_add_f32 v4, {f2u(1e-5)}, v5"); e("v_rsq_f32 v4, v4"); e("s_nop 0")
    e("v_mul_f32 v5, v5, v4"); e("v_mul_f32 v5, v5, v4"); e(f"v_add_f32 v5, {f2u(1e-5)}, v5"); e("v_rsq_f32 v5, v5"); e("s_nop 0"); e("v_mul_f32 v4, v4, v5")
    for i in range(12): e(f"v_mul_f32 v{16+i}, v{16+i}, v4")
    for i in range(6): e(f"v_cvt_pk_bf16_f32 v{16+i}, v{16+2*i}, v{17+2*i}")
    for r in range(3): e(f"buffer_store_dwordx2 {vr(16+2*r,2)}, v3, {sr(S_HN,4)}, s91 offen offset:{384*r} sc1")
    e(f"s_lshl_b32 s92, s{SH}, 2"); e("s_lshl_b32 s93, s80, 13"); e("s_add_u32 s92, s92, s93"); e(f"s_add_u32 s92, s92, {131072-768}"); e("s_mov_b64 exec, -1")
    e("v_lshlrev_b32 v194, 7, v1"); e("v_mov_b32 v195, 1"); e("s_waitcnt vmcnt(0)"); e("s_barrier"); e(f"s_cmp_lg_u32 s{SW}, 0"); e("s_cbranch_scc1 ln_nf")
    e(f"s_mov_b64 exec, {-1 if RP == 64 else (1<<RP)-1}" if RP != 32 else "s_mov_b32 exec_hi, 0"); e(f"buffer_store_dword v195, v194, {sr(S_FLG,4)}, s92 offen sc1"); lab("ln_nf")
    if PROF: e("s_memtime s[100:101]"); e("s_waitcnt lgkmcnt(0)")
    e("s_mov_b64 exec, s[88:89]")
    for r in range(3): e(f"buffer_store_dwordx2 {vr(8+2*r,2)}, v3, {sr(S_H,4)}, s91 offen offset:{384*r}")
    e("s_mov_b64 exec, -1")
    e(f"s_and_b32 s90, s{SH}, 7"); e("s_lshl_b32 s91, s73, 3"); e("s_add_u32 s90, s90, s91"); e("s_mul_i32 s91, s90, 2304"); e("s_mul_i32 s90, s90, 36864"); e("v_lshlrev_b32 v2, 4, v0")
    for i in range(9): e(f"buffer_load_dwordx4 {vr(32+4*i,4)}, v2, {sr(S_WO,4)}, s90 offen"); e("s_add_u32 s90, s90, 4096")
    e("v_lshrrev_b32 v3, 4, v0"); e("v_mul_u32_u24 v3, 1179648, v3"); e("v_and_b32 v2, 0xf0, v2"); e("v_add_u32 v2, v2, v3"); srd_ws(40, 'w2t', 4)
    for i in range(9): e("s_waitcnt vmcnt(8)"); e(f"buffer_store_dwordx4 {vr(32+4*i,4)}, v2, s[40:43], s91 offen offset:{256*i}")
    e("s_add_u32 s73, s73, 4")
def phase2():
    if PROF: e("s_memtime s[96:97]"); e("s_mov_b32 s98, s44")
    for s, n in ((S_W1, 'w1'), (S_B1, 'b1'), (S_X, 'x')): srd_arg(s, n)
    for s, n in ((S_HP, 'hp'), (S_HN, 'hn'), (S_U, 'u'), (S_H, 'h')): srd_ws(s, n, 4)
    e(f"s_mov_b32 s{TMO}, 400000"); e("s_waitcnt lgkmcnt(0)")
    sdivmod(66, 67, SH, 6, 256)
    e(f"s_and_b32 s68, s{SW}, 1"); e("s_mul_i32 s68, s68, 3"); e(f"s_lshr_b32 s69, s{SW}, 1"); e("s_lshl_b32 s69, s69, 2")
    e("s_and_b32 s72, s66, 7"); e("s_lshr_b32 s73, s66, 3")
    RED = 57344
    e(f"s_cmp_lt_u32 s{SH}, 192"); e("s_cbranch_scc1 p2_wo"); e(f"s_bfe_u32 s73, s{SH}, 0x20003"); lab("p2_wo")
    W = Op('t', 96, 1152, S_WO, 70, 0, 6, perm=True); gemm_setup([W], 8, SW, 2)
    e(f"s_mul_i32 s70, s72, {512*1152}"); e("s_mul_i32 s71, s67, 192"); e("s_add_u32 s70, s70, s71")
    for k in range(8): gemm_dma([W], k * 12288, SWL, 74)
    e(f"s_mul_i32 s71, s{SW}, 24576")
    for j in range(W.nrv): e(f"v_add_u32 v{W.rv+j}, s71, v{W.rv+j}")
    e("s_waitcnt vmcnt(0)"); e("s_barrier")
    for m in range(4):
        for nt in range(6):
            for ins in frag_reads(W, nt, m & 1, 64 + 4 * (m * 6 + nt), (m >> 1) * 12288): e(ins.replace(" v[", " a[", 1))
    e("v_and_b32 v2, 15, v0"); e("v_bfe_u32 v3, v0, 4, 2"); e("v_mul_u32_u24 v2, 400, v2"); e("v_lshl_add_u32 v2, v3, 4, v2")
    e(f"s_mul_i32 s71, s{SW}, 12800"); e(f"s_add_u32 s71, s71, {RED}"); e("v_add_u32 v196, s71, v2")
    e("s_mul_i32 s70, s72, 2304"); e("s_mul_i32 s71, s67, 384"); e("s_add_u32 s70, s70, s71")
    for r in range(3):
        e(f"v_add_u32 v2, {256*r}, v0"); vdivmod(3, 4, 2, 24, 768); e("v_lshlrev_b32 v4, 4, v4")
        e(f"v_mul_u32_u24 v5, 400, v3"); e(f"v_add_u32 v5, {RED}, v5"); e(f"v_add_u32 v{197+r}, v5, v4")
        e(f"v_mul_u32_u24 v5, 18432, v3"); e(f"v_add3_u32 v{200+r}, v5, v4, s70")
    e("s_waitcnt lgkmcnt(0)"); e("s_barrier")
    srd_arg(S_WO, 'w2'); e("s_waitcnt lgkmcnt(0)")
    Xo = Op('t', 96, 1152, S_HN, 70, "s68", 3); Y = Op('t', 128, 9216, S_W1, 71, "s69", 4)
    vb, stage = gemm_setup([Xo, Y], 204, SW, 2); assert vb <= 256 and 2 * stage == RED
    e("s_mul_i32 s70, s67, 192"); e("s_lshl_b32 s71, s66, 8"); zero(256, 48)
    mf = [(256 + 4 * (i * 4 + j), Y, j, Xo, i) for i in range(3) for j in range(4)]
    e("s_mov_b32 s80, 0"); e(f"s_and_b32 s81, s{SH}, {RP-1}"); e("s_lshl_b32 s81, s81, 7"); e("s_add_u32 s81, s81, 131072")
    e("s_lshl_b32 s82, s72, 2"); e(f"s_add_u32 s82, s82, s{SW}")
    e("s_mul_i32 s83, s72, 6"); e("s_add_u32 s83, s83, s67"); e("s_lshl_b32 s83, s83, 2"); e("s_add_u32 s83, s83, 4096")
    e("v_bfe_u32 v3, v0, 4, 2"); e("s_min_u32 s84, s66, 35"); mlp1_epi(32, 80, 84, 67, 68, 69, S_B1, S_U, True)
    lab("p2_loop")
    e("s_cmp_eq_u32 s80, 0"); e("s_cbranch_scc1 p2_noy"); e(f"s_cmp_ge_u32 s{SH}, 216"); e("s_cbranch_scc1 p2_noy")
    for st in range(2): gemm_dma([Y], st * stage, SWL, 74)
    lab("p2_noy")
    e("s_cmp_eq_u32 s80, 16"); e("s_cbranch_scc1 p2_noat"); e(f"s_cmp_lt_u32 s{SH}, 192"); e("s_cbranch_scc1 p2_at"); ln_role(); e("s_branch p2_noat"); lab("p2_at")
    e("s_lshl_b32 s84, s80, 5"); e("s_add_u32 s84, s84, s82"); e("s_lshl_b32 s84, s84, 7"); e("s_bitset1_b32 s84, 16"); e("v_mov_b32 v194, 0")
    pollv(84, "v_cmp_eq_u32 vcc, 0, v195")
    e("s_lshl_b32 s84, s73, 5"); e("s_add_u32 s84, s84, s82"); e("s_lshl_b32 s85, s82, 7"); e("s_add_u32 s85, s85, 28672")
    attn_body(S_QF, S_KF, S_VF, S_KVM, 84, lambda: pollv(85, "v_cmp_ge_u32 vcc, s73, v195"))
    e("s_nop 0")
    for m in range(4):
        for tt in range(2):
            for nt in range(6):
                a = 104 + 4 * (6 * tt + nt)
                e(f"v_mfma_f32_16x16x32_bf16 {vr(a,4)}, {ar(64+4*(m*6+nt),4)}, {vr(72+16*tt+4*m,4)}, {vr(a,4) if m else 0}")
    e(f"s_mul_i32 s84, s73, {32*18432}"); e("s_lshl_b32 s85, s73, 8"); e("s_add_u32 s85, s85, s83"); e("s_nop 2")
    for tt in range(2):
        for nt in range(6): e(f"ds_write_b128 v196, {vr(104+4*(6*tt+nt),4)} offset:{tt*6400+nt*64}")
    e("s_waitcnt lgkmcnt(0)"); e("s_barrier")
    for r in range(3):
        for w in range(4): e(f"ds_read_b128 {vr(8+16*r+4*w,4)}, v{197+r} offset:{w*12800}")
    for r in range(3):
        b = 8 + 16 * r; e(f"s_waitcnt lgkmcnt({8-4*r})")
        for x, y in ((0, 4), (8, 12), (0, 8)):
            for i in (0, 2): e(f"v_pk_add_f32 {vr(b+x+i,2)}, {vr(b+x+i,2)}, {vr(b+y+i,2)}")
        e(f"buffer_store_dwordx4 {vr(b,4)}, v{200+r}, {sr(S_HP,4)}, s84 offen sc1")
    e("s_waitcnt vmcnt(0)"); e("s_barrier"); e("s_add_u32 s73, s73, 4")
    if PROF: e("s_memtime s[94:95]"); e("s_waitcnt lgkmcnt(0)")
    e(f"s_cmp_lg_u32 s{SW}, 0"); e("s_cbranch_scc1 p2_noat"); flag_store(85, 1)
    lab("p2_noat")
    e("s_cmp_eq_u32 s80, 0"); e("s_cbranch_scc1 p2_next"); e(f"s_cmp_ge_u32 s{SH}, 216"); e("s_cbranch_scc1 p2_next")
    e("v_and_b32 v194, 31, v0"); e("v_lshlrev_b32 v194, 2, v194"); pollv(81, "v_cmp_eq_u32 vcc, 0, v195", True); e("s_add_u32 s81, s81, 8192")
    if PROF: e("s_memtime s[96:97]"); e("s_waitcnt lgkmcnt(0)")
    for st in range(2): gemm_dma([Xo], st * stage, SWL, 74, "sc1")
    e("s_waitcnt vmcnt(0)"); e("s_barrier")
    for st in range(2): gemm_compute(mf, st * stage, 8, 14)
    e("s_barrier")
    lab("p2_next")
    e("s_add_u32 s80, s80, 1"); e("s_cmp_le_u32 s80, 16"); e("s_cbranch_scc1 p2_loop")
    e(f"s_cmp_lt_u32 s{SH}, 216"); e("s_cbranch_scc1 p2_epi")
    if PROF:
        srd_arg(8, 'dbg'); e("s_waitcnt lgkmcnt(0)"); e(f"s_cmp_lg_u32 s{SH}, 223"); e("s_cbranch_scc1 wpe2"); e("v_mov_b32 v2, 0")
        for i, r in enumerate((94, 96, 100)): e(f"s_sub_u32 s{r}, s{r}, s98"); e(f"v_mov_b32 v3, s{r}"); e(f"buffer_store_dword v3, v2, s[8:11], 0 offen offset:{48+4*i}")
        lab("wpe2")
    e("s_endpgm"); lab("p2_epi"); e("s_nop 7")
    for i in range(48): e(f"v_accvgpr_read_b32 v{32+i}, a{i}")
    e("v_and_b32 v2, 15, v0"); e("v_bfe_u32 v3, v0, 4, 2")
    if PROF: e("s_memtime s[90:91]")
    mlp1_epi(32, 80, 66, 67, 68, 69, S_B1, S_U)
    if PROF:
        e("s_waitcnt vmcnt(0)"); e("s_memtime s[92:93]"); srd_arg(8, 'dbg'); e("s_waitcnt lgkmcnt(0)"); e(f"s_cmp_lg_u32 s{SH}, 191"); e("s_cbranch_scc1 wpe"); e("v_mov_b32 v2, 0")
        for i, r in enumerate((96, 94, 90, 92)): e(f"s_sub_u32 s{r}, s{r}, s98"); e(f"v_mov_b32 v3, s{r}"); e(f"buffer_store_dword v3, v2, s[8:11], 0 offen offset:{32+4*i}")
        lab("wpe")
    e("s_endpgm")

def poll_tmo(again, out):
    e(f"s_cmp_eq_u32 s{TMO}, 0"); e(f"s_cbranch_scc1 {out}"); e(f"s_sub_u32 s{TMO}, s{TMO}, 1"); e(f"s_branch {again}")

_ts = [0]
def ts():
    if 't' in X: e("s_memtime s[88:89]"); e("s_waitcnt lgkmcnt(0)"); e(f"s_sub_u32 s88, s88, s44"); e(f"s_mul_i32 s{90+_ts[0]}, s88, 63"); _ts[0] += 1
def chain_prologue():
    ts()
    e("v_and_b32 v12, 63, v0"); e("v_lshrrev_b32 v13, 4, v12"); e("v_and_b32 v14, 15, v12")
    e(f"s_and_b32 s66, s{SW}, 1"); e(f"s_lshr_b32 s67, s{SW}, 1")
    e("s_lshl_b32 s68, s67, 5"); e("s_lshl_b32 s69, s66, 1"); e("s_add_u32 s68, s68, s69")
    e("v_lshrrev_b32 v15, 1, v13"); e("v_and_b32 v16, 1, v13"); e("v_lshl_add_u32 v15, v15, 3, v16"); e("v_add_u32 v15, s68, v15")
    e(f"s_lshl_b32 s69, s{SH}, 8")
    for p in range(2):
        e(f"v_add_u32 v16, {4*p}, v13"); e("v_lshlrev_b32 v16, 1, v16"); e("v_xor_b32 v16, v16, v14")
        e(f"v_add_u32 v17, {4*p}, v15"); e("v_lshlrev_b32 v17, 13, v17"); e(f"v_lshl_add_u32 v{20+p}, v16, 4, v17"); e(f"v_add_u32 v{20+p}, s69, v{20+p}")
    def rest():
        e("v_bfe_u32 v15, v12, 4, 1"); e("v_bfe_u32 v16, v12, 3, 1"); e("v_lshl_add_u32 v15, v15, 3, v16"); e("v_lshrrev_b32 v16, 5, v12")
        e("v_lshl_add_u32 v15, v16, 2, v15"); e("v_add_u32 v15, s68, v15"); e("v_lshlrev_b32 v15, 13, v15")
        e("v_and_b32 v16, 7, v12"); e("v_lshlrev_b32 v17, 1, v13"); e("v_xor_b32 v16, v16, v17")
        e("v_lshl_add_u32 v22, v16, 4, v15"); e("v_add_u32 v22, s69, v22")
        e("s_lshl_b32 s68, s67, 3"); e("s_lshl_b32 s70, s66, 1"); e("s_add_u32 s68, s68, s70")
        e(f"s_mul_i32 s70, s{SH}, 147456")
        for i in range(18):
            e(f"v_add_u32 v15, {64*i}, v12"); vdivmod(16, 17, 15, 72, 1152)
            e("v_bfe_u32 v18, v16, 1, 2"); e("v_lshlrev_b32 v18, 1, v18"); e("v_xor_b32 v17, v17, v18")
            e("v_bfe_u32 v18, v16, 2, 1"); e("v_lshlrev_b32 v15, 6, v18"); e("v_bfe_u32 v18, v16, 1, 1"); e("v_lshl_add_u32 v15, v18, 4, v15")
            e("v_bfe_u32 v18, v16, 3, 1"); e("v_lshl_add_u32 v15, v18, 2, v15"); e("v_and_b32 v18, 1, v16"); e("v_add3_u32 v15, v15, v18, s68")
            e("v_mul_u32_u24 v15, 1152, v15"); e(f"v_lshl_add_u32 v{24+i}, v17, 4, v15"); e(f"v_add_u32 v{24+i}, s70, v{24+i}")
        e("v_lshrrev_b32 v15, 2, v12"); e("v_and_b32 v16, 3, v12"); e("v_lshlrev_b32 v16, 3, v16")
        e("v_and_b32 v17, 7, v15"); e(f"s_lshl_b32 s68, s{SW}, 1")
        for t in range(2):
            e(f"s_add_u32 s71, s68, {t}"); e("v_xor_b32 v18, s71, v17"); e("v_lshl_add_u32 v18, v18, 5, v16")
            e(f"v_lshl_add_u32 v{42+t}, v15, 8, v18"); e(f"v_add_u32 v{42+t}, {WB}, v{42+t}")
        e("v_bfe_u32 v17, v15, 1, 2"); e(f"v_xor_b32 v17, s{SW}, v17"); e("v_lshl_add_u32 v17, v17, 5, v16")
        e("v_lshl_add_u32 v4, v15, 7, v17"); e(f"v_add_u32 v4, {WV_IMG}, v4")
        e("v_mul_u32_u24 v5, 1152, v15"); e("v_add_u32 v5, v5, v17"); e(f"v_add_u32 v5, {WO_IMG}, v5")
    def dma(v, srd, so, lds):
        e(f"s_mov_b32 s71, {so}"); e(f"s_add_u32 m0, s72, {lds}"); e("s_nop 0"); e(f"buffer_load_dwordx4 v{v}, {sr(srd,4)}, s71 offen lds")
    def qk_dma(srd, js):
        e(f"s_lshl_b32 s72, s{SW}, 12")
        for j in js:
            for g in range(4): dma(20 + (g & 1), srd, (64 * j + 16 * (g >> 1)) * 8192, WB + j * 16384 + g * 1024)
    def v_dma(half, js=range(9)):
        e(f"s_lshl_b32 s72, s{SW}, 11")
        for j in js:
            for gp in range(2): dma(22, S_WV, (64 * j + 16 * gp) * 8192 + 128 * half, WV_IMG + j * 8192 + gp * 1024)
    def o_dma(half):
        e(f"s_mul_i32 s72, s{SW}, 18432")
        for i in range(18): dma(24 + i, S_WO, 32 * half * 1152, WO_IMG + i * 1024)
    def arrive(n): e(f"s_waitcnt vmcnt({n})"); e("s_barrier")
    def done(): e("s_waitcnt lgkmcnt(0)"); e("s_barrier")
    def qk_rd(W, g):
        for t in range(2):
            e(f"v_add_u32 v11, {g*49152}, v{42+t}")
            for j in range(3):
                for m in range(4): e(f"ds_read_b64_tr_b16 {R(W(3*g+j,t)+2*m,2)}, v11 offset:{j*16384+m*4096}")
        done()
    def v_rd(dst):
        for j in range(9):
            for m in range(4): e(f"ds_read_b64_tr_b16 {R(dst(j)+2*m,2)}, v{4 if j<8 else 3} offset:{(j%8)*8192+m*2048}")
        done(); ts()
    def o_rd(dst):
        for j in range(9):
            for m in range(4): e(f"ds_read_b64_tr_b16 {R(dst(j)+2*m,2)}, v5 offset:{m*18432+j*128}")
        done(); ts()
    qk_dma(S_WQ, range(9)); rest(); e("v_add_u32 v3, 65536, v4")
    for g in range(3): arrive(24); qk_rd(WQ, g); qk_dma(S_WK, range(3 * g, 3 * g + 3))
    ts(); arrive(24); qk_rd(WK, 0); v_dma(0, range(6)); arrive(24); qk_rd(WK, 1); v_dma(0, range(6, 9)); arrive(18); qk_rd(WK, 2); o_dma(0); ts()
    arrive(18); v_rd(WVA); v_dma(1); arrive(18); o_rd(WO0); o_dma(1)
    e(f"s_mul_i32 s68, s{SW}, 18432"); e(f"s_add_u32 s68, s68, {WV_IMG}"); e("v_lshlrev_b32 v0, 4, v12"); e("v_add_u32 v6, s68, v0")
    e("v_add_u32 v7, 73728, v6")
    for img in range(2):
        arrive(18 - 18 * img); (v_rd, o_rd)[img](lambda j: 8 + 8 * j)
        for j in range(18): e(f"ds_write_b128 v{6+img}, {vr(8+4*j,4)} offset:{1024*j}")
        e("s_waitcnt lgkmcnt(0)")
    e("v_mov_b32 v4, v6"); e("v_lshrrev_b32 v12, 4, v0"); e("v_lshrrev_b32 v13, 4, v12"); e("v_and_b32 v14, 15, v12")
    e("v_mov_b32 v1, 0x44444444"); e("v_mov_b32 v15, 0xeeeeeeee"); e("v_cmp_le_u32 vcc, 8, v14"); e("s_nop 1"); e("v_cndmask_b32 v1, v1, v15, vcc")
    e("v_and_b32 v20, 1, v13"); e("v_lshlrev_b32 v15, 2, v20"); e("v_and_b32 v16, 7, v14"); e("v_sub_u32 v15, v16, v15")
    for r in range(2):
        e(f"v_mov_b32 v{2+r}, 0")
        for hh, val in ((0, 0x3f80), (1, 0x3f800000)):
            e(f"v_mov_b32 v17, {val:#x}"); e(f"v_cmp_eq_u32 vcc, {2*r+hh}, v15"); e("s_nop 1"); e(f"v_cndmask_b32 v{2+r}, v{2+r}, v17, vcc")
    e("v_lshlrev_b32 v17, 4, v16"); e("v_lshl_add_u32 v17, v13, 7, v17")
    e(f"s_lshl_b32 s68, s{SW}, 9"); e("v_add_u32 v7, s68, v17")
    e("v_lshrrev_b32 v18, 3, v14"); e("v_lshl_add_u32 v8, v18, 9, v17")
    e("v_lshl_add_u32 v5, v18, 11, v17"); e("v_lshl_add_u32 v6, v18, 3, v17")
    e("v_lshrrev_b32 v19, 1, v13"); e("v_lshl_add_u32 v19, v19, 3, v20"); e(f"s_lshl_b32 s68, s{SW}, 1"); e("v_add_u32 v19, s68, v19")
    e("v_lshlrev_b32 v9, 12, v19"); e("v_lshl_add_u32 v9, v16, 4, v9"); e("v_lshl_add_u32 v9, v18, 3, v9"); e(f"s_lshl_b32 s68, s{SH}, 7"); e("v_add_u32 v9, s68, v9")
    e(f"s_lshl_b32 s73, s{SW}, 5"); e(f"s_add_u32 s73, s73, s{SH}")
    e("v_lshrrev_b32 v19, 1, v13"); e("v_lshlrev_b32 v10, 2, v19"); e("v_lshl_add_u32 v10, v16, 4, v10"); e("v_lshl_add_u32 v10, v20, 3, v10")
    e("s_lshl_b32 s68, s73, 7"); e("v_add_u32 v10, s68, v10"); e("s_lshl_b32 s74, s73, 12"); swap67(39, 0)

def wait_flag(stb):
    a, o = uid("fl"), uid("flo")
    e(f"s_lshl_b32 s71, s{stb}, 5"); e(f"s_add_u32 s71, s71, s{SH}"); e("s_lshl_b32 s71, s71, 7"); e("s_bitset1_b32 s71, 16"); e("v_mov_b32 v28, 0")
    e(f"s_buffer_load_dword s72, {sr(S_FLG,4)}, s71"); e("s_waitcnt lgkmcnt(0)"); e("s_cmp_lg_u32 s72, 0"); e(f"s_cbranch_scc1 {o}")
    lab(a); e(f"buffer_load_dword v29, v28, {sr(S_FLG,4)}, s71 offen sc1"); e("s_waitcnt vmcnt(0)")
    e("v_cmp_ne_u32 vcc, 0, v29"); e(f"s_cbranch_vccnz {o}"); poll_tmo(a, o); lab(o)

def chain():
    chain_prologue()
    e(f"s_mov_b32 s{TMO}, 400000"); e(f"s_mov_b32 s{STEP}, 0")
    e("s_mov_b32 s75, 0"); e("s_mov_b32 s76, 9216"); e("s_mov_b32 s77, 18432")
    e("s_mov_b32 s78, 0")
    e(f"s_lshl_b32 s79, s{SH}, 13")
    e(f"s_mov_b32 s80, {f2u(128**-0.5*LOG2E)}"); e("s_mov_b32 s82, 0x00ff00ff"); e("s_mov_b32 s83, 0x00ff00ff")
    e(f"s_lshl_b32 s81, s{SH}, 7"); e("s_add_u32 s81, s81, 28672")
    e("s_mov_b32 s86, 0"); e(f"s_cmp_lg_u32 s{SW}, 3"); e("s_cbranch_scc1 nofl0"); wait_flag(86); lab("nofl0"); e("s_barrier")
    KX, VX, AL, ACC, WL = 12, 20, 28, 40, 64
    z2 = lambda r: e(f"v_mov_b64 {vr(r,2)}, 0")
    e(f"s_mul_i32 s84, s{SW}, 3072"); e(f"s_mov_b32 m0, {LDS_A}"); e(f"s_mov_b32 s{S_KF+2}, {2*16777216}"); e(f"s_mov_b32 s47, {2*16777216-4096}")
    e(f"s_lshr_b32 s85, s{SW}, 1"); e("s_lshl_b32 s85, s85, 24"); e(f"s_and_b32 s46, s{SW}, 1"); e("s_lshl_b32 s46, s46, 12"); e("s_add_u32 s85, s85, s46"); e(f"s_add_u32 s85, s85, {32*8192}")
    e(f"s_mov_b32 s46, {2*72*4096}")
    e("s_mul_i32 s30, s73, 2304")
    assert WS['kf'][0] + 16777216 == WS['vf'][0]
    if PROF:
        e("s_memtime s[40:41]")
        for i in range(12 * ('t' not in X)): e(f"s_mov_b32 s{90+i}, 0")
    lab("step"); stamp()
    e(f"s_add_u32 s87, s75, s84"); e("v_add_u32 v11, s84, v0")
    def mp_ld(b):
        for i in range(3): e(f"buffer_load_dwordx4 {vr(b[i],4)}, v39, {sr(S_MH,4)}, s87 offen offset:{1024*i} sc1")
    def mp_ck(b):
        e("s_waitcnt vmcnt(3)")
        p, q, r = b
        e(f"ds_write_b128 v11, {vr(p,4)}"); e(f"v_max3_u32 v36, v{p}, v{p+1}, v{p+2}"); e(f"v_max3_u32 v37, v{p+3}, v{q}, v{q+1}")
        e(f"ds_write_b128 v11, {vr(q,4)} offset:1024"); e(f"v_max3_u32 v38, v{q+2}, v{q+3}, v{r}"); e(f"v_max3_u32 v36, v36, v{r+1}, v{r+2}")
        e(f"ds_write_b128 v11, {vr(r,4)} offset:2048"); e(f"v_max3_u32 v37, v37, v38, v{r+3}")
        e("v_max_u32 v36, v36, v37"); e("v_cmp_eq_u32 vcc, -1, v36"); e("s_cbranch_vccz mpo")
    e(f"s_cmp_lg_u32 s{SW}, 3"); e("s_cbranch_scc1 mp0")
    for r in range(ACC, ACC + 24, 2): e(f"v_mov_b64 {vr(r,2)}, 0")
    e("s_branch mp3"); lab("mp0")
    mp_ld((12,16,20)); e("s_waitcnt vmcnt(4)")
    for r in range(ACC, ACC + 24, 2): e(f"v_mov_b64 {vr(r,2)}, 0")
    lab("mp"); mp_ld((24,72,76)); mp_ck((12,16,20)); e("s_waitcnt lgkmcnt(0)"); mp_ld((12,16,20)); mp_ck((24,72,76)); e("s_waitcnt lgkmcnt(0)"); poll_tmo("mp", "mpo"); lab("mpo")
    lab("mp3"); stamp()
    e(f"s_lshl_b32 s87, s{SWL}, 1"); e("s_add_u32 s87, s87, s79"); e(f"s_add_u32 s88, s79, s{SWL}"); e("s_add_u32 s89, s88, 4096")
    e("s_waitcnt lgkmcnt(0)"); e("s_barrier")
    d = DS(); stamp()
    def prog(val, r=11):
        e(f"v_mov_b32 v{r}, {val}"); e("s_mov_b64 exec, 1"); e(f"buffer_store_dword v{r}, v0, {sr(S_FLG,4)}, s81 offen sc1"); e("s_mov_b64 exec, -1")
    def rdA(j): d.op(f"ds_read_b128 {vr(AL+4*(j%3),4)}, v0 offset:{MI+j*1024}", ('a', j))
    def rdW(dst, adr, i, tag):
        for m in range(2): d.op(f"ds_read_b128 {vr(dst+4*m,4)}, v{adr} offset:{i*2048+m*1024}", tag)
    rdV = lambda j: rdW(WL + 8 * (j % 2), 4, j, ('wv', j))
    for j in range(3): rdA(j)
    rdV(0)
    NE = int(os.environ.get('NE', 2))
    xl = [f"buffer_load_dwordx4 {vr(KX+4*i,4)}, v0, {sr(S_KF,4)}, s87 offen offset:{1024*i}" for i in range(2)] + [f"buffer_load_dwordx4 {vr(VX+4*i,4)}, v0, {sr(S_VF,4)}, s{88+i} offen" for i in range(2)]
    for i in range(NE): e(xl.pop(0))
    e("s_add_u32 s71, s79, s85"); e("s_min_u32 s71, s71, s47"); e("s_add_u32 s72, s46, s74"); e("s_cmp_ge_u32 s73, 72"); e("s_cselect_b64 vcc, -1, 0")
    def vA(j): smf(56, AL + 4 * (j % 3), WVA(j))
    def vB(j): d.need(('wv', j)); smf(60, AL + 4 * (j % 3), WL + 8 * (j % 2))
    for j in range(9):
        d.need(('a', j))
        def red(*ins):
            l = uid("nr"); e(f"s_cbranch_vccnz {l}")
            for x in ins: e(x)
            lab(l)
        ra = lambda i: f"buffer_store_dwordx4 v[24:27], v0, {sr(S_P1,4)}, s72 offen offset:{1024*i}"
        V = os.environ.get("V", "1")
        for t in range(2): smf(ACC + 4 * t, AL + 4 * (j % 3), WQ(j, t))
        if j == 1: e(xl.pop(0)); e(f"s_cmp_lg_u32 s{SW}, 3"); e("s_cbranch_scc1 ra2"); prog(f"s{STEP}"); lab("ra2")
        if j in (2, 3): red(ra(2 * j - 4), ra(2 * j - 3)) if V == "0" else red(ra(2 * j - 4))
        if j == 4: e(xl.pop(0))
        for t in range(2): smf(ACC + 8 + 4 * t, AL + 4 * (j % 3), WK(j, t))
        if j == 0: e("s_waitcnt vmcnt(2)"); rdV(1); e("v_mov_b64 v[24:25], -1"); e("v_mov_b64 v[26:27], -1")
        if j == 1: red(f"buffer_store_dword v24, v10, {sr(S_MH,4)}, s77 offen")
        if j == 2: e("v_and_b32 v11, 0x1f0, v0"); e("v_lshlrev_b32 v11, 3, v11")
        if j == 4: e(f"buffer_load_dword v11, {sr(S_KF,4)}, s71 offen lds")
        if j < 7:
            vA(j)
            if j in (2, 3) and V != "0": red(ra(2 * j - 3))
            vB(j); rdV(j + 2)
            if j + 3 < 9: rdA(j + 3)
    stamp()
    tr = lambda dd, a: e(f"v_mfma_f32_16x16x16_bf16 {vr(dd,4)}, {vr(a,2)}, v[2:3], 0")
    vA(7); vB(7); e("v_add_u32 v11, 73728, v4"); e("s_nop 3")
    WLS = (72, 64, 20)
    rdO = lambda i: rdW(WLS[i % 3], 11, (i + 8) % 9, ('wo', i))
    cvt(28, 40, 4); rdO(0); tr(40, 28); tr(44, 30)
    cvt(28, 48, 4); e("s_nop 1"); tr(48, 28); tr(52, 30)
    vA(8)
    cvt(28, 40, 4); e("s_nop 2"); cvt(40, 48, 4); e("s_waitcnt vmcnt(3)")
    for n, a in ((1, KX), (2, KX + 4), (0, 40)): e(f"v_mfma_f32_16x16x32_bf16 {vr(44+4*n,4)}, {vr(a,4)}, v[28:31], 0")
    vB(8); e(f"buffer_store_dwordx4 v[40:43], v0, {sr(S_KVM,4)}, s87 offen {KA}"); rdO(1); e("s_nop 2")
    for n in (1, 2, 0): d.op(f"ds_write_b128 v7, {vr(44+4*n,4)} offset:{SREG+2048*n}")
    stamp()
    e("v_mov_b32 v32, 0x3f803f80"); e("v_mov_b32 v33, 0x3f803f80"); e("v_mov_b64 v[34:35], v[32:33]"); e("v_mov_b32 v36, 0x3f003f00"); e("v_mov_b32 v37, 0x3f003f00")
    cvt(40, 56, 4)
    d.drain(); e("s_barrier"); stamp()
    SX = (44, 48, 52, 56); SM = (12, 14, 16, 18)
    for w in range(4):
        d.op(f"ds_read_b128 {vr(SX[w],4)}, v5 offset:{SREG+2048+512*w}"); d.op(f"ds_read_b64 {vr(SM[w],2)}, v6 offset:{SREG+512*w}", ('s', w))
    e(f"buffer_store_dwordx4 v[40:43], v0, {sr(S_KVM,4)}, s87 offen offset:1024 {KA}")
    e(f"s_cmp_eq_u32 s{STEP}, 63"); e("s_cbranch_scc1 chain_end")
    z2(60); z2(62)
    pk = lambda op, dd, a, b: e(f"v_pk_{op}_f32 {vr(dd,2)}, {vr(a,2)}, {vr(b,2)}")
    d.need(('s', 1)); pk("add", 44, 44, 48); pk("add", 46, 46, 50); pk("add", 12, 12, 14)
    d.need(('s', 3)); pk("add", 52, 52, 56); pk("add", 54, 54, 58); pk("add", 16, 16, 18)
    pk("add", 44, 44, 52); pk("add", 46, 46, 54); pk("add", 48, 12, 16)
    e("v_max3_f32 v38, v44, v45, v46"); e("v_max3_f32 v39, v47, v48, v49"); e("v_max_f32 v38, v38, v39"); z2(52); z2(54)
    e("v_max_f32_dpp v38, v38, v38 row_ror:8 row_mask:0xf bank_mask:0xf"); e("v_mov_b32 v39, v38"); z2(56); z2(58)
    e("v_permlane32_swap_b32 v38, v39"); e("v_max_f32 v38, v38, v39"); e("v_mov_b32 v39, v38"); e("s_nop 1")
    e("v_permlane16_swap_b32 v38, v39"); e("v_max_f32 v38, v38, v39"); e("v_mul_f32 v38, s80, v38")
    for r in range(44, 50): e(f"v_fma_f32 v{r}, v{r}, s80, -v38")
    for r in range(44, 50): e(f"v_exp_f32 v{r}, v{r}")
    cvt(12, 44, 2); e("v_cvt_pk_bf16_f32 v16, v48, v49"); e("s_waitcnt vmcnt(3)")
    for dd, a in ((14, 12), (15, 13), (17, 16)): e(f"v_mov_b32_dpp v{dd}, v{a} row_ror:8 row_mask:0xf bank_mask:0xf")
    e("s_nop 0")
    for dd, a in ((28, 32), (44, VX), (48, VX + 4)): e(f"v_mfma_f32_16x16x32_bf16 {vr(dd,4)}, {vr(a,4)}, v[12:15], 0")
    for dd, a in ((28, 36), (44, 40), (48, 42)): e(f"v_mfma_f32_16x16x16_bf16 {vr(dd,4)}, {vr(a,2)}, v[16:17], {vr(dd,4)}")
    rdO(2); stamp()
    OA = [52, 56, 60, 12, 16, 36, 40, 44, 48]
    for r in (12, 14, 16, 18): z2(r)
    e("v_rcp_f32 v28, v28"); z2(36); e("v_mov_b32 v29, v28")
    for r in range(44, 52, 2): pk("mul", r, r, 28)
    cvt(32, 44, 4)
    e("s_mov_b64 exec, s[82:83]"); d.op("ds_write_b128 v7, v[32:35]"); e("s_mov_b64 exec, -1")
    for r in range(38, 52, 2): z2(r)
    d.drain(); e("s_barrier")
    for k in range(2): d.op(f"ds_read_b128 {vr(AL+4*k,4)}, v8 offset:{1024*k}", ('o', k))
    ORD = [8, 0, 1, 2, 3, 4, 5, 6, 7]
    def fold(p):
        a = OA[p]
        if p == 0: return [f"v_permlane32_swap_b32 v{a}, v{a+2}", f"v_permlane32_swap_b32 v{a+1}, v{a+3}", f"v_add_f32 v{a}, v{a}, v{a+2}", f"v_add_f32 v{a+1}, v{a+1}, v{a+3}",
                           f"v_bfe_u32 v{a+2}, v9, 15, 1", f"v_cvt_pk_bf16_f32 v{a}, v{a}, v{a+1}", f"v_mad_i32_i24 v{a+2}, v{a+2}, s71, v9", f"buffer_store_dword v{a}, v{a+2}, {sr(S_P1,4)}, s70 offen"]
        b = OA[p + 1]
        ins = [f"v_permlane32_swap_b32 v{a+q}, v{b+q}" for q in range(4)]
        ins += [f"v_pk_add_f32 {vr(a+q,2)}, {vr(a+q,2)}, {vr(b+q,2)}" for q in (0, 2)]
        ins += [f"v_cvt_pk_bf16_f32 v{a}, v{a}, v{a+1}", f"v_cvt_pk_bf16_f32 v{a+1}, v{a+2}, v{a+3}"]
        return ins + [f"buffer_store_dwordx2 {vr(a,2)}, v9, {sr(S_P1,4)}, s{66+p//2} offen"]
    for i in range(5): e(f"s_add_u32 s{66+i}, s78, {i*65536}")
    e("s_mov_b32 s71, -32764")
    d.need(('o', 0)); stamp()
    for i in range(3): smf(OA[i], AL, WO0(ORD[i]))
    d.need(('o', 1))
    pend = []
    def fill(n):
        for _ in range(n):
            if pend: e(pend.pop(0))
    F = int(os.environ.get('F', 4))
    for i in range(9):
        d.need(('wo', i)); smf(OA[i], AL + 4, WLS[i % 3])
        if i + 3 < 9: rdO(i + 3); smf(OA[i + 3], AL, WO0(ORD[i + 3]))
        if i == 2: pend += fold(0)
        if i in (4, 6, 8): pend += fold(i - 3)
        fill(F)
    fill(99); pend += fold(7); fill(99)
    stamp()
    e("s_cmp_lt_u32 s73, 72"); e("s_cbranch_scc1 red_go"); swap67(39, 0); e(f"s_cmp_lg_u32 s{SW}, 3"); e("s_cbranch_scc1 red_done")
    e(f"s_add_u32 s86, s{STEP}, 2"); e("s_and_b32 s87, s86, 67"); e("s_cbranch_scc1 nofl"); e("s_lshr_b32 s86, s86, 2"); wait_flag(86); lab("nofl")
    e("s_waitcnt vmcnt(0)"); e("s_branch red_done"); lab("red_go")
    e("s_add_u32 s87, s78, s74")
    def rp_ld(b):
        for i in range(4): e(f"buffer_load_dwordx4 {vr(b+4*i,4)}, v0, {sr(S_P1,4)}, s87 offen offset:{1024*i} sc1")
    def rp_ck(b):
        for i in range(4):
            e(f"s_waitcnt vmcnt({7-i})"); e(f"v_mfma_f32_16x16x32_bf16 v[72:75], {vr(b+4*i,4)}, v[64:67], {'v[72:75]' if i else 0}")
        e("s_nop 7"); e("v_permlane32_swap_b32 v72, v74"); e("v_permlane32_swap_b32 v73, v75"); e("v_add_f32 v72, v72, v74"); e("v_add_f32 v73, v73, v75")
        e("v_cmp_u_f32 vcc, v72, v73"); e("v_cvt_pk_bf16_f32 v76, v72, v73"); e("s_cbranch_vccz rpo")
    if 'e' in X: rp_ld(12)
    e("v_and_b32 v76, 0x30, v0"); e("v_mov_b32 v64, 0x3f80"); e("v_mov_b32 v65, 0"); e("v_lshlrev_b64 v[64:65], v76, v[64:65]"); e("v_bfe_i32 v76, v0, 6, 1")
    e("v_and_b32 v66, v64, v76"); e("v_and_b32 v67, v65, v76"); e("v_xor_b32 v64, v64, v66"); e("v_xor_b32 v65, v65, v67"); swap67(39, 0)
    if 'b' in X: e("s_waitcnt vmcnt(0)")
    if 'c' in X: stamp()
    if 'e' not in X: rp_ld(12)
    lab("rp"); rp_ld(44); rp_ck(12); rp_ld(12); rp_ck(44); poll_tmo("rp", "rpo"); lab("rpo"); stamp()
    e("s_mov_b64 exec, s[82:83]"); e(f"buffer_store_dword v76, v10, {sr(S_MH,4)}, s76 offen"); e("s_mov_b64 exec, -1")
    lab("red_done"); e("s_barrier" if 'g' not in X else "s_nop 0"); lab("red_done2"); stamp()
    if PROF:
        e("s_waitcnt lgkmcnt(0)")
        for i in range((_st[0]-1) * ('t' not in X)): e(f"s_sub_u32 s87, s{10+2*i}, s{8+2*i}"); e(f"s_add_u32 s{90+i}, s{90+i}, s87")
    e(f"s_add_u32 s{STEP}, s{STEP}, 1"); e("s_mov_b32 s46, s78"); e(f"s_add_u32 s78, s78, {72*4096}"); e(f"s_cmp_eq_u32 s78, {int(os.environ.get('RG', 2))*72*4096}"); e("s_cselect_b32 s78, 0, s78"); e(f"s_add_u32 s79, s79, {32*8192}")
    e("s_mov_b32 s87, s75"); e("s_mov_b32 s75, s76"); e("s_mov_b32 s76, s77"); e("s_mov_b32 s77, s87")
    e("s_branch step")
    lab("chain_end"); e("s_waitcnt vmcnt(0)"); e("s_barrier"); prog(64)
    if PROF:
        e("s_memtime s[42:43]"); srd_arg(8, 'dbg'); e("s_waitcnt lgkmcnt(0)")
        e("s_sub_u32 s100, s40, s44"); e("s_sub_u32 s101, s42, s40")
        e(f"s_cmp_lg_u32 s{SH}, 0"); e("s_cbranch_scc1 prof_end"); e(f"s_mul_i32 s87, s{SW}, 48"); e("s_add_u32 s87, s87, 64"); e("v_mov_b32 v2, 0")
        for i in range(12): e(f"v_mov_b32 v3, s{90+i}"); e(f"buffer_store_dword v3, v2, s[8:11], s87 offen offset:{4*i}")
        lab("prof_end")
    e("s_endpgm")

def k_main():
    kstart("main_kernel"); guard(256)
    if PROF: e("s_memtime s[44:45]")
    e(f"s_load_dwordx2 s[4:5], s[0:1], {ARG['ws']}")
    for s, n in ((S_WQ, 'wq'), (S_WK, 'wk'), (S_WV, 'wv'), (S_WO, 'wo'), (72, 'dbg')): srd_arg(s, n)
    wave_id(SW, SWL); e("s_waitcnt lgkmcnt(0)")
    for s, n in ((S_XN, 'xn'), (S_QF, 'qf'), (S_KF, 'kf'), (S_VF, 'vf'), (S_FLG, 'flg'), (S_P1, 'p1'), (S_MH, 'mh'), (S_KVM, 'kvm')): srd_ws(s, n, 4)
    roles()
    e(f"s_cmp_ge_u32 s{SH}, 224"); e("s_cbranch_scc1 is_chain")
    worker()
    lab("is_chain"); e(f"s_and_b32 s{SH}, s{SH}, 31")
    chain()
    return kdesc("main_kernel", 512, 256)
```

```python
from common import *
LOG2E = 1.4426950408889634
import struct, os
def f2u(x): return "%#x" % struct.unpack("<I", struct.pack("<f", x))[0]
def guard(n):
    ex = uid("go"); e(f"s_cmp_lt_u32 s2, {n}"); e(f"s_cbranch_scc1 {ex}"); e("s_endpgm"); lab(ex)
def wave_id(sw, swl):
    e("v_lshrrev_b32 v1, 6, v0"); e("s_nop 0"); e(f"v_readfirstlane_b32 s{sw}, v1"); e(f"s_lshl_b32 s{swl}, s{sw}, 10")
def red16(op, v, t):
    for n in (8, 4, 2, 1):
        e("s_nop 1"); e(f"{op}_dpp v{v}, v{v}, v{v} row_ror:{n} row_mask:0xf bank_mask:0xf")
def xswap(kind, op, v, t):
    e(f"v_mov_b32 v{t}, v{v}"); e("s_nop 1"); e(f"v_permlane{kind}_swap_b32 v{v}, v{t}"); e("s_nop 0"); e(f"{op} v{v}, v{v}, v{t}")

def swap67(d, x):
    e(f"v_lshrrev_b32 v{d}, 1, v{x}"); e(f"v_xor_b32 v{d}, v{d}, v{x}"); e(f"v_bfe_i32 v{d}, v{d}, 6, 1"); e(f"v_and_b32 v{d}, 0xc0, v{d}"); e(f"v_xor_b32 v{d}, v{d}, v{x}")
def ln_body(ssrc, sdst, double, touch=None):
    e("v_lshrrev_b32 v1, 5, v0"); e("s_lshl_b32 s3, s2, 3"); e("v_add_u32 v1, s3, v1")
    e("v_mul_u32_u24 v1, 1152, v1"); e("v_and_b32 v2, 31, v0"); e("v_lshl_add_u32 v1, v2, 2, v1")
    for i in range(9): e(f"buffer_load_dword v{10+i}, v1, {sr(ssrc,4)}, 0 offen offset:{128*i}")
    e(f"s_waitcnt vmcnt({touch()})")
    for i in range(9):
        e(f"v_lshlrev_b32 v{20+2*i}, 16, v{10+i}"); e(f"v_and_b32 v{21+2*i}, 0xffff0000, v{10+i}")
    e("v_add_f32 v3, v20, v21")
    for i in range(2, 18): e(f"v_add_f32 v3, v3, v{20+i}")
    red16("v_add_f32", 3, 4); xswap(16, "v_add_f32", 3, 4)
    e(f"v_mul_f32 v3, {f2u(1/576)}, v3")
    for i in range(18): e(f"v_sub_f32 v{20+i}, v{20+i}, v3")
    e("v_mul_f32 v3, v20, v20")
    for i in range(1, 18): e(f"v_fmac_f32 v3, v{20+i}, v{20+i}")
    red16("v_add_f32", 3, 4); xswap(16, "v_add_f32", 3, 4)
    e(f"v_mul_f32 v3, {f2u(1/576)}, v3"); e(f"v_add_f32 v4, {f2u(1e-5)}, v3"); e("v_rsq_f32 v4, v4"); e("s_nop 0")
    if double:
        e("v_mul_f32 v3, v3, v4"); e("v_mul_f32 v3, v3, v4"); e(f"v_add_f32 v3, {f2u(1e-5)}, v3")
        e("v_rsq_f32 v3, v3"); e("s_nop 0"); e("v_mul_f32 v4, v4, v3")
    for i in range(18): e(f"v_mul_f32 v{20+i}, v{20+i}, v4")
    for i in range(9):
        e(f"v_cvt_pk_bf16_f32 v{10+i}, v{20+2*i}, v{21+2*i}")
        e(f"buffer_store_dword v{10+i}, v1, {sr(sdst,4)}, 0 offen offset:{128*i}")

def k_init():
    kstart("init_kernel"); guard(256)
    e(f"s_load_dwordx2 s[4:5], s[0:1], {ARG['ws']}"); srd_arg(8, 'x'); srd_arg(12, 'mem0'); e("s_waitcnt lgkmcnt(0)")
    srd_ws(16, 'xn', 4); srd_ws(20, 'p1', 4); srd_ws(24, 'mh', 4); srd_ws(28, 'flg', 4); srd_ws(32, 'mh', 4)
    e("s_mov_b32 s34, 9216")
    def touch():
        if 'i' not in os.environ.get('X', ''): return 0
        for i, n in enumerate(('wq', 'wk', 'wv', 'wo')): srd_arg(36 + 4 * i, n)
        e("v_mul_u32_u24 v5, 72, v40"); e("s_waitcnt lgkmcnt(0)")
        for i in range(4): e(f"buffer_load_dword v{6+i}, v5, {sr(36+4*i,4)}, 0 offen")
        return 4
    e("s_lshl_b32 s3, s2, 8"); e("v_add_u32 v40, s3, v0"); e("v_lshlrev_b32 v41, 4, v40")
    e("v_and_b32 v42, 7, v40"); e("v_mul_u32_u24 v42, 1152, v42"); e("v_lshrrev_b32 v43, 3, v40"); e("v_lshl_add_u32 v42, v43, 4, v42")
    e("buffer_load_dwordx4 v[44:47], v42, s[12:15], 0 offen")
    for i in range(4): e(f"v_mov_b32 v{48+i}, -1"); e(f"v_mov_b32 v{52+i}, 0")
    e("s_mov_b32 s6, 1048576"); e("s_mov_b32 s7, 9216")
    e("buffer_store_dwordx4 v[48:51], v41, s[20:23], 0 offen"); e("buffer_store_dwordx4 v[48:51], v41, s[20:23], s6 offen")
    e("buffer_store_dwordx4 v[48:51], v41, s[24:27], s7 offen"); e("buffer_store_dwordx4 v[52:55], v41, s[28:31], 0 offen")
    ln_body(8, 16, False, touch)
    swap67(42, 41); e("buffer_store_dwordx4 v[44:47], v42, s[32:35], 0 offen")
    e("s_endpgm")
    return kdesc("init_kernel", 56, 56)

def k_ln2():
    kstart("ln2_kernel"); guard(256)
    e(f"s_load_dwordx2 s[4:5], s[0:1], {ARG['ws']}"); e("s_waitcnt lgkmcnt(0)")
    srd_ws(8, 'h', 4); srd_ws(16, 'hn', 4)
    ln_body(8, 16, True); e("s_endpgm")
    return kdesc("ln2_kernel", 40, 40)

def attn_body(sq, sk, sv, skm, stask, mid, aux="sc1"):
    Q, K, V, KM, VM, S, O = 8, 40, 72, 104, 120, 136, 8
    e("v_and_b32 v1, 63, v0"); e("v_lshlrev_b32 v2, 4, v1"); e(f"s_lshl_b32 s40, s{stask}, 13"); e("s_add_u32 s41, s40, 4096")
    for b, s in ((K, sk), (Q, sq), (V, sv)):
        for i in range(8): e(f"buffer_load_dwordx4 {vr(b+4*i,4)}, v2, {sr(s,4)}, s{40+i//4} offen offset:{(i%4)*1024} {aux}")
    e("v_and_b32 v3, 15, v1"); e("v_lshrrev_b32 v4, 4, v1"); e("v_lshlrev_b32 v5, 2, v4"); e("v_sub_u32 v5, v3, v5")
    tiles = [(0, 'm'), (0, 0), (1, 'm'), (1, 0), (1, 1)]
    def smm(mem):
        for ec in range(4):
            for n, (tt, kt) in enumerate(tiles):
                if (kt == 'm') != mem: continue
                a = KM + 4 * ec if kt == 'm' else K + 4 * (2 * ec + kt)
                e(f"v_mfma_f32_16x16x32_bf16 {vr(S+4*n,4)}, {vr(a,4)}, {vr(Q+4*(2*ec+tt),4)}, {vr(S+4*n,4) if ec else 0}")
    e("s_waitcnt vmcnt(8)"); smm(False); mid()
    for b, o in ((KM, 0), (VM, 1024)):
        for i in range(4): e(f"buffer_load_dwordx4 {vr(b+4*i,4)}, v2, {sr(skm,4)}, s{40+i//2} offen offset:{(i%2)*2048+o} {aux}")
    e("s_waitcnt vmcnt(4)"); smm(True)
    e("s_nop 7"); e(f"v_mov_b32 v7, {f2u(-1e30)}")
    for i in range(4):
        e(f"v_cmp_le_i32 vcc, {i}, v5"); e("s_nop 1")
        for n in (1, 4): e(f"v_cndmask_b32 v{S+4*n+i}, v7, v{S+4*n+i}, vcc")
    e(f"s_mov_b32 s44, {f2u(128**-0.5*LOG2E)}")
    P = 160
    for tt, rs in ((0, list(range(S, S+8))), (1, list(range(S+8, S+20)))):
        m, t, l = 156, 157, 158
        e(f"v_max_f32 v{m}, v{rs[0]}, v{rs[1]}")
        for i in range(2, len(rs), 2): e(f"v_max3_f32 v{m}, v{m}, v{rs[i]}, v{rs[i+1]}")
        xswap(32, "v_max_f32", m, t); xswap(16, "v_max_f32", m, t)
        e(f"v_mul_f32 v{m}, s44, v{m}")
        for r in rs: e(f"v_fma_f32 v{r}, v{r}, s44, -v{m}")
        for r in rs: e(f"v_exp_f32 v{r}, v{r}")
        e(f"v_add_f32 v{l}, v{rs[0]}, v{rs[1]}"); e(f"v_add_f32 v{l}, v{l}, v{rs[2]}"); e(f"v_add_f32 v{l}, v{l}, v{rs[3]}")
        e(f"v_mul_f32 v{l}, 0.5, v{l}")
        for r in rs[4:]: e(f"v_add_f32 v{l}, v{l}, v{r}")
        xswap(32, "v_add_f32", l, t); xswap(16, "v_add_f32", l, t)
        e(f"v_rcp_f32 v{l}, v{l}"); e("s_nop 0")
        for r in rs: e(f"v_mul_f32 v{r}, v{r}, v{l}")
        p = P + 8 * tt
        e(f"v_cvt_pk_bf16_f32 v{p+4}, v{rs[0]}, v{rs[1]}"); e(f"v_cvt_pk_bf16_f32 v{p+5}, v{rs[2]}, v{rs[3]}")
        for i in range(4):
            if 4 + 2 * i < len(rs): e(f"v_cvt_pk_bf16_f32 v{p+i}, v{rs[4+2*i]}, v{rs[5+2*i]}")
            else: e(f"v_mov_b32 v{p+i}, 0")
    e("s_waitcnt vmcnt(0)"); e("s_nop 1")
    for tt in range(2):
        for et in range(8):
            o = O + 4 * (8 * tt + et)
            e(f"v_mfma_f32_16x16x32_bf16 {vr(o,4)}, {vr(V+4*et,4)}, {vr(P+8*tt,4)}, 0")
        for et in range(8):
            o = O + 4 * (8 * tt + et)
            e(f"v_mfma_f32_16x16x16_bf16 {vr(o,4)}, {vr(VM+4*(et%4)+2*(et//4),2)}, {vr(P+8*tt+4,2)}, {vr(o,4)}")
    e("s_nop 7")
    for tt in range(2):
        for m in range(4):
            o = O + 4 * (8 * tt + 2 * m); d = 72 + 16 * tt + 4 * m
            for i in range(4): e(f"v_cvt_pk_bf16_f32 v{d+i}, v{o+2*i}, v{o+2*i+1}")

def mlp1_epi(ACC, T, sft, sdt, sdw, sfw, sb, su, pre=False):
    e(f"s_lshl_b32 s42, s{sft}, 3"); e(f"s_add_u32 s42, s42, s{sfw}"); e("s_lshl_b32 s42, s42, 5")
    e("v_lshlrev_b32 v4, 3, v3")
    if pre:
        for j in range(4): e(f"buffer_load_dwordx2 {vr(176+2*j,2)}, v4, {sr(sb,4)}, s42 offen offset:{32*j}")
        return
    e(f"s_lshr_b32 s43, s{sdt}, 1"); e(f"s_mul_i32 s43, s43, 72"); e("s_lshr_b32 s45, s42, 7"); e("s_add_u32 s43, s43, s45"); e("s_lshl_b32 s43, s43, 1"); e(f"s_and_b32 s45, s{sdt}, 1"); e("s_add_u32 s43, s43, s45"); e("s_mul_i32 s43, s43, 6"); e(f"s_add_u32 s43, s43, s{sdw}"); e("s_lshl_b32 s43, s43, 11")
    e("v_lshlrev_b32 v5, 7, v2"); e("v_lshl_add_u32 v5, v3, 4, v5")
    e("s_waitcnt vmcnt(0)")
    for j in range(4):
        for q in range(4):
            e(f"v_lshlrev_b32 v{T+8+4*j+q}, 16, v{176+2*j+q//2}" if q % 2 == 0 else f"v_and_b32 v{T+8+4*j+q}, 0xffff0000, v{176+2*j+q//2}")
    c0 = -2 * 0.7978845608028654 * LOG2E
    e(f"s_mov_b32 s45, {f2u(c0*0.044715)}"); e(f"v_mov_b32 v6, {f2u(c0)}")
    for i in range(3):
        for j in range(4):
            a = ACC + 4 * (i * 4 + j); t = T + 24
            for q in range(4): e(f"v_add_f32 v{a+q}, v{a+q}, v{T+8+4*j+q}")
            for q in range(4): e(f"v_mul_f32 v{t+q}, v{a+q}, v{a+q}")
            for q in range(4): e(f"v_fma_f32 v{t+q}, v{t+q}, s45, v6")
            for q in range(4): e(f"v_mul_f32 v{t+q}, v{t+q}, v{a+q}")
            for q in range(4): e(f"v_exp_f32 v{t+q}, v{t+q}")
            for q in range(4): e(f"v_add_f32 v{t+q}, 1.0, v{t+q}")
            for q in range(4): e(f"v_rcp_f32 v{t+q}, v{t+q}")
            for q in range(4): e(f"v_mul_f32 v{a+q}, v{a+q}, v{t+q}")
        for m in range(2):
            a = ACC + 4 * (i * 4 + 2 * m)
            for q in range(4): e(f"v_cvt_pk_bf16_f32 v{a+q}, v{a+2*q}, v{a+2*q+1}")
            e(f"buffer_store_dwordx4 {vr(a,4)}, v5, {sr(su,4)}, s43 offen offset:{64*m}")
        e("s_add_u32 s43, s43, 2048")

def k_mlp2():
    kstart("mlp2_kernel"); guard(192)
    P = os.environ.get("PROF")
    if P: e("s_memtime s[50:51]"); srd_arg(60, 'dbg')
    e(f"s_load_dwordx2 s[4:5], s[0:1], {ARG['ws']}"); wave_id(6, 7); e("s_lshr_b32 s46, s6, 2"); e("s_and_b32 s6, s6, 3"); e("s_lshl_b32 s7, s6, 10"); e("v_and_b32 v0, 255, v0"); e("s_waitcnt lgkmcnt(0)")
    srd_ws(8, 'u', 4); srd_ws(12, 'w2t', 4); srd_ws(16, 'pt', 4)
    e("s_and_b32 s30, s2, 7"); e("s_mul_i32 s30, s30, 24"); e("s_lshr_b32 s31, s2, 3"); e("s_add_u32 s30, s30, s31")
    sdivmod(33, 34, 30, 48, 256); sdivmod(31, 32, 34, 3, 64)
    e("s_and_b32 s35, s6, 1"); e("s_mul_i32 s35, s35, 6"); e("s_lshr_b32 s36, s6, 1"); e("s_lshl_b32 s36, s36, 2")
    X = Op('k', 192, 128, 8, 40, "s35", 6, adv=24576); Y = Op('t', 128, 256, 12, 41, "s36", 4, perm=True)
    e("s_lshl_b32 s40, s32, 2"); e("s_add_u32 s40, s40, s33"); e(f"s_mul_i32 s40, s40, {18*24576}")
    e("s_lshl_b32 s41, s31, 2"); e("s_add_u32 s41, s41, s33"); e(f"s_mul_i32 s41, s41, {18*16384}")
    vb, stage = gemm_setup([X, Y], 8, 6, 2); assert vb <= 32 and stage == 40960
    e("s_cmp_eq_u32 s46, 0"); e("s_cbranch_scc1 m2c"); gemm_loop([X, Y], None, 18, 4, stage, 128, 16, 7, 38, 39, role='p'); e("s_endpgm"); lab("m2c")
    zero(32, 96)
    mf = [(32 + 4 * (j * 6 + i), X, i, Y, j) for i in range(6) for j in range(4)]
    n0 = len(L)
    gemm_loop([X, Y], mf, 18, 4, stage, 128, 16, 7, 38, None if P else 39, role='c')
    if P:
        bs = [i for i in range(n0, len(L)) if "s_barrier" in L[i]]
        for k, r in ((9, 54), (0, 52)): L.insert(bs[k], f"    s_memtime s[{r}:{r+1}]\n    s_waitcnt lgkmcnt(0)")
        e("s_memtime s[56:57]")
    e("s_lshl_b32 s42, s30, 2"); e("s_add_u32 s42, s42, s6"); e("s_mul_i32 s42, s42, 12288"); e("v_and_b32 v2, 63, v0"); e("v_lshlrev_b32 v2, 4, v2"); e("s_nop 7")
    for f in range(12):
        for q in range(4): e(f"v_cvt_pk_bf16_f32 v{32+8*f+q}, v{32+8*f+2*q}, v{33+8*f+2*q}")
        e(f"buffer_store_dwordx4 {vr(32+8*f,4)}, v2, s[16:19], s42 offen offset:{(f%4)*1024}")
        if f % 4 == 3: e("s_add_u32 s42, s42, 4096")
    if P:
        e("s_waitcnt vmcnt(0)"); e("s_memtime s[58:59]"); e("s_waitcnt lgkmcnt(0)"); e("s_cmp_lg_u32 s2, 100"); e("s_cbranch_scc1 m2e"); e("v_mov_b32 v2, 0")
        for i in range(4): e(f"s_sub_u32 s3, s{52+2*i}, s50"); e("v_mov_b32 v3, s3"); e(f"buffer_store_dword v3, v2, s[60:63], 0 offen offset:{4*i}")
        lab("m2e")
    e("s_endpgm")
    return kdesc("mlp2_kernel", 192, 192)

def k_fin():
    kstart("fin_kernel"); guard(576)
    e(f"s_load_dwordx2 s[4:5], s[0:1], {ARG['ws']}"); srd_arg(24, 'b2'); srd_arg(20, 'out'); wave_id(6, 7); e("s_waitcnt lgkmcnt(0)")
    srd_ws(8, 'pt', 4); srd_ws(16, 'h', 4)
    e("s_lshl_b32 s29, s2, 2"); e("s_add_u32 s29, s29, s6"); e("s_lshl_b32 s42, s29, 10")
    e("v_and_b32 v1, 63, v0"); e("v_lshlrev_b32 v1, 4, v1")
    for sp in range(4): e(f"buffer_load_dwordx4 {vr(16+4*sp,4)}, v1, s[8:11], s42 offen"); e(f"s_add_u32 s42, s42, {48*4*12288}")
    sdivmod(30, 35, 29, 3, 2304); e("s_lshr_b32 s34, s30, 4"); sdivmod(31, 32, 34, 3, 64)
    e("s_lshl_b32 s31, s31, 3"); e("s_bfe_u32 s33, s30, 0x10003"); e("s_lshl_b32 s33, s33, 2"); e("s_add_u32 s31, s31, s33"); e("s_and_b32 s33, s30, 3"); e("s_add_u32 s31, s31, s33"); e("s_lshl_b32 s31, s31, 4")
    e("s_lshl_b32 s32, s32, 1"); e("s_bfe_u32 s33, s30, 0x10002"); e("s_add_u32 s32, s32, s33"); e("s_mul_i32 s32, s32, 3"); e("s_add_u32 s32, s32, s35"); e("s_lshl_b32 s43, s32, 6")
    e("v_and_b32 v2, 15, v0"); e("v_bfe_u32 v3, v0, 4, 2"); e("v_add_u32 v4, s31, v2"); e("v_mul_u32_u24 v5, 1152, v4"); e("v_lshl_add_u32 v5, v3, 3, v5"); e("v_lshlrev_b32 v4, 1, v4")
    for i in range(2): e(f"buffer_load_dwordx2 {vr(32+2*i,2)}, v5, s[16:19], s43 offen offset:{32*i}")
    e("buffer_load_ushort v6, v4, s[24:27], 0 offen"); e("s_waitcnt vmcnt(0)"); e("v_lshlrev_b32 v6, 16, v6")
    for sp in range(5):
        for q in range(8):
            e(f"v_lshlrev_b32 v{40+q}, 16, v{16+4*sp+q//2}" if q % 2 == 0 else f"v_and_b32 v{40+q}, 0xffff0000, v{16+4*sp+q//2}")
        for q in range(8): e(f"v_add_f32 v{8+q}, v{8+q if sp else 6}, v{40+q}")
    for q in range(4): e(f"v_cvt_pk_bf16_f32 v{8+q}, v{8+2*q}, v{9+2*q}")
    for i in range(2): e(f"buffer_store_dwordx2 {vr(8+2*i,2)}, v5, s[20:23], s43 offen offset:{32*i}")
    e("s_endpgm")
    return kdesc("fin_kernel", 64, 64)
```

```python
from common import *
from simple import *
import os
PROF = int(os.environ.get('PROF', 0))
_st = [0]
def stamp():
    if PROF:
        e(f's_memtime s[{8+2*_st[0]}:{9+2*_st[0]}]'); _st[0] += 1
X = os.environ.get('X', '')
KA = '' if 'k' in X else 'nt sc1' if 'n' in X else 'sc0 sc1' if 'm' in X else 'sc1'
RP = int(os.environ.get('RP', 16))
MI, SREG, WB = 0, 9216, 15360
WV_IMG, WO_IMG = WB, WB + 73728
LDS_A = WB + 147456
def wop(i):
    return 256 + 8 * i if i < 32 else 80 + 8 * (i - 32)
WQ = lambda j, t: wop(2 * j + t)
WK = lambda j, t: wop(18 + 2 * j + t)
WVA = lambda j: wop(36 + j)
WO0 = lambda i: wop(45 + i)
class DS:
    def __init__(s): s.n = 0; s.tag = {}; s.w = 0
    def op(s, ins, tag=None):
        e(ins); s.n += 1
        if tag is not None: s.tag[tag] = s.n
    def need(s, tag):
        r = s.tag[tag]
        if r > s.w:
            c = min(s.n - r, 15); e(f"s_waitcnt lgkmcnt({c})"); s.w = s.n - c
    def drain(s): e("s_waitcnt lgkmcnt(0)"); s.w = s.n
def smf(d, a, b): e(f"v_smfmac_f32_16x16x64_bf16 {vr(d,4)}, {vr(a,4)}, {R(b,8)}, v1")
def cvt(d, a, n):
    for i in range(n): e(f"v_cvt_pk_bf16_f32 v{d+i}, v{a+2*i}, v{a+2*i+1}")
SW, SWL, SH = 6, 7, 3
S_WQ, S_WK, S_WV, S_WO = 8, 12, 16, 20
S_XN, S_QF, S_KF, S_VF, S_FLG = 24, 28, 32, 36, 48
S_P1, S_MH, S_KVM = 52, 56, 60
TMO = 64; STEP = 65

def roles():
    e("s_getreg_b32 s70, hwreg(HW_REG_XCC_ID, 0, 4)"); e("s_and_b32 s70, s70, 7")
    e(f"s_cmp_lg_u32 s{SW}, 0"); e("s_cbranch_scc1 role_wait")
    e("s_lshl_b32 s71, s70, 2"); e("v_mov_b32 v2, s71"); e("v_mov_b32 v3, 1"); e("s_mov_b64 exec, 1")
    e("buffer_atomic_add v3, v2, s[72:75], 0 offen sc0"); e("s_waitcnt vmcnt(0)"); e("s_mov_b64 exec, -1")
    e("v_readfirstlane_b32 s71, v3"); e("s_lshl_b32 s77, s70, 5"); e("s_add_u32 s77, s77, s71"); e("s_cmp_ge_u32 s71, 32"); e("s_cselect_b32 s77, -1, s77")
    lab("role_pub")
    e("v_mov_b32 v2, 0"); e("v_mov_b32 v3, s77"); e("ds_write_b32 v2, v3"); e("s_waitcnt lgkmcnt(0)")
    lab("role_wait")
    e("s_barrier"); e("v_mov_b32 v2, 0"); e("ds_read_b32 v3, v2"); e("s_waitcnt lgkmcnt(0)")
    e(f"v_readfirstlane_b32 s{SH}, v3"); e("s_barrier")
    e(f"s_cmp_eq_u32 s{SH}, -1"); e("s_cbranch_scc0 role_ok"); e("s_endpgm"); lab("role_ok")

def worker():
    e("v_lshlrev_b32 v3, 7, v0"); e(f"s_mov_b32 s79, s{SH}")
    e(f"s_mul_i32 s67, s{SH}, 24576"); e("v_add_u32 v3, s67, v3")
    for i, srd in enumerate((S_WO,) if 'i' not in os.environ.get('X', '') else ()): e(f"buffer_load_dword v{200+i}, v3, {sr(srd,4)}, 0 offen")
    e(f"s_lshl_b32 s66, s{SW}, 1")
    X = Op('k', 128, 1152, S_XN, 67, 0, 8)
    Yq = Op('t', 128, 8192, S_WQ, 68, "s66", 2); Yk = Op('t', 128, 8192, S_WK, 69, "s66", 2, share=Yq); Yv = Op('t', 128, 8192, S_WV, 70, "s66", 2, share=Yq)
    ops = [X, Yq, Yk, Yv]
    vb, stage = gemm_setup(ops, 8, SW, 2); assert vb <= 30 and stage == 65536
    e("v_and_b32 v30, 63, v0"); e("v_lshlrev_b32 v30, 4, v30")
    lab("wk_task")
    HB = int(os.environ.get("HB", 3))
    e(f"s_and_b32 s71, s79, {(1<<HB)-1}"); e(f"s_bfe_u32 s72, s79, {(5-HB)<<16|5:#x}"); e(f"s_lshl_b32 s72, s72, {HB}"); e("s_add_u32 s71, s71, s72")
    e(f"s_bfe_u32 s72, s79, {(5-HB)<<16|HB:#x}"); e(f"s_lshr_b32 s67, s79, {10-HB}"); e(f"s_lshl_b32 s67, s67, {5-HB}"); e("s_add_u32 s72, s72, s67")
    e(f"s_mul_i32 s67, s72, {128*1152}"); e("s_lshl_b32 s68, s71, 8"); e("s_mov_b32 s69, s68"); e("s_mov_b32 s70, s68")
    zero(256, 192)
    acc = lambda m, t, T: 256 + 4 * ((m * 2 + t) * 8 + T)
    mf = []
    for T in range(8):
        for m, Y in enumerate((Yq, Yk, Yv)):
            for t in range(2): mf.append((acc(m, t, T), Y, t, X, T) if m < 2 else (acc(m, t, T), X, T, Y, t))
    gemm_loop(ops, mf, 9, 2, stage, 32, 18, SWL, 73, 74)
    e(f"s_lshl_b32 s75, s72, 7"); e("s_add_u32 s75, s75, s71"); e("s_lshl_b32 s75, s75, 13"); e(f"s_lshl_b32 s76, s{SWL}, 1"); e("s_add_u32 s75, s75, s76")
    for sg in range(1, 4): e(f"s_add_u32 s{75+sg}, s75, {sg*32*8192}")
    e("s_nop 7")
    if PROF: e("s_memtime s[90:91]")
    n = 0
    e("s_lshl_b32 s84, s72, 5"); e("s_add_u32 s84, s84, s71"); e("s_lshl_b32 s84, s84, 7"); e("s_bitset1_b32 s84, 16")
    for m, srd in ((1, S_KF), (2, S_VF), (0, S_QF)):
        if m == 0: e("s_waitcnt vmcnt(0)"); e("s_barrier"); e(f"s_cmp_lg_u32 s{SW}, 0"); e("s_cbranch_scc1 wk_n1"); flag_store(84, 1); lab("wk_n1")
        for sg in range(4):
            for f in range(2):
                a0, a1 = (acc(m, 0, 2 * sg + f), acc(m, 1, 2 * sg + f)) if m < 2 else (acc(m, f, 2 * sg), acc(m, f, 2 * sg + 1))
                t = 32 + 8 * (n % 16); n += 1
                for i in range(4): e(f"v_accvgpr_read_b32 v{t+i}, a{a0-256+i}"); e(f"v_accvgpr_read_b32 v{t+4+i}, a{a1-256+i}")
                cvt(t, t, 4)
                e(f"buffer_store_dwordx4 {vr(t,4)}, v30, {sr(srd,4)}, s{75+sg} offen offset:{f*1024} sc1")
    e("s_waitcnt vmcnt(0)"); e("s_barrier")
    e("s_lshl_b32 s75, s72, 5"); e("s_add_u32 s75, s75, s71"); e("s_lshl_b32 s75, s75, 7"); e("s_bitset1_b32 s75, 16")
    e(f"s_cmp_lg_u32 s{SW}, 0"); e("s_cbranch_scc1 wk_nof")
    e("v_mov_b32 v2, 0"); e("v_mov_b32 v3, 2"); e("s_mov_b64 exec, 1")
    e(f"buffer_store_dword v3, v2, {sr(S_FLG,4)}, s75 offen sc1"); e("s_mov_b64 exec, -1")
    if PROF:
        e("s_memtime s[92:93]"); srd_arg(80, 'dbg'); e("s_waitcnt lgkmcnt(0)"); e(f"s_cmp_lg_u32 s75, 65536"); e("s_cbranch_scc1 wk_nof")
        e(f"s_sub_u32 s90, s90, s44"); e(f"s_sub_u32 s92, s92, s44"); e("s_lshr_b32 s90, s90, 8"); e("s_lshr_b32 s92, s92, 8"); e("s_mul_i32 s90, s90, 1000"); e("s_add_u32 s90, s90, s92")
        e(f"v_mov_b32 v3, s90"); e(f"buffer_store_dword v3, v2, s[80:83], 0 offen offset:60")
    lab("wk_nof")
    e("s_add_u32 s79, s79, 224"); e("s_cmp_lt_u32 s79, 512"); e("s_cbranch_scc1 wk_task")
    phase2()

def pollv(off, cmp, nl=None):
    a, o = uid("pv"), uid("pvo")
    if nl: e(f"s_cmp_lg_u32 s{SW}, 0"); e(f"s_cbranch_scc1 {o}")
    lab(a); e(f"buffer_load_dword v195, v194, {sr(S_FLG,4)}, s{off} offen sc1"); e("s_waitcnt vmcnt(0)")
    e(cmp); e(f"s_cbranch_vccz {o}"); poll_tmo(a, o); lab(o)
    if nl: e("s_barrier")
def flag_store(off, val):
    e("v_mov_b32 v194, 0"); e(f"v_mov_b32 v195, {val}"); e("s_mov_b64 exec, 1")
    e(f"buffer_store_dword v195, v194, {sr(S_FLG,4)}, s{off} offen sc1"); e("s_mov_b64 exec, -1")
S_HP, S_HN, S_W1, S_U, S_B1, S_X, S_H = 8, 12, 16, 24, 52, 56, 76
def ln_role():
    e(f"s_and_b32 s86, s{SH}, 7"); e("s_lshl_b32 s86, s86, 2"); e(f"s_add_u32 s86, s86, s{SW}"); e("s_lshl_b32 s87, s73, 5"); e("s_add_u32 s86, s86, s87")
    e("v_and_b32 v1, 63, v0"); e("v_lshlrev_b32 v2, 4, v1"); e("v_lshlrev_b32 v3, 3, v1"); e("s_lshl_b32 s87, s73, 8"); e("s_add_u32 s87, s87, 4096")
    e("s_mov_b32 s88, -1"); e("s_mov_b32 s89, 0xffff")
    e("s_mul_i32 s90, s86, 18432"); e("s_mul_i32 s91, s86, 1152"); e("v_mov_b32 v4, 0"); e("v_mov_b32 v5, 0"); e("s_mov_b64 exec, s[88:89]")
    for r in range(3): e(f"buffer_load_dwordx2 {vr(8+2*r,2)}, v3, {sr(S_X,4)}, s91 offen offset:{384*r}")
    e("v_lshlrev_b32 v194, 2, v1"); pollv(87, "v_cmp_eq_u32 vcc, 0, v195", True)
    if PROF: e("s_memtime s[94:95]")
    for hg in range(8):
        for r in range(3): e(f"buffer_load_dwordx4 {vr(32+12*hg+4*r,4)}, v2, {sr(S_HP,4)}, s90 offen offset:{768*r} sc1")
        e("s_add_u32 s90, s90, 2304")
    for i in range(6): e(f"v_lshlrev_b32 v{16+2*i}, 16, v{8+i}"); e(f"v_and_b32 v{17+2*i}, 0xffff0000, v{8+i}")
    for hg in range(8):
        e(f"s_waitcnt vmcnt({21-3*hg})")
        for i in range(0, 12, 2): e(f"v_pk_add_f32 {vr(16+i,2)}, {vr(16+i,2)}, {vr(32+12*hg+i,2)}")
    for i in range(6): e(f"v_cvt_pk_bf16_f32 v{8+i}, v{16+2*i}, v{17+2*i}")
    for i in range(6): e(f"v_lshlrev_b32 v{16+2*i}, 16, v{8+i}"); e(f"v_and_b32 v{17+2*i}, 0xffff0000, v{8+i}")
    for i in range(12): e(f"v_add_f32 v4, v4, v{16+i}")
    def allred(v): e("s_mov_b64 exec, -1"); red16("v_add_f32", v, 6); xswap(16, "v_add_f32", v, 6); xswap(32, "v_add_f32", v, 6); e(f"v_mul_f32 v{v}, {f2u(1/576)}, v{v}"); e("s_mov_b64 exec, s[88:89]")
    if PROF: e("s_memtime s[96:97]")
    allred(4)
    for i in range(12): e(f"v_sub_f32 v{16+i}, v{16+i}, v4"); e(f"v_fmac_f32 v5, v{16+i}, v{16+i}")
    allred(5)
    e(f"v_add_f32 v4, {f2u(1e-5)}, v5"); e("v_rsq_f32 v4, v4"); e("s_nop 0")
    e("v_mul_f32 v5, v5, v4"); e("v_mul_f32 v5, v5, v4"); e(f"v_add_f32 v5, {f2u(1e-5)}, v5"); e("v_rsq_f32 v5, v5"); e("s_nop 0"); e("v_mul_f32 v4, v4, v5")
    for i in range(12): e(f"v_mul_f32 v{16+i}, v{16+i}, v4")
    for i in range(6): e(f"v_cvt_pk_bf16_f32 v{16+i}, v{16+2*i}, v{17+2*i}")
    for r in range(3): e(f"buffer_store_dwordx2 {vr(16+2*r,2)}, v3, {sr(S_HN,4)}, s91 offen offset:{384*r} sc1")
    e(f"s_lshl_b32 s92, s{SH}, 2"); e("s_lshl_b32 s93, s80, 13"); e("s_add_u32 s92, s92, s93"); e(f"s_add_u32 s92, s92, {131072-768}"); e("s_mov_b64 exec, -1")
    e("v_lshlrev_b32 v194, 7, v1"); e("v_mov_b32 v195, 1"); e("s_waitcnt vmcnt(0)"); e("s_barrier"); e(f"s_cmp_lg_u32 s{SW}, 0"); e("s_cbranch_scc1 ln_nf")
    e(f"s_mov_b64 exec, {-1 if RP == 64 else (1<<RP)-1}" if RP != 32 else "s_mov_b32 exec_hi, 0"); e(f"buffer_store_dword v195, v194, {sr(S_FLG,4)}, s92 offen sc1"); lab("ln_nf")
    if PROF: e("s_memtime s[100:101]"); e("s_waitcnt lgkmcnt(0)")
    e("s_mov_b64 exec, s[88:89]")
    for r in range(3): e(f"buffer_store_dwordx2 {vr(8+2*r,2)}, v3, {sr(S_H,4)}, s91 offen offset:{384*r}")
    e("s_mov_b64 exec, -1")
    e(f"s_and_b32 s90, s{SH}, 7"); e("s_lshl_b32 s91, s73, 3"); e("s_add_u32 s90, s90, s91"); e("s_mul_i32 s91, s90, 2304"); e("s_mul_i32 s90, s90, 36864"); e("v_lshlrev_b32 v2, 4, v0")
    for i in range(9): e(f"buffer_load_dwordx4 {vr(32+4*i,4)}, v2, {sr(S_WO,4)}, s90 offen"); e("s_add_u32 s90, s90, 4096")
    e("v_lshrrev_b32 v3, 4, v0"); e("v_mul_u32_u24 v3, 1179648, v3"); e("v_and_b32 v2, 0xf0, v2"); e("v_add_u32 v2, v2, v3"); srd_ws(40, 'w2t', 4)
    for i in range(9): e("s_waitcnt vmcnt(8)"); e(f"buffer_store_dwordx4 {vr(32+4*i,4)}, v2, s[40:43], s91 offen offset:{256*i}")
    e("s_add_u32 s73, s73, 4")
def phase2():
    if PROF: e("s_memtime s[96:97]"); e("s_mov_b32 s98, s44")
    for s, n in ((S_W1, 'w1'), (S_B1, 'b1'), (S_X, 'x')): srd_arg(s, n)
    for s, n in ((S_HP, 'hp'), (S_HN, 'hn'), (S_U, 'u'), (S_H, 'h')): srd_ws(s, n, 4)
    e(f"s_mov_b32 s{TMO}, 400000"); e("s_waitcnt lgkmcnt(0)")
    sdivmod(66, 67, SH, 6, 256)
    e(f"s_and_b32 s68, s{SW}, 1"); e("s_mul_i32 s68, s68, 3"); e(f"s_lshr_b32 s69, s{SW}, 1"); e("s_lshl_b32 s69, s69, 2")
    e("s_and_b32 s72, s66, 7"); e("s_lshr_b32 s73, s66, 3")
    RED = 57344
    e(f"s_cmp_lt_u32 s{SH}, 192"); e("s_cbranch_scc1 p2_wo"); e(f"s_bfe_u32 s73, s{SH}, 0x20003"); lab("p2_wo")
    W = Op('t', 96, 1152, S_WO, 70, 0, 6, perm=True); gemm_setup([W], 8, SW, 2)
    e(f"s_mul_i32 s70, s72, {512*1152}"); e("s_mul_i32 s71, s67, 192"); e("s_add_u32 s70, s70, s71")
    for k in range(8): gemm_dma([W], k * 12288, SWL, 74)
    e(f"s_mul_i32 s71, s{SW}, 24576")
    for j in range(W.nrv): e(f"v_add_u32 v{W.rv+j}, s71, v{W.rv+j}")
    e("s_waitcnt vmcnt(0)"); e("s_barrier")
    for m in range(4):
        for nt in range(6):
            for ins in frag_reads(W, nt, m & 1, 64 + 4 * (m * 6 + nt), (m >> 1) * 12288): e(ins.replace(" v[", " a[", 1))
    e("v_and_b32 v2, 15, v0"); e("v_bfe_u32 v3, v0, 4, 2"); e("v_mul_u32_u24 v2, 400, v2"); e("v_lshl_add_u32 v2, v3, 4, v2")
    e(f"s_mul_i32 s71, s{SW}, 12800"); e(f"s_add_u32 s71, s71, {RED}"); e("v_add_u32 v196, s71, v2")
    e("s_mul_i32 s70, s72, 2304"); e("s_mul_i32 s71, s67, 384"); e("s_add_u32 s70, s70, s71")
    for r in range(3):
        e(f"v_add_u32 v2, {256*r}, v0"); vdivmod(3, 4, 2, 24, 768); e("v_lshlrev_b32 v4, 4, v4")
        e(f"v_mul_u32_u24 v5, 400, v3"); e(f"v_add_u32 v5, {RED}, v5"); e(f"v_add_u32 v{197+r}, v5, v4")
        e(f"v_mul_u32_u24 v5, 18432, v3"); e(f"v_add3_u32 v{200+r}, v5, v4, s70")
    e("s_waitcnt lgkmcnt(0)"); e("s_barrier")
    srd_arg(S_WO, 'w2'); e("s_waitcnt lgkmcnt(0)")
    Xo = Op('t', 96, 1152, S_HN, 70, "s68", 3); Y = Op('t', 128, 9216, S_W1, 71, "s69", 4)
    vb, stage = gemm_setup([Xo, Y], 204, SW, 2); assert vb <= 256 and 2 * stage == RED
    e("s_mul_i32 s70, s67, 192"); e("s_lshl_b32 s71, s66, 8"); zero(256, 48)
    mf = [(256 + 4 * (i * 4 + j), Y, j, Xo, i) for i in range(3) for j in range(4)]
    e("s_mov_b32 s80, 0"); e(f"s_and_b32 s81, s{SH}, {RP-1}"); e("s_lshl_b32 s81, s81, 7"); e("s_add_u32 s81, s81, 131072")
    e("s_lshl_b32 s82, s72, 2"); e(f"s_add_u32 s82, s82, s{SW}")
    e("s_mul_i32 s83, s72, 6"); e("s_add_u32 s83, s83, s67"); e("s_lshl_b32 s83, s83, 2"); e("s_add_u32 s83, s83, 4096")
    e("v_bfe_u32 v3, v0, 4, 2"); e("s_min_u32 s84, s66, 35"); mlp1_epi(32, 80, 84, 67, 68, 69, S_B1, S_U, True)
    lab("p2_loop")
    e("s_cmp_eq_u32 s80, 0"); e("s_cbranch_scc1 p2_noy"); e(f"s_cmp_ge_u32 s{SH}, 216"); e("s_cbranch_scc1 p2_noy")
    for st in range(2): gemm_dma([Y], st * stage, SWL, 74)
    lab("p2_noy")
    e("s_cmp_eq_u32 s80, 16"); e("s_cbranch_scc1 p2_noat"); e(f"s_cmp_lt_u32 s{SH}, 192"); e("s_cbranch_scc1 p2_at"); ln_role(); e("s_branch p2_noat"); lab("p2_at")
    e("s_lshl_b32 s84, s80, 5"); e("s_add_u32 s84, s84, s82"); e("s_lshl_b32 s84, s84, 7"); e("s_bitset1_b32 s84, 16"); e("v_mov_b32 v194, 0")
    pollv(84, "v_cmp_ne_u32 vcc, 2, v195")
    e("s_lshl_b32 s84, s73, 5"); e("s_add_u32 s84, s84, s82"); e("s_lshl_b32 s85, s82, 7"); e("s_add_u32 s85, s85, 28672")
    attn_body(S_QF, S_KF, S_VF, S_KVM, 84, lambda: pollv(85, "v_cmp_ge_u32 vcc, s73, v195"))
    e("s_nop 0")
    for m in range(4):
        for tt in range(2):
            for nt in range(6):
                a = 104 + 4 * (6 * tt + nt)
                e(f"v_mfma_f32_16x16x32_bf16 {vr(a,4)}, {ar(64+4*(m*6+nt),4)}, {vr(72+16*tt+4*m,4)}, {vr(a,4) if m else 0}")
    e(f"s_mul_i32 s84, s73, {32*18432}"); e("s_lshl_b32 s85, s73, 8"); e("s_add_u32 s85, s85, s83"); e("s_nop 2")
    for tt in range(2):
        for nt in range(6): e(f"ds_write_b128 v196, {vr(104+4*(6*tt+nt),4)} offset:{tt*6400+nt*64}")
    e("s_waitcnt lgkmcnt(0)"); e("s_barrier")
    for r in range(3):
        for w in range(4): e(f"ds_read_b128 {vr(8+16*r+4*w,4)}, v{197+r} offset:{w*12800}")
    for r in range(3):
        b = 8 + 16 * r; e(f"s_waitcnt lgkmcnt({8-4*r})")
        for x, y in ((0, 4), (8, 12), (0, 8)):
            for i in (0, 2): e(f"v_pk_add_f32 {vr(b+x+i,2)}, {vr(b+x+i,2)}, {vr(b+y+i,2)}")
        e(f"buffer_store_dwordx4 {vr(b,4)}, v{200+r}, {sr(S_HP,4)}, s84 offen sc1")
    e("s_waitcnt vmcnt(0)"); e("s_barrier"); e("s_add_u32 s73, s73, 4")
    if PROF: e("s_memtime s[94:95]"); e("s_waitcnt lgkmcnt(0)")
    e(f"s_cmp_lg_u32 s{SW}, 0"); e("s_cbranch_scc1 p2_noat"); flag_store(85, 1)
    lab("p2_noat")
    e("s_cmp_eq_u32 s80, 0"); e("s_cbranch_scc1 p2_next"); e(f"s_cmp_ge_u32 s{SH}, 216"); e("s_cbranch_scc1 p2_next")
    e("v_and_b32 v194, 31, v0"); e("v_lshlrev_b32 v194, 2, v194"); pollv(81, "v_cmp_eq_u32 vcc, 0, v195", True); e("s_add_u32 s81, s81, 8192")
    if PROF: e("s_memtime s[96:97]"); e("s_waitcnt lgkmcnt(0)")
    for st in range(2): gemm_dma([Xo], st * stage, SWL, 74, "sc1")
    e("s_waitcnt vmcnt(0)"); e("s_barrier")
    for st in range(2): gemm_compute(mf, st * stage, 8, 14)
    e("s_barrier")
    lab("p2_next")
    e("s_add_u32 s80, s80, 1"); e("s_cmp_le_u32 s80, 16"); e("s_cbranch_scc1 p2_loop")
    e(f"s_cmp_lt_u32 s{SH}, 216"); e("s_cbranch_scc1 p2_epi")
    if PROF:
        srd_arg(8, 'dbg'); e("s_waitcnt lgkmcnt(0)"); e(f"s_cmp_lg_u32 s{SH}, 223"); e("s_cbranch_scc1 wpe2"); e("v_mov_b32 v2, 0")
        for i, r in enumerate((94, 96, 100)): e(f"s_sub_u32 s{r}, s{r}, s98"); e(f"v_mov_b32 v3, s{r}"); e(f"buffer_store_dword v3, v2, s[8:11], 0 offen offset:{48+4*i}")
        lab("wpe2")
    e("s_endpgm"); lab("p2_epi"); e("s_nop 7")
    for i in range(48): e(f"v_accvgpr_read_b32 v{32+i}, a{i}")
    e("v_and_b32 v2, 15, v0"); e("v_bfe_u32 v3, v0, 4, 2")
    if PROF: e("s_memtime s[90:91]")
    mlp1_epi(32, 80, 66, 67, 68, 69, S_B1, S_U)
    if PROF:
        e("s_waitcnt vmcnt(0)"); e("s_memtime s[92:93]"); srd_arg(8, 'dbg'); e("s_waitcnt lgkmcnt(0)"); e(f"s_cmp_lg_u32 s{SH}, 191"); e("s_cbranch_scc1 wpe"); e("v_mov_b32 v2, 0")
        for i, r in enumerate((96, 94, 90, 92)): e(f"s_sub_u32 s{r}, s{r}, s98"); e(f"v_mov_b32 v3, s{r}"); e(f"buffer_store_dword v3, v2, s[8:11], 0 offen offset:{32+4*i}")
        lab("wpe")
    e("s_endpgm")

def poll_tmo(again, out):
    e(f"s_cmp_eq_u32 s{TMO}, 0"); e(f"s_cbranch_scc1 {out}"); e(f"s_sub_u32 s{TMO}, s{TMO}, 1"); e(f"s_branch {again}")

_ts = [0]
def ts():
    if 't' in X: e("s_memtime s[88:89]"); e("s_waitcnt lgkmcnt(0)"); e(f"s_sub_u32 s88, s88, s44"); e(f"s_mul_i32 s{90+_ts[0]}, s88, 63"); _ts[0] += 1
def chain_prologue():
    ts()
    e("v_and_b32 v12, 63, v0"); e("v_lshrrev_b32 v13, 4, v12"); e("v_and_b32 v14, 15, v12")
    e(f"s_and_b32 s66, s{SW}, 1"); e(f"s_lshr_b32 s67, s{SW}, 1")
    e("s_lshl_b32 s68, s67, 5"); e("s_lshl_b32 s69, s66, 1"); e("s_add_u32 s68, s68, s69")
    e("v_lshrrev_b32 v15, 1, v13"); e("v_and_b32 v16, 1, v13"); e("v_lshl_add_u32 v15, v15, 3, v16"); e("v_add_u32 v15, s68, v15")
    e(f"s_lshl_b32 s69, s{SH}, 8")
    for p in range(2):
        e(f"v_add_u32 v16, {4*p}, v13"); e("v_lshlrev_b32 v16, 1, v16"); e("v_xor_b32 v16, v16, v14")
        e(f"v_add_u32 v17, {4*p}, v15"); e("v_lshlrev_b32 v17, 13, v17"); e(f"v_lshl_add_u32 v{20+p}, v16, 4, v17"); e(f"v_add_u32 v{20+p}, s69, v{20+p}")
    def rest():
        e("v_bfe_u32 v15, v12, 4, 1"); e("v_bfe_u32 v16, v12, 3, 1"); e("v_lshl_add_u32 v15, v15, 3, v16"); e("v_lshrrev_b32 v16, 5, v12")
        e("v_lshl_add_u32 v15, v16, 2, v15"); e("v_add_u32 v15, s68, v15"); e("v_lshlrev_b32 v15, 13, v15")
        e("v_and_b32 v16, 7, v12"); e("v_lshlrev_b32 v17, 1, v13"); e("v_xor_b32 v16, v16, v17")
        e("v_lshl_add_u32 v22, v16, 4, v15"); e("v_add_u32 v22, s69, v22")
        e("s_lshl_b32 s68, s67, 3"); e("s_lshl_b32 s70, s66, 1"); e("s_add_u32 s68, s68, s70")
        e(f"s_mul_i32 s70, s{SH}, 147456")
        for i in range(18):
            e(f"v_add_u32 v15, {64*i}, v12"); vdivmod(16, 17, 15, 72, 1152)
            e("v_bfe_u32 v18, v16, 1, 2"); e("v_lshlrev_b32 v18, 1, v18"); e("v_xor_b32 v17, v17, v18")
            e("v_bfe_u32 v18, v16, 2, 1"); e("v_lshlrev_b32 v15, 6, v18"); e("v_bfe_u32 v18, v16, 1, 1"); e("v_lshl_add_u32 v15, v18, 4, v15")
            e("v_bfe_u32 v18, v16, 3, 1"); e("v_lshl_add_u32 v15, v18, 2, v15"); e("v_and_b32 v18, 1, v16"); e("v_add3_u32 v15, v15, v18, s68")
            e("v_mul_u32_u24 v15, 1152, v15"); e(f"v_lshl_add_u32 v{24+i}, v17, 4, v15"); e(f"v_add_u32 v{24+i}, s70, v{24+i}")
        e("v_lshrrev_b32 v15, 2, v12"); e("v_and_b32 v16, 3, v12"); e("v_lshlrev_b32 v16, 3, v16")
        e("v_and_b32 v17, 7, v15"); e(f"s_lshl_b32 s68, s{SW}, 1")
        for t in range(2):
            e(f"s_add_u32 s71, s68, {t}"); e("v_xor_b32 v18, s71, v17"); e("v_lshl_add_u32 v18, v18, 5, v16")
            e(f"v_lshl_add_u32 v{42+t}, v15, 8, v18"); e(f"v_add_u32 v{42+t}, {WB}, v{42+t}")
        e("v_bfe_u32 v17, v15, 1, 2"); e(f"v_xor_b32 v17, s{SW}, v17"); e("v_lshl_add_u32 v17, v17, 5, v16")
        e("v_lshl_add_u32 v4, v15, 7, v17"); e(f"v_add_u32 v4, {WV_IMG}, v4")
        e("v_mul_u32_u24 v5, 1152, v15"); e("v_add_u32 v5, v5, v17"); e(f"v_add_u32 v5, {WO_IMG}, v5")
    def dma(v, srd, so, lds):
        e(f"s_mov_b32 s71, {so}"); e(f"s_add_u32 m0, s72, {lds}"); e("s_nop 0"); e(f"buffer_load_dwordx4 v{v}, {sr(srd,4)}, s71 offen lds")
    def qk_dma(srd, js):
        e(f"s_lshl_b32 s72, s{SW}, 12")
        for j in js:
            for g in range(4): dma(20 + (g & 1), srd, (64 * j + 16 * (g >> 1)) * 8192, WB + j * 16384 + g * 1024)
    def v_dma(half, js=range(9)):
        e(f"s_lshl_b32 s72, s{SW}, 11")
        for j in js:
            for gp in range(2): dma(22, S_WV, (64 * j + 16 * gp) * 8192 + 128 * half, WV_IMG + j * 8192 + gp * 1024)
    def o_dma(half):
        e(f"s_mul_i32 s72, s{SW}, 18432")
        for i in range(18): dma(24 + i, S_WO, 32 * half * 1152, WO_IMG + i * 1024)
    def arrive(n): e(f"s_waitcnt vmcnt({n})"); e("s_barrier")
    def done(): e("s_waitcnt lgkmcnt(0)"); e("s_barrier")
    def qk_rd(W, g):
        for t in range(2):
            e(f"v_add_u32 v11, {g*49152}, v{42+t}")
            for j in range(3):
                for m in range(4): e(f"ds_read_b64_tr_b16 {R(W(3*g+j,t)+2*m,2)}, v11 offset:{j*16384+m*4096}")
        done()
    def v_rd(dst):
        for j in range(9):
            for m in range(4): e(f"ds_read_b64_tr_b16 {R(dst(j)+2*m,2)}, v{4 if j<8 else 3} offset:{(j%8)*8192+m*2048}")
        done(); ts()
    def o_rd(dst):
        for j in range(9):
            for m in range(4): e(f"ds_read_b64_tr_b16 {R(dst(j)+2*m,2)}, v5 offset:{m*18432+j*128}")
        done(); ts()
    qk_dma(S_WQ, range(9)); rest(); e("v_add_u32 v3, 65536, v4")
    for g in range(3): arrive(24); qk_rd(WQ, g); qk_dma(S_WK, range(3 * g, 3 * g + 3))
    ts(); arrive(24); qk_rd(WK, 0); v_dma(0, range(6)); arrive(24); qk_rd(WK, 1); v_dma(0, range(6, 9)); arrive(18); qk_rd(WK, 2); o_dma(0); ts()
    arrive(18); v_rd(WVA); v_dma(1); arrive(18); o_rd(WO0); o_dma(1)
    e(f"s_mul_i32 s68, s{SW}, 18432"); e(f"s_add_u32 s68, s68, {WV_IMG}"); e("v_lshlrev_b32 v0, 4, v12"); e("v_add_u32 v6, s68, v0")
    e("v_add_u32 v7, 73728, v6")
    for img in range(2):
        arrive(18 - 18 * img); (v_rd, o_rd)[img](lambda j: 8 + 8 * j)
        for j in range(18): e(f"ds_write_b128 v{6+img}, {vr(8+4*j,4)} offset:{1024*j}")
        e("s_waitcnt lgkmcnt(0)")
    e("v_mov_b32 v4, v6"); e("v_lshrrev_b32 v12, 4, v0"); e("v_lshrrev_b32 v13, 4, v12"); e("v_and_b32 v14, 15, v12")
    e("v_mov_b32 v1, 0x44444444"); e("v_mov_b32 v15, 0xeeeeeeee"); e("v_cmp_le_u32 vcc, 8, v14"); e("s_nop 1"); e("v_cndmask_b32 v1, v1, v15, vcc")
    e("v_and_b32 v20, 1, v13"); e("v_lshlrev_b32 v15, 2, v20"); e("v_and_b32 v16, 7, v14"); e("v_sub_u32 v15, v16, v15")
    for r in range(2):
        e(f"v_mov_b32 v{2+r}, 0")
        for hh, val in ((0, 0x3f80), (1, 0x3f800000)):
            e(f"v_mov_b32 v17, {val:#x}"); e(f"v_cmp_eq_u32 vcc, {2*r+hh}, v15"); e("s_nop 1"); e(f"v_cndmask_b32 v{2+r}, v{2+r}, v17, vcc")
    e("v_lshlrev_b32 v17, 4, v16"); e("v_lshl_add_u32 v17, v13, 7, v17")
    e(f"s_lshl_b32 s68, s{SW}, 9"); e("v_add_u32 v7, s68, v17")
    e("v_lshrrev_b32 v18, 3, v14"); e("v_lshl_add_u32 v8, v18, 9, v17")
    e("v_lshl_add_u32 v5, v18, 11, v17"); e("v_lshl_add_u32 v6, v18, 3, v17")
    e("v_lshrrev_b32 v19, 1, v13"); e("v_lshl_add_u32 v19, v19, 3, v20"); e(f"s_lshl_b32 s68, s{SW}, 1"); e("v_add_u32 v19, s68, v19")
    e("v_lshlrev_b32 v9, 12, v19"); e("v_lshl_add_u32 v9, v16, 4, v9"); e("v_lshl_add_u32 v9, v18, 3, v9"); e(f"s_lshl_b32 s68, s{SH}, 7"); e("v_add_u32 v9, s68, v9")
    e(f"s_lshl_b32 s73, s{SW}, 5"); e(f"s_add_u32 s73, s73, s{SH}")
    e("v_lshrrev_b32 v19, 1, v13"); e("v_lshlrev_b32 v10, 2, v19"); e("v_lshl_add_u32 v10, v16, 4, v10"); e("v_lshl_add_u32 v10, v20, 3, v10")
    e("s_lshl_b32 s68, s73, 7"); e("v_add_u32 v10, s68, v10"); e("s_lshl_b32 s74, s73, 12"); swap67(39, 0)

def wait_flag(stb):
    a, o = uid("fl"), uid("flo")
    e(f"s_lshl_b32 s71, s{stb}, 5"); e(f"s_add_u32 s71, s71, s{SH}"); e("s_lshl_b32 s71, s71, 7"); e("s_bitset1_b32 s71, 16"); e("v_mov_b32 v28, 0")
    e(f"s_buffer_load_dword s72, {sr(S_FLG,4)}, s71"); e("s_waitcnt lgkmcnt(0)"); e("s_cmp_lg_u32 s72, 0"); e(f"s_cbranch_scc1 {o}")
    lab(a); e(f"buffer_load_dword v29, v28, {sr(S_FLG,4)}, s71 offen sc1"); e("s_waitcnt vmcnt(0)")
    e("v_cmp_ne_u32 vcc, 0, v29"); e(f"s_cbranch_vccnz {o}"); poll_tmo(a, o); lab(o)

def chain():
    chain_prologue()
    e(f"s_mov_b32 s{TMO}, 400000"); e(f"s_mov_b32 s{STEP}, 0")
    e("s_mov_b32 s75, 0"); e("s_mov_b32 s76, 9216"); e("s_mov_b32 s77, 18432")
    e("s_mov_b32 s78, 0")
    e(f"s_lshl_b32 s79, s{SH}, 13")
    e(f"s_mov_b32 s80, {f2u(128**-0.5*LOG2E)}"); e("s_mov_b32 s82, 0x00ff00ff"); e("s_mov_b32 s83, 0x00ff00ff")
    e(f"s_lshl_b32 s81, s{SH}, 7"); e("s_add_u32 s81, s81, 28672")
    e("s_mov_b32 s86, 0"); e(f"s_cmp_lg_u32 s{SW}, 3"); e("s_cbranch_scc1 nofl0"); wait_flag(86); lab("nofl0"); e("s_barrier")
    KX, VX, AL, ACC, WL = 12, 20, 28, 40, 64
    z2 = lambda r: e(f"v_mov_b64 {vr(r,2)}, 0")
    e(f"s_mul_i32 s84, s{SW}, 3072"); e(f"s_mov_b32 m0, {LDS_A}"); e(f"s_mov_b32 s{S_KF+2}, {2*16777216}"); e(f"s_mov_b32 s47, {2*16777216-4096}")
    e(f"s_lshr_b32 s85, s{SW}, 1"); e("s_lshl_b32 s85, s85, 24"); e(f"s_and_b32 s46, s{SW}, 1"); e("s_lshl_b32 s46, s46, 12"); e("s_add_u32 s85, s85, s46"); e(f"s_add_u32 s85, s85, {32*8192}")
    e(f"s_mov_b32 s46, {2*72*4096}")
    e("s_mul_i32 s30, s73, 2304")
    assert WS['kf'][0] + 16777216 == WS['vf'][0]
    if PROF:
        e("s_memtime s[40:41]")
        for i in range(12 * ('t' not in X)): e(f"s_mov_b32 s{90+i}, 0")
    e(f"s_add_u32 s31, s75, s84"); e("v_add_u32 v11, s84, v0")
    lab("step"); stamp()
    def mp_ld(b):
        for i in range(3): e(f"buffer_load_dwordx4 {vr(b[i],4)}, v39, {sr(S_MH,4)}, s31 offen offset:{1024*i} sc1")
    def mp_ck(b):
        e("s_waitcnt vmcnt(3)")
        p, q, r = b
        e(f"ds_write_b128 v11, {vr(p,4)}"); e(f"v_max3_u32 v36, v{p}, v{p+1}, v{p+2}"); e(f"v_max3_u32 v37, v{p+3}, v{q}, v{q+1}")
        e(f"ds_write_b128 v11, {vr(q,4)} offset:1024"); e(f"v_max3_u32 v38, v{q+2}, v{q+3}, v{r}"); e(f"v_max3_u32 v36, v36, v{r+1}, v{r+2}")
        e(f"ds_write_b128 v11, {vr(r,4)} offset:2048"); e(f"v_max3_u32 v37, v37, v38, v{r+3}")
        e("v_max_u32 v36, v36, v37"); e("v_cmp_eq_u32 vcc, -1, v36"); e("s_cbranch_vccz mpo")
    e(f"s_cmp_lg_u32 s{SW}, 3"); e("s_cbranch_scc1 mp0")
    for r in range(ACC, ACC + 24, 2): e(f"v_mov_b64 {vr(r,2)}, 0")
    e("s_branch mp3"); lab("mp0")
    mp_ld((12,16,20)); e("s_waitcnt vmcnt(4)")
    for r in range(ACC, ACC + 24, 2): e(f"v_mov_b64 {vr(r,2)}, 0")
    lab("mp"); mp_ld((24,72,76)); mp_ck((12,16,20)); e("s_waitcnt lgkmcnt(0)"); mp_ld((12,16,20)); mp_ck((24,72,76)); e("s_waitcnt lgkmcnt(0)"); poll_tmo("mp", "mpo"); lab("mpo")
    lab("mp3"); stamp()
    e(f"s_lshl_b32 s87, s{SWL}, 1"); e("s_add_u32 s87, s87, s79"); e(f"s_add_u32 s88, s79, s{SWL}"); e("s_add_u32 s89, s88, 4096")
    e("s_waitcnt lgkmcnt(0)"); e("s_barrier")
    d = DS(); stamp()
    def prog(val, r=11):
        e(f"v_mov_b32 v{r}, {val}"); e("s_mov_b64 exec, 1"); e(f"buffer_store_dword v{r}, v0, {sr(S_FLG,4)}, s81 offen sc1"); e("s_mov_b64 exec, -1")
    def rdA(j): d.op(f"ds_read_b128 {vr(AL+4*(j%3),4)}, v0 offset:{MI+j*1024}", ('a', j))
    def rdW(dst, adr, i, tag):
        for m in range(2): d.op(f"ds_read_b128 {vr(dst+4*m,4)}, v{adr} offset:{i*2048+m*1024}", tag)
    rdV = lambda j: rdW(WL + 8 * (j % 2), 4, j, ('wv', j))
    for j in range(3): rdA(j)
    rdV(0)
    NE = int(os.environ.get('NE', 2))
    xl = [f"buffer_load_dwordx4 {vr(KX+4*i,4)}, v0, {sr(S_KF,4)}, s87 offen offset:{1024*i}" for i in range(2)] + [f"buffer_load_dwordx4 {vr(VX+4*i,4)}, v0, {sr(S_VF,4)}, s{88+i} offen" for i in range(2)]
    for i in range(NE): e(xl.pop(0))
    e("s_add_u32 s71, s79, s85"); e("s_min_u32 s71, s71, s47"); e("s_add_u32 s72, s46, s74"); e("s_cmp_ge_u32 s73, 72"); e("s_cselect_b64 vcc, -1, 0")
    def vA(j): smf(56, AL + 4 * (j % 3), WVA(j))
    def vB(j): d.need(('wv', j)); smf(60, AL + 4 * (j % 3), WL + 8 * (j % 2))
    for j in range(9):
        d.need(('a', j))
        def red(*ins):
            l = uid("nr"); e(f"s_cbranch_vccnz {l}")
            for x in ins: e(x)
            lab(l)
        ra = lambda i: f"buffer_store_dwordx4 v[24:27], v0, {sr(S_P1,4)}, s72 offen offset:{1024*i}"
        V = os.environ.get("V", "1")
        for t in range(2): smf(ACC + 4 * t, AL + 4 * (j % 3), WQ(j, t))
        if j == 1: e(xl.pop(0)); e(f"s_cmp_lg_u32 s{SW}, 3"); e("s_cbranch_scc1 ra2"); prog(f"s{STEP}"); lab("ra2")
        if j in (2, 3): red(ra(2 * j - 4), ra(2 * j - 3)) if V == "0" else red(ra(2 * j - 4))
        if j == 4: e(xl.pop(0))
        for t in range(2): smf(ACC + 8 + 4 * t, AL + 4 * (j % 3), WK(j, t))
        if j == 0: e("s_waitcnt vmcnt(2)"); rdV(1); e("v_mov_b64 v[24:25], -1"); e("v_mov_b64 v[26:27], -1")
        if j == 1: red(f"buffer_store_dword v24, v10, {sr(S_MH,4)}, s77 offen")
        if j == 2: e("v_and_b32 v11, 0x1f0, v0"); e("v_lshlrev_b32 v11, 3, v11")
        if j == 4: e(f"buffer_load_dword v11, {sr(S_KF,4)}, s71 offen lds")
        if j < 7:
            vA(j)
            if j in (2, 3) and V != "0": red(ra(2 * j - 3))
            vB(j); rdV(j + 2)
            if j + 3 < 9: rdA(j + 3)
    stamp()
    tr = lambda dd, a: e(f"v_mfma_f32_16x16x16_bf16 {vr(dd,4)}, {vr(a,2)}, v[2:3], 0")
    vA(7); vB(7); e("v_add_u32 v11, 73728, v4"); e("s_nop 3")
    WLS = (72, 64, 20)
    rdO = lambda i: rdW(WLS[i % 3], 11, (i + 8) % 9, ('wo', i))
    cvt(28, 40, 4); rdO(0); tr(40, 28); tr(44, 30)
    cvt(28, 48, 4); e("s_nop 1"); tr(48, 28); tr(52, 30)
    vA(8)
    cvt(28, 40, 4); e("s_nop 2"); cvt(40, 48, 4); e("s_waitcnt vmcnt(3)")
    for n, a in ((1, KX), (2, KX + 4), (0, 40)): e(f"v_mfma_f32_16x16x32_bf16 {vr(44+4*n,4)}, {vr(a,4)}, v[28:31], 0")
    vB(8); e(f"buffer_store_dwordx4 v[40:43], v0, {sr(S_KVM,4)}, s87 offen {KA}"); rdO(1); e("s_nop 2")
    for n in (1, 2, 0): d.op(f"ds_write_b128 v7, {vr(44+4*n,4)} offset:{SREG+2048*n}")
    stamp()
    e("v_mov_b32 v32, 0x3f803f80"); e("v_mov_b32 v33, 0x3f803f80"); e("v_mov_b64 v[34:35], v[32:33]"); e("v_mov_b32 v36, 0x3f003f00"); e("v_mov_b32 v37, 0x3f003f00")
    cvt(40, 56, 4)
    d.drain(); e("s_barrier"); stamp()
    SX = (44, 48, 52, 56); SM = (12, 14, 16, 18)
    for w in range(4):
        d.op(f"ds_read_b128 {vr(SX[w],4)}, v5 offset:{SREG+2048+512*w}"); d.op(f"ds_read_b64 {vr(SM[w],2)}, v6 offset:{SREG+512*w}", ('s', w))
    e(f"buffer_store_dwordx4 v[40:43], v0, {sr(S_KVM,4)}, s87 offen offset:1024 {KA}")
    e(f"s_cmp_eq_u32 s{STEP}, 63"); e("s_cbranch_scc1 chain_end")
    z2(60); z2(62)
    pk = lambda op, dd, a, b: e(f"v_pk_{op}_f32 {vr(dd,2)}, {vr(a,2)}, {vr(b,2)}")
    d.need(('s', 1)); pk("add", 44, 44, 48); pk("add", 46, 46, 50); pk("add", 12, 12, 14)
    d.need(('s', 3)); pk("add", 52, 52, 56); pk("add", 54, 54, 58); pk("add", 16, 16, 18)
    pk("add", 44, 44, 52); pk("add", 46, 46, 54); pk("add", 48, 12, 16)
    e("v_max3_f32 v38, v44, v45, v46"); e("v_max3_f32 v39, v47, v48, v49"); e("v_max_f32 v38, v38, v39"); z2(52); z2(54)
    e("v_max_f32_dpp v38, v38, v38 row_ror:8 row_mask:0xf bank_mask:0xf"); e("v_mov_b32 v39, v38"); z2(56); z2(58)
    e("v_permlane32_swap_b32 v38, v39"); e("v_max_f32 v38, v38, v39"); e("v_mov_b32 v39, v38"); e("s_nop 1")
    e("v_permlane16_swap_b32 v38, v39"); e("v_max_f32 v38, v38, v39"); e("v_mul_f32 v38, s80, v38")
    for r in range(44, 50, 2): e(f"v_pk_fma_f32 {vr(r,2)}, {vr(r,2)}, s[80:81], v[38:39] op_sel_hi:[1,0,0] neg_lo:[0,0,1] neg_hi:[0,0,1]")
    for r in range(44, 50): e(f"v_exp_f32 v{r}, v{r}")
    cvt(12, 44, 2); e("v_cvt_pk_bf16_f32 v16, v48, v49"); e("s_waitcnt vmcnt(3)")
    for dd, a in ((14, 12), (15, 13), (17, 16)): e(f"v_mov_b32_dpp v{dd}, v{a} row_ror:8 row_mask:0xf bank_mask:0xf")
    e("s_nop 0")
    for dd, a in ((28, 32), (44, VX), (48, VX + 4)): e(f"v_mfma_f32_16x16x32_bf16 {vr(dd,4)}, {vr(a,4)}, v[12:15], 0")
    for dd, a in ((28, 36), (44, 40), (48, 42)): e(f"v_mfma_f32_16x16x16_bf16 {vr(dd,4)}, {vr(a,2)}, v[16:17], {vr(dd,4)}")
    rdO(2); stamp()
    OA = [52, 56, 60, 12, 16, 36, 40, 44, 48]
    for r in (12, 14, 16, 18): z2(r)
    e("v_rcp_f32 v28, v28"); z2(36)
    for r in range(44, 52, 2): e(f"v_pk_mul_f32 {vr(r,2)}, {vr(r,2)}, v[28:29] op_sel_hi:[1,0]")
    cvt(32, 44, 4)
    e("s_mov_b64 exec, s[82:83]"); d.op("ds_write_b128 v7, v[32:35]"); e("s_mov_b64 exec, -1")
    for r in range(38, 52, 2): z2(r)
    d.drain(); e("s_barrier")
    for k in range(2): d.op(f"ds_read_b128 {vr(AL+4*k,4)}, v8 offset:{1024*k}", ('o', k))
    ORD = [8, 0, 1, 2, 3, 4, 5, 6, 7]
    def fold(p):
        a = OA[p]
        if p == 0: return [f"v_permlane32_swap_b32 v{a}, v{a+2}", f"v_permlane32_swap_b32 v{a+1}, v{a+3}", f"v_add_f32 v{a}, v{a}, v{a+2}", f"v_add_f32 v{a+1}, v{a+1}, v{a+3}",
                           f"v_bfe_u32 v{a+2}, v9, 15, 1", f"v_cvt_pk_bf16_f32 v{a}, v{a}, v{a+1}", f"v_mad_i32_i24 v{a+2}, v{a+2}, s71, v9", f"buffer_store_dword v{a}, v{a+2}, {sr(S_P1,4)}, s70 offen"]
        b = OA[p + 1]
        ins = [f"v_permlane32_swap_b32 v{a+q}, v{b+q}" for q in range(4)]
        ins += [f"v_pk_add_f32 {vr(a+q,2)}, {vr(a+q,2)}, {vr(b+q,2)}" for q in (0, 2)]
        ins += [f"v_cvt_pk_bf16_f32 v{a}, v{a}, v{a+1}", f"v_cvt_pk_bf16_f32 v{a+1}, v{a+2}, v{a+3}"]
        return ins + [f"buffer_store_dwordx2 {vr(a,2)}, v9, {sr(S_P1,4)}, s{66+p//2} offen"]
    for i in range(5): e(f"s_add_u32 s{66+i}, s78, {i*65536}")
    e("s_mov_b32 s71, -32764")
    d.need(('o', 0)); stamp()
    for i in range(3): smf(OA[i], AL, WO0(ORD[i]))
    d.need(('o', 1))
    pend = []
    def fill(n):
        for _ in range(n):
            if pend: e(pend.pop(0))
    F = int(os.environ.get('F', 4))
    for i in range(9):
        d.need(('wo', i)); smf(OA[i], AL + 4, WLS[i % 3])
        if i + 3 < 9: rdO(i + 3); smf(OA[i + 3], AL, WO0(ORD[i + 3]))
        if i == 2: pend += fold(0)
        if i in (4, 6, 8): pend += fold(i - 3)
        fill(F)
    fill(99); pend += fold(7); fill(99)
    stamp()
    e(f"s_add_u32 s{STEP}, s{STEP}, 1"); e("s_mov_b32 s46, s78"); e(f"s_add_u32 s78, s78, {72*4096}"); e(f"s_cmp_eq_u32 s78, {int(os.environ.get('RG', 2))*72*4096}"); e("s_cselect_b32 s78, 0, s78"); e(f"s_add_u32 s79, s79, {32*8192}")
    e("s_mov_b32 s87, s75"); e("s_mov_b32 s75, s76"); e("s_mov_b32 s76, s77"); e("s_mov_b32 s77, s87")
    e(f"s_add_u32 s31, s75, s84"); e("v_add_u32 v11, s84, v0")
    e("s_cmp_lt_u32 s73, 72"); e("s_cbranch_scc1 red_go"); swap67(39, 0); e(f"s_cmp_lg_u32 s{SW}, 3"); e("s_cbranch_scc1 red_done")
    e(f"s_add_u32 s86, s{STEP}, 1"); e("s_and_b32 s87, s86, 67"); e("s_cbranch_scc1 nofl"); e("s_lshr_b32 s86, s86, 2"); wait_flag(86); lab("nofl")
    e("s_waitcnt vmcnt(0)"); e("s_branch red_done"); lab("red_go")
    e("s_add_u32 s87, s46, s74")
    def rp_ld(b):
        for i in range(4): e(f"buffer_load_dwordx4 {vr(b+4*i,4)}, v0, {sr(S_P1,4)}, s87 offen offset:{1024*i} sc1")
    def rp_ck(b):
        for i in range(4):
            e(f"s_waitcnt vmcnt({7-i})"); e(f"v_mfma_f32_16x16x32_bf16 v[72:75], {vr(b+4*i,4)}, v[64:67], {'v[72:75]' if i else 0}")
        e("s_nop 7"); e("v_permlane32_swap_b32 v72, v74"); e("v_permlane32_swap_b32 v73, v75"); e("v_add_f32 v72, v72, v74"); e("v_add_f32 v73, v73, v75")
        e("v_cmp_u_f32 vcc, v72, v73"); e("v_cvt_pk_bf16_f32 v76, v72, v73"); e("s_cbranch_vccz rpo")
    if 'E' not in X: rp_ld(12)
    e("v_and_b32 v76, 0x30, v0"); e("v_mov_b32 v64, 0x3f80"); e("v_mov_b32 v65, 0"); e("v_lshlrev_b64 v[64:65], v76, v[64:65]"); e("v_bfe_i32 v76, v0, 6, 1")
    e("v_and_b32 v66, v64, v76"); e("v_and_b32 v67, v65, v76"); e("v_xor_b32 v64, v64, v66"); e("v_xor_b32 v65, v65, v67"); swap67(39, 0)
    if 'b' in X: e("s_waitcnt vmcnt(0)")
    if 'c' in X: stamp()
    if 'E' in X: rp_ld(12)
    lab("rp"); rp_ld(44); rp_ck(12); rp_ld(12); rp_ck(44); poll_tmo("rp", "rpo"); lab("rpo"); stamp()
    e("s_mov_b64 exec, s[82:83]"); e(f"buffer_store_dword v76, v10, {sr(S_MH,4)}, s75 offen"); e("s_mov_b64 exec, -1")
    lab("red_done"); e("s_barrier" if 'g' not in X else "s_nop 0"); lab("red_done2"); stamp()
    if PROF:
        e("s_waitcnt lgkmcnt(0)")
        for i in range((_st[0]-1) * ('t' not in X)): e(f"s_sub_u32 s87, s{10+2*i}, s{8+2*i}"); e(f"s_add_u32 s{90+i}, s{90+i}, s87")
    e("s_branch step")
    lab("chain_end"); e("s_waitcnt vmcnt(0)"); e("s_barrier"); prog(64)
    if PROF:
        e("s_memtime s[42:43]"); srd_arg(8, 'dbg'); e("s_waitcnt lgkmcnt(0)")
        e("s_sub_u32 s100, s40, s44"); e("s_sub_u32 s101, s42, s40")
        e(f"s_cmp_lg_u32 s{SH}, 0"); e("s_cbranch_scc1 prof_end"); e(f"s_mul_i32 s87, s{SW}, 48"); e("s_add_u32 s87, s87, 64"); e("v_mov_b32 v2, 0")
        for i in range(12): e(f"v_mov_b32 v3, s{90+i}"); e(f"buffer_store_dword v3, v2, s[8:11], s87 offen offset:{4*i}")
        lab("prof_end")
    e("s_endpgm")

def k_main():
    kstart("main_kernel"); guard(256)
    if PROF: e("s_memtime s[44:45]")
    e(f"s_load_dwordx2 s[4:5], s[0:1], {ARG['ws']}")
    for s, n in ((S_WQ, 'wq'), (S_WK, 'wk'), (S_WV, 'wv'), (S_WO, 'wo'), (72, 'dbg')): srd_arg(s, n)
    wave_id(SW, SWL); e("s_waitcnt lgkmcnt(0)")
    for s, n in ((S_XN, 'xn'), (S_QF, 'qf'), (S_KF, 'kf'), (S_VF, 'vf'), (S_FLG, 'flg'), (S_P1, 'p1'), (S_MH, 'mh'), (S_KVM, 'kvm')): srd_ws(s, n, 4)
    roles()
    e(f"s_cmp_ge_u32 s{SH}, 224"); e("s_cbranch_scc1 is_chain")
    worker()
    lab("is_chain"); e(f"s_and_b32 s{SH}, s{SH}, 31")
    chain()
    return kdesc("main_kernel", 512, 256)
```
